```python
import torch

def _softmax(x, axis=-1):
    return torch.softmax(x, dim=axis)
def _gelu(x):
    return torch.nn.functional.gelu(x, approximate="tanh")
def _silu(x):
    return torch.nn.functional.silu(x)
def _sigmoid(x):
    return torch.sigmoid(x)
def _layernorm(x, axis=-1, eps=1e-5):
    m = x.mean(dim=axis, keepdim=True)
    v = x.var(dim=axis, keepdim=True, unbiased=False)
    return (x - m) / torch.sqrt(v + eps)
def _scatter_add(tgt, idx, src, axis=0):
    return tgt.clone().index_add_(axis, idx, src)
def _segment_sum(src, seg, n):
    out = torch.zeros((n,) + src.shape[1:], dtype=src.dtype)
    return out.index_add_(0, seg, src)
def _pad(x, pw):
    flat = tuple(v for pair in reversed(pw) for v in pair)
    return torch.nn.functional.pad(x, flat)

kernel_name = 'interleave_layers__mha_block_cached__dense_activation_gelu__decode'

def setup_inputs():

    _w = (lambda a: (lambda t: t.to(torch.bfloat16) if t.is_floating_point() else t)(torch.as_tensor(a)))
    def _A_setup():
        B, Sq, D = 2, 1, 512
        H, Sk, Dh = 32, 8192, 128
        return {
            "x": _w((lambda *s: torch.randn(*s, dtype=torch.bfloat16) * 0.1)(B, Sq, D)),
            "k_cache": _w((lambda *s: torch.randn(*s, dtype=torch.bfloat16) * 0.8)(B, H, Sk, Dh)),
            "v_cache": _w((lambda *s: torch.randn(*s, dtype=torch.bfloat16) * 3.2)(B, H, Sk, Dh)),
            "wq": _w((lambda *s: torch.randn(*s, dtype=torch.bfloat16) * 0.8)(D, H * Dh) * (D ** -0.5)),
            "wo": _w((lambda *s: torch.randn(*s, dtype=torch.bfloat16) * 3.2)(H * Dh, D) * ((H * Dh) ** -0.5)),
        }
    _A_in = _A_setup()

    def _B_setup():
        B, S, D, F = 2, 1, 512, 1792
        return {
            "x": _w((lambda *s: torch.randn(*s, dtype=torch.bfloat16) * 0.1)(B, S, D)),
            "w1": _w((lambda *s: torch.randn(*s, dtype=torch.bfloat16) * 1.6)(D, F) * (D ** -0.5)),
            "b1": _w((lambda *s: torch.randn(*s, dtype=torch.bfloat16) * 1.6)(F) * 0.01),
            "w2": _w((lambda *s: torch.randn(*s, dtype=torch.bfloat16) * 0.4)(F, D) * (F ** -0.5)),
            "b2": _w((lambda *s: torch.randn(*s, dtype=torch.bfloat16) * 0.4)(D) * 0.01),
        }
    _B_in = _B_setup()

    return {
        "A_x": _A_in["x"],
        "A_k_cache": _A_in["k_cache"],
        "A_v_cache": _A_in["v_cache"],
        "A_wq": _A_in["wq"],
        "A_wo": _A_in["wo"],
        "B_x": _B_in["x"],
        "B_w1": _B_in["w1"],
        "B_b1": _B_in["b1"],
        "B_w2": _B_in["w2"],
        "B_b2": _B_in["b2"],
    }

def reference(A_x, A_k_cache, A_v_cache, A_wq, A_wo, B_x, B_w1, B_b1, B_w2, B_b2):
    def _A_ref(x, k_cache, v_cache, wq, wo):
        B, Sq, D = x.shape
        H, Dh = 32, 128
        q = (lambda x, *d: x.permute(*d))((x @ wq).reshape(B, Sq, H, Dh), 0, 2, 1, 3)
        scores = torch.einsum("bhqd,bhkd->bhqk", q, k_cache) * (Dh ** -0.5)
        p = _softmax(scores, axis=-1)
        o = torch.einsum("bhqk,bhkd->bhqd", p, v_cache)
        return (lambda x, *d: x.permute(*d))(o, 0, 2, 1, 3).reshape(B, Sq, H * Dh) @ wo

    def _B_ref(x, w1, b1, w2, b2):
        h = torch.einsum("bsd,df->bsf", x, w1) + b1
        h = _gelu(h)
        return torch.einsum("bsf,fd->bsd", h, w2) + b2

    x = A_x
    x = x + _A_ref(_layernorm(x, axis=-1), A_k_cache, A_v_cache, A_wq, A_wo)
    x = x + _B_ref(_layernorm(x, axis=-1), B_w1, B_b1, B_w2, B_b2)
    x = x + _A_ref(_layernorm(x, axis=-1), A_k_cache, A_v_cache, A_wq, A_wo)
    x = x + _B_ref(_layernorm(x, axis=-1), B_w1, B_b1, B_w2, B_b2)
    return x
```

```python
import re

REG_RE = re.compile(r'^(-|\|)?(abs\()?([vas])(\d+|\[(\d+):(\d+)\])\)?\|?$')


def parse_reg(tok):
    t = tok.strip()
    if t in ("vcc",):
        return [("s", "vcc_lo"), ("s", "vcc_hi")]
    if t == "vcc_lo" or t == "vcc_hi":
        return [("s", t)]
    if t == "exec":
        return [("s", "exec_lo"), ("s", "exec_hi")]
    if t == "m0":
        return [("s", "m0")]
    m = REG_RE.match(t)
    if not m:
        return []
    k = m.group(3)
    if m.group(5) is not None:
        return [(k, i) for i in range(int(m.group(5)), int(m.group(6)) + 1)]
    return [(k, int(m.group(4)))]


TRANS = ("v_exp_f32", "v_log_f32", "v_rcp_f32", "v_rsq_f32", "v_sqrt_f32", "v_sin_f32", "v_cos_f32")


class Ins:
    def __init__(self, text):
        self.text = text
        s = text.split(";")[0].strip()
        self.is_label = s.endswith(":") and " " not in s
        self.empty = (s == "") or s.startswith(".")
        self.op = ""
        self.ops = []
        if self.is_label or self.empty:
            self.label = s[:-1] if self.is_label else None
            return
        p = s.split(None, 1)
        self.op = p[0]
        rest = p[1] if len(p) > 1 else ""
        toks, depth, cur = [], 0, ""
        for ch in rest:
            if ch == "[":
                depth += 1
            if ch == "]":
                depth -= 1
            if ch == "," and depth == 0:
                toks.append(cur.strip()); cur = ""
            else:
                cur += ch
        if cur.strip():
            toks.append(cur.strip())
        self.mods = ""
        if toks:
            lp = toks[-1].split(None, 1)
            toks[-1] = lp[0]
            self.mods = lp[1] if len(lp) > 1 else ""
        self.ops = toks
        op = self.op
        self.mfma = op.startswith("v_mfma")
        self.valu = op.startswith("v_") and not self.mfma
        self.ds = op.startswith("ds_")
        self.vmem = op.startswith("buffer_") or op.startswith("global_")
        self.salu = op.startswith("s_")
        self.dpp = "_dpp" in op or "row_" in self.mods or "quad_perm" in self.mods
        self.permlane = op.startswith("v_permlane")
        self.rdlane = op.startswith("v_readlane") or op.startswith("v_readfirstlane")
        self.trans = any(op.startswith(t) for t in TRANS)
        self.lds_dma = self.vmem and re.search(r'\blds\b', self.mods) is not None
        regs = [parse_reg(t) for t in toks]
        self.dst, self.src = [], []
        if self.mfma:
            self.dst = regs[0]
            self.srcA, self.srcB = regs[1], regs[2]
            self.srcC = regs[3] if len(regs) > 3 else []
            self.src = self.srcA + self.srcB + self.srcC
        elif self.valu:
            if op.startswith("v_cmp"):
                self.dst = regs[0]; self.src = sum(regs[1:], [])
            elif self.permlane:
                self.dst = regs[0] + regs[1]; self.src = regs[0] + regs[1]
            elif op.startswith("v_add_co") or op.startswith("v_sub_co") or op.startswith("v_addc_co"):
                self.dst = regs[0] + regs[1]; self.src = sum(regs[2:], [])
            else:
                self.dst = regs[0]; self.src = sum(regs[1:], [])
                if op.startswith("v_fmac") or op.startswith("v_writelane") or self.dpp:
                    self.src = self.src + regs[0]
                if op.startswith("v_cndmask") and len(regs) == 3:
                    self.src = self.src + parse_reg("vcc")
        elif self.ds:
            if op.startswith("ds_read") or op.startswith("ds_bpermute") or op.startswith("ds_swizzle"):
                self.dst = regs[0]; self.src = sum(regs[1:], [])
            else:
                self.src = sum(regs, [])
        elif self.vmem:
            if "store" in op or ("atomic" in op):
                self.src = sum(regs, [])
            elif self.lds_dma:
                self.src = sum(regs, [])
            else:
                self.dst = regs[0]; self.src = sum(regs[1:], [])
        elif self.salu:
            if op.startswith("s_cmp") or op.startswith("s_cbranch") or op.startswith("s_waitcnt") or op in ("s_nop", "s_barrier", "s_branch", "s_endpgm", "s_sleep", "s_setprio"):
                self.src = sum(regs, [])
            else:
                self.dst = regs[0] if regs else []
                self.src = sum(regs[1:], [])
                if op.startswith("s_and_saveexec") or op.startswith("s_or_saveexec"):
                    self.dst = self.dst + parse_reg("exec")

    def states(self):
        if self.is_label or self.empty:
            return 0
        if self.op == "s_nop":
            return int(self.ops[0], 0) + 1
        return 1


def _isv(r):
    return r[0] in ("v", "a")


def need_states(state, ins):
    need = 0
    for p, age in state:
        req = 0
        pd = set(p.dst)
        if p.valu:
            vd = set(r for r in pd if _isv(r))
            sd = set(r for r in pd if r[0] == "s")
            if vd:
                if ins.mfma and vd & set(ins.src):
                    req = max(req, 2)
                if ins.valu and ins.dpp and vd & set(ins.src):
                    req = max(req, 2)
                if ins.permlane and vd & set(ins.src):
                    req = max(req, 2)
                if ins.rdlane and vd & set(ins.src):
                    req = max(req, 1)
                if p.trans and ins.valu and vd & set(ins.src):
                    req = max(req, 1)
            if sd:
                if ins.valu and sd & set(ins.src):
                    req = max(req, 4 if (ins.op.startswith("v_readlane") or ins.op.startswith("v_writelane")) else 2)
                if ins.vmem and sd & set(ins.src):
                    req = max(req, 5)
                if ins.mfma and sd & set(ins.src):
                    req = max(req, 2)
        if p.mfma:
            big = "32x32" in p.op
            raw = 12 if big else 8
            if ins.mfma:
                c = set(ins.srcC)
                if pd & c and c != pd:
                    req = max(req, 10 if big else 6)
                if pd & (set(ins.srcA) | set(ins.srcB)):
                    req = max(req, raw)
                if pd & set(ins.dst) and set(ins.dst) != pd:
                    req = max(req, raw)
            elif ins.valu or ins.ds or ins.vmem:
                if pd & (set(ins.src) | set(ins.dst)):
                    req = max(req, raw)
            if ins.valu and set(p.srcC) & set(ins.dst):
                req = max(req, 7 if big else 3)
        if p.salu and ("s", "m0") in pd and ins.lds_dma:
            req = max(req, 1)
        if p.vmem and "store" in p.op and ("x4" in p.op or "x3" in p.op):
            data = set(r for r in parse_reg(p.ops[0]) if _isv(r)) if p.op.startswith("buffer") else set(r for r in parse_reg(p.ops[1]) if _isv(r))
            if (ins.valu or ins.mfma) and data & set(ins.dst):
                req = max(req, 2)
            elif (ins.ds or ins.vmem) and data & set(ins.dst):
                req = max(req, 1)
        if req > age:
            need = max(need, req - age)
    return need


MAXAGE = 14


def hazard_pass(lines):
    ins = [Ins(l) for l in lines]
    inserted = 0
    for it in range(10):
        changed = False
        out = []
        at_label = getattr(hazard_pass, "_rec", {}) if it > 0 else {}
        rec = {}
        state = []
        for x in ins:
            if x.is_label:
                extra = rec.get(x.label, []) + at_label.get(x.label, [])
                state = state + extra
                out.append(x)
                continue
            if x.empty:
                out.append(x)
                continue
            n = need_states(state, x)
            if n > 0:
                nop = Ins(f"s_nop {n-1}")
                out.append(nop)
                state = [(p, a + n) for p, a in state]
                changed = True
                inserted += 1
            out.append(x)
            k = x.states()
            state = [(p, a + k) for p, a in state if a + k < MAXAGE]
            if x.valu or x.mfma or (x.salu and ("s", "m0") in x.dst) or (x.vmem and "store" in x.op):
                state.append((x, 0))
            if x.op.startswith("s_cbranch") or x.op == "s_branch":
                tgt = x.ops[0]
                rec.setdefault(tgt, [])
                rec[tgt] = rec[tgt] + [(p, a) for p, a in state]
                if x.op == "s_branch":
                    state = []
            if x.op == "s_endpgm":
                state = []
        hazard_pass._rec = rec
        ins = out
        if not changed and it > 0:
            break
    hazard_pass._rec = {}
    return [x.text for x in ins], inserted


class Asm:
    def __init__(self):
        self.lines = []
        self.nlab = 0
        self.vm_n = 0
        self.vm_tags = {}
        self.vm_done = 0
        self.lg_n = 0
        self.lg_tags = {}

    def e(self, s):
        for l in s.split("\n"):
            self.lines.append("    " + l.strip() if not l.strip().endswith(":") else l.strip())

    def c(self, s):
        self.lines.append("    ; " + s)

    def lab(self, base="L"):
        self.nlab += 1
        return f"{base}_{self.nlab}"

    def label(self, name):
        self.lines.append(name + ":")

    def vm(self, s, tag=None, cond=False):
        self.e(s)
        if not cond:
            self.vm_n += 1
            if tag is not None:
                self.vm_tags[tag] = self.vm_n

    def vm_wait(self, tag):
        n = self.vm_n - self.vm_tags[tag]
        if self.vm_tags[tag] <= self.vm_done:
            return
        assert n <= 63, (tag, n)
        self.e(f"s_waitcnt vmcnt({n})")
        self.vm_done = self.vm_tags[tag]

    def vm_wait_all(self):
        self.e("s_waitcnt vmcnt(0)")
        self.vm_done = self.vm_n

    def vm_outstanding(self):
        return self.vm_n - self.vm_done

    def ds(self, s, tag=None):
        self.e(s)
        self.lg_n += 1
        if tag is not None:
            self.lg_tags[tag] = self.lg_n

    def lg_wait(self, tag):
        n = self.lg_n - self.lg_tags[tag]
        assert n <= 15, (tag, n)
        self.e(f"s_waitcnt lgkmcnt({n})")

    def lg_wait_all(self):
        self.e("s_waitcnt lgkmcnt(0)")
```

```python
import sys, struct, os
sys.path.insert(0, os.path.dirname(os.path.abspath(__file__)))
from asmlib import Asm, hazard_pass

KNAME = "interleave_layers__mha_block_cached__dense_activation_gelu__decode_kernel"


def f2u(x):
    return struct.unpack("<I", struct.pack("<f", x))[0]


class Cfg:
    NR = 8
    NWORK = 72
    CAP = 48
    INIT_V = 24
    SPIN = 200000
    KPOL = "nt"
    VPOL = "nt"
    PROF = False
    POLL_SLEEP = 0


RING = 0
def lds_map(cfg):
    m = {}
    m["W"] = cfg.NR * 4096 * 4
    misc = m["W"] + 16384
    m["PBUF"] = misc
    m["RED"] = misc + 4608
    m["ML"] = misc + 8704
    m["XQ"] = misc + 8768
    m["QBUF"] = misc + 9536
    m["CSB"] = misc + 9792
    m["XRES"] = misc + 10304
    m["XBUF"] = misc + 10432
    m["PART"] = misc + 12480
    m["ST"] = misc + 12992
    m["CS1P"] = misc + 13056
    m["END"] = misc + 13312
    return m

BLK = 16384
LOFF = 8192
QP, QST, OP, YP, X1, X2, FP = 0, 768, 1024, 2048, 2560, 2688, 4096
PROF_OFF = 256 * BLK
NF = 112
R0 = 224

sK, sV, sWS, sW = 4, 8, 12, 16
sWQ, sWO, sW1, sW2, sB1, sB2, sOUT, sDBG, sX = 20, 22, 24, 26, 28, 30, 32, 34, 36
sWAVE, sH, sJ, sB, sC = 38, 39, 40, 41, 42
sRING, sWB, sL, sROLE, sSPIN = 43, 44, 46, 47, 48
sEX = 50
sMK = 52
sT0, sT1, sT2, sT3, sT4, sT5 = 54, 55, 56, 57, 64, 65
sM0 = 58
sCS = 60
sBLK = 61
sLT8 = 62
sKO, sVO = 66, 67
sN2 = 68
sN3 = 70
sARR = 72
sP0 = 74

vLANE, vVOFF = 0, 1
vKD = 2
vKR = 6
vM = 10
vPW, vPR = 14, 15
vQF = 16
vKF = 32
vB0, vB1, vP0, vP1 = 32, 36, 40, 44
vD = 48
vS = 56
vO = 60
vMR, vLR = 68, 69
vT0, vT1 = 70, 71

SCALE = 128 ** -0.5 * 1.4426950408889634


class Gen(Asm):
    def __init__(self, cfg):
        super().__init__()
        self.cfg = cfg
        self.L = lds_map(cfg)
        assert self.L["END"] <= 163840
        self.nstamp = 0
        self.pending = []
        self.ready = set()

    def stamp(self):
        if self.cfg.PROF and self.nstamp < 14:
            r = sP0 + 2 * self.nstamp
            self.e(f"s_memrealtime s[{r}:{r+1}]")
            self.nstamp += 1

    def srd(self, d, ptr, nbytes, add=None):
        if add is None:
            self.e(f"s_mov_b32 s{d}, s{ptr}")
            self.e(f"s_and_b32 s{d+1}, s{ptr+1}, 0xffff")
        else:
            self.e(f"s_add_u32 s{d}, s{ptr}, s{add}")
            self.e(f"s_addc_u32 s{d+1}, s{ptr+1}, 0")
            self.e(f"s_and_b32 s{d+1}, s{d+1}, 0xffff")
        self.e(f"s_mov_b32 s{d+2}, {nbytes}")
        self.e(f"s_mov_b32 s{d+3}, 0x20000")

    def bfly_row(self, op, regs, steps=(8, 4, 2, 1)):
        for st in steps:
            for r in regs:
                self.e(f"{op}_dpp v{r}, v{r}, v{r} row_ror:{st} row_mask:0xf bank_mask:0xf")

    def swap_reduce(self, op, regs, tmps, which):
        for r, t in zip(regs, tmps):
            self.e(f"v_mov_b32 v{t}, v{r}")
        for r, t in zip(regs, tmps):
            self.e(f"v_permlane{which}_swap_b32 v{t}, v{r}")
        for r, t in zip(regs, tmps):
            self.e(f"{op} v{r}, v{t}, v{r}")

    def poll_begin(self):
        l = self.lab("Lpoll")
        self.e(f"s_mov_b32 s{sSPIN}, {self.cfg.SPIN}")
        self.label(l)
        return l

    def poll_check(self, regs, tmp):
        regs = list(regs)
        if len(regs) == 1:
            self.e(f"v_cmp_eq_u32 vcc, -1, v{regs[0]}")
            return
        if len(regs) == 2:
            self.e(f"v_max_u32 v{tmp}, v{regs[0]}, v{regs[1]}")
            rest = []
        else:
            self.e(f"v_max3_u32 v{tmp}, v{regs[0]}, v{regs[1]}, v{regs[2]}")
            rest = regs[3:]
        while len(rest) >= 2:
            self.e(f"v_max3_u32 v{tmp}, v{tmp}, v{rest[0]}, v{rest[1]}")
            rest = rest[2:]
        if rest:
            self.e(f"v_max_u32 v{tmp}, v{tmp}, v{rest[0]}")
        self.e(f"v_cmp_eq_u32 vcc, -1, v{tmp}")

    def poll_end(self, l):
        ok = self.lab("Lok")
        self.e(f"s_cbranch_vccz {ok}")
        if self.cfg.POLL_SLEEP:
            self.e(f"s_sleep {self.cfg.POLL_SLEEP}")
        self.e(f"s_sub_u32 s{sSPIN}, s{sSPIN}, 1")
        self.e(f"s_cmp_lg_u32 s{sSPIN}, 0")
        self.e(f"s_cbranch_scc1 {l}")
        self.label(ok)

    def consts(self):
        L = self.L
        e = self.e
        self.c("per-lane stream constants")
        e(f"v_lshlrev_b32 v{vVOFF}, 4, v{vLANE}")
        e(f"v_and_b32 v{vT0}, 15, v{vLANE}")
        e(f"v_lshrrev_b32 v{vT1}, 4, v{vLANE}")
        for t in range(4):
            e(f"v_add_u32 v{vD}, {4*t}, v{vT1}")
            e(f"v_xor_b32 v{vD}, v{vD}, v{vT0}")
            e(f"v_lshlrev_b32 v{vD}, 4, v{vD}")
            e(f"v_lshl_add_u32 v{vKD+t}, v{vT1}, 8, v{vD}")
        for s in range(4):
            e(f"v_add_u32 v{vD}, {4*s}, v{vT1}")
            e(f"v_xor_b32 v{vD}, v{vD}, v{vT0}")
            e(f"v_lshlrev_b32 v{vD}, 4, v{vD}")
            e(f"v_lshl_add_u32 v{vD}, v{vT0}, 8, v{vD}")
            e(f"v_add_u32 v{vKR+s}, s{sRING}, v{vD}")
        e(f"v_and_b32 v{vD}, 7, v{vT0}")
        e(f"v_mov_b32 v{vD+1}, 0xffff")
        e(f"v_mov_b32 v{vD+2}, 0xffff0000")
        for jj in range(4):
            e(f"v_mov_b32 v{vM+jj}, 0")
            e(f"v_cmp_eq_u32 vcc, {2*jj}, v{vD}")
            e(f"v_cndmask_b32 v{vM+jj}, v{vM+jj}, v{vD+1}, vcc")
            e(f"v_cmp_eq_u32 vcc, {2*jj+1}, v{vD}")
            e(f"v_cndmask_b32 v{vM+jj}, v{vM+jj}, v{vD+2}, vcc")
        e(f"s_mul_i32 s{sT0}, s{sWAVE}, 1152")
        e(f"s_add_u32 s{sT0}, s{sT0}, {L['PBUF']}")
        e(f"v_and_b32 v{vD}, 1, v{vT1}")
        e(f"v_mul_u32_u24 v{vD}, 576, v{vD}")
        e(f"v_lshrrev_b32 v{vD+1}, 1, v{vT1}")
        e(f"v_lshl_add_u32 v{vD+1}, v{vT0}, 1, v{vD+1}")
        e(f"v_lshl_add_u32 v{vD}, v{vD+1}, 2, v{vD}")
        e(f"v_add_u32 v{vPW}, s{sT0}, v{vD}")
        e(f"v_lshrrev_b32 v{vD}, 3, v{vT0}")
        e(f"v_lshl_add_u32 v{vD}, v{vD}, 2, v{vT1}")
        e(f"v_mul_u32_u24 v{vD}, 144, v{vD}")
        e(f"v_add_u32 v{vPR}, s{sT0}, v{vD}")

    def vreg_of(self, blk, t, pas):
        nret = (256 - self.cfg.NWORK) // 4
        if blk == "A":
            return f"a[{4*t}:{4*t+3}]"
        if t < nret:
            r = self.cfg.NWORK + 4 * t
            return f"v[{r}:{r+3}]"
        r = 4 * (t - nret)
        return f"a[{r}:{r+3}]"

    def k_desc(self, blk, n, slot):
        return dict(kind="K", blk=blk, n=n, slot=slot, tag=("K", blk, n), need=("slot", slot, blk, n), cnt=4)

    def v_desc(self, blk, t, need=None):
        return dict(kind="V", blk=blk, t=t, tag=("V", blk, t), need=need, cnt=1)

    def issue_desc(self, d, pas):
        cfg = self.cfg
        if d["kind"] == "K":
            tile = d["n"] + (0 if d["blk"] == "A" else 16)
            self.e(f"s_add_u32 m0, s{sRING}, {d['slot']*4096}")
            self.e(f"s_mov_b32 s{sKO}, {tile*4096}")
            for t in range(4):
                self.vm(f"buffer_load_dwordx4 v{vKD+t}, s[{sK}:{sK+3}], s{sKO} offen offset:{t*1024} {cfg.KPOL} lds",
                        tag=d["tag"] if t == 3 else None)
        elif d["kind"] == "V":
            gt = d["t"] + (0 if d["blk"] == "A" else 64)
            base = (gt >> 2) * 4096
            if getattr(self, "_vo", None) != base:
                self.e(f"s_mov_b32 s{sVO}, {base}")
                self._vo = base
            self.vm(f"buffer_load_dwordx4 {self.vreg_of(d['blk'], d['t'], pas)}, v{vVOFF}, s[{sV}:{sV+3}], s{sVO} offen offset:{(gt&3)*1024} {cfg.VPOL}",
                    tag=d["tag"])
        elif d["kind"] == "F":
            d["fn"]()

    def pump(self, pas, limit=None):
        n = 0
        while self.pending:
            d = self.pending[0]
            if d["need"] is not None and d["need"] not in self.ready:
                break
            if self.vm_outstanding() + d["cnt"] > self.cfg.CAP:
                break
            if limit is not None and n + d["cnt"] > limit:
                break
            self.pending.pop(0)
            self.issue_desc(d, pas)
            n += d["cnt"]

    def force_issued(self, tag, pas):
        while tag not in self.vm_tags or self.vm_tags[tag] < 0:
            d = self.pending[0]
            assert d["need"] is None or d["need"] in self.ready, ("not ready", d, tag)
            if self.vm_outstanding() + d["cnt"] > self.cfg.CAP:
                target = self.vm_n + d["cnt"] - self.cfg.CAP
                self.e(f"s_waitcnt vmcnt({self.vm_n - target})")
                self.vm_done = max(self.vm_done, target)
            self.pending.pop(0)
            self.issue_desc(d, pas)

    def k_phase(self, tiles, pas):
        e = self.e

        def reads(i):
            blk, n, slot, resident, frees = tiles[i]
            if not resident:
                self.force_issued(("K", blk, n), pas)
                self.vm_wait(("K", blk, n))
            for s in range(4):
                self.ds(f"ds_read_b128 v[{vKF+4*s}:{vKF+4*s+3}], v{vKR+s} offset:{slot*4096}")

        def select(i):
            blk, n, slot, resident, frees = tiles[i]
            d = vD + 4 * (i & 1)
            e(f"s_lshl_b64 s[{sMK}:{sMK+1}], s[{sM0}:{sM0+1}], {n}")
            for r in range(4):
                e(f"v_cndmask_b32 v{vS+r}, v{vS+r}, v{d+r}, s[{sMK}:{sMK+1}]")

        reads(0)
        for i in range(len(tiles)):
            blk, n, slot, resident, frees = tiles[i]
            self.lg_wait_all()
            for tok in frees:
                self.ready.add(tok)
            d = vD + 4 * (i & 1)
            for s in range(4):
                c = "0" if s == 0 else f"v[{d}:{d+3}]"
                e(f"v_mfma_f32_16x16x32_bf16 v[{d}:{d+3}], v[{vKF+4*s}:{vKF+4*s+3}], v[{vQF+4*s}:{vQF+4*s+3}], {c}")
            self.pump(pas)
            if i + 1 < len(tiles):
                reads(i + 1)
            if i > 0:
                select(i - 1)
        select(len(tiles) - 1)

    def softmax(self, first):
        e = self.e
        a, b = vT0, vT1
        e(f"v_max3_f32 v{a}, v{vS}, v{vS+1}, v{vS+2}")
        e(f"v_max_f32 v{a}, v{a}, v{vS+3}")
        self.bfly_row("v_max_f32", [a])
        self.swap_reduce("v_max_f32", [a], [b], 16)
        self.swap_reduce("v_max_f32", [a], [b], 32)
        if first:
            e(f"v_mov_b32 v{vMR}, v{a}")
        else:
            e(f"v_max_f32 v{a}, v{a}, v{vMR}")
            e(f"v_sub_f32 v{b}, v{vMR}, v{a}")
            e(f"v_mul_f32 v{b}, s{sCS}, v{b}")
            e(f"v_exp_f32 v{b}, v{b}")
            e(f"v_mov_b32 v{vMR}, v{a}")
            for r in range(8):
                e(f"v_mul_f32 v{vO+r}, v{b}, v{vO+r}")
            e(f"v_mul_f32 v{vLR}, v{b}, v{vLR}")
        e(f"v_mul_f32 v{a}, s{sCS}, v{vMR}")
        for r in range(4):
            e(f"v_fma_f32 v{vS+r}, v{vS+r}, s{sCS}, -v{a}")
        for r in range(4):
            e(f"v_exp_f32 v{vS+r}, v{vS+r}")
        for r in range(4):
            e(f"v_cvt_pk_bf16_f32 v{vD+r}, v{vS+r}, v{vS+r}")
        for r in range(4):
            self.ds(f"ds_write_b32 v{vPW}, v{vD+r} offset:{r*144}")
        e(f"v_add_f32 v{vS}, v{vS}, v{vS+1}")
        e(f"v_add_f32 v{vS+2}, v{vS+2}, v{vS+3}")
        e(f"v_add_f32 v{vS}, v{vS}, v{vS+2}")
        if first:
            e(f"v_mov_b32 v{vLR}, v{vS}")
        else:
            e(f"v_add_f32 v{vLR}, v{vLR}, v{vS}")
        self.lg_wait_all()

    def v_phase(self, blk, pas, first, order, resident, frees, hooks):
        e = self.e
        groups = [order[i:i + 4] for i in range(0, len(order), 4)]
        for g in groups:
            assert g == list(range(g[0], g[0] + 4)) and g[0] % 4 == 0

        def pread(gi):
            p = vP0 if (gi & 1) == 0 else vP1
            self.ds(f"ds_read_b128 v[{p}:{p+3}], v{vPR} offset:{groups[gi][0]*4}", tag=("P", gi))

        def bbuild(pos, half):
            gi, k = pos // 4, pos % 4
            p = (vP0 if (gi & 1) == 0 else vP1) + k
            b = vB0 if (pos & 1) == 0 else vB1
            for jj in (2 * half, 2 * half + 1):
                e(f"v_and_b32 v{b+jj}, v{p}, v{vM+jj}")

        pread(0)
        self.lg_wait(("P", 0))
        if len(groups) > 1:
            pread(1)
        bbuild(0, 0); bbuild(0, 1)
        for pos, u in enumerate(order):
            if pos in hooks:
                hooks[pos]()
            b = vB0 if (pos & 1) == 0 else vB1
            nxt = pos + 1 < len(order)
            if nxt and (pos + 1) % 4 == 0:
                self.lg_wait(("P", (pos + 1) // 4))
            for half in range(2):
                t = 2 * u + half
                if not resident(t):
                    self.force_issued(("V", blk, t), pas)
                    self.vm_wait(("V", blk, t))
                if nxt:
                    bbuild(pos + 1, half)
                o = vO + 4 * half
                c = "0" if (first and pos == 0) else f"v[{o}:{o+3}]"
                e(f"v_mfma_f32_16x16x32_bf16 v[{o}:{o+3}], {self.vreg_of(blk, t, pas)}, v[{b}:{b+3}], {c}")
            if nxt and (pos + 1) % 4 == 0 and (pos + 1) // 4 + 1 < len(groups):
                pread((pos + 1) // 4 + 1)
            for tok in frees.get(u, []):
                self.ready.add(tok)
            self.pump(pas)

    def w_dma(self, vtmp, cond=False, tag=None):
        e = self.e
        e(f"v_lshrrev_b32 v{vtmp}, 1, v{vLANE}")
        e(f"v_mul_lo_u32 v{vtmp}, v{vtmp}, s{sT1}")
        e(f"v_and_b32 v{vtmp+1}, 1, v{vLANE}")
        e(f"v_lshl_add_u32 v{vtmp}, v{vtmp+1}, 4, v{vtmp}")
        e(f"s_lshl_b32 s{sT3}, s{sT1}, 5")
        for i in range(4):
            e(f"s_add_u32 m0, s{sWB}, {i*1024}")
            if i > 0:
                e(f"s_add_u32 s{sT2}, s{sT2}, s{sT3}")
            self.vm(f"buffer_load_dwordx4 v{vtmp}, s[{sW}:{sW+3}], s{sT2} offen lds", tag=tag if i == 3 else None, cond=cond)

    def w_frags(self, dst, vtmp):
        e = self.e
        e(f"v_lshrrev_b32 v{vtmp}, 4, v{vLANE}")
        e(f"v_lshlrev_b32 v{vtmp}, 3, v{vtmp}")
        e(f"v_bfe_u32 v{vtmp+1}, v{vLANE}, 2, 2")
        e(f"v_add_u32 v{vtmp}, v{vtmp}, v{vtmp+1}")
        e(f"v_lshlrev_b32 v{vtmp}, 5, v{vtmp}")
        e(f"v_and_b32 v{vtmp+1}, 3, v{vLANE}")
        e(f"v_lshl_add_u32 v{vtmp}, v{vtmp+1}, 3, v{vtmp}")
        e(f"v_add_u32 v{vtmp}, s{sWB}, v{vtmp}")
        for s in range(4):
            self.ds(f"ds_read_b64_tr_b16 v[{dst+4*s}:{dst+4*s+1}], v{vtmp} offset:{s*1024}")
            self.ds(f"ds_read_b64_tr_b16 v[{dst+4*s+2}:{dst+4*s+3}], v{vtmp} offset:{s*1024+128}")

    def set_wo(self):
        e = self.e
        self.srd(sW, sWO, 4096 * 512 * 2)
        e(f"s_mov_b32 s{sT1}, 1024")
        e(f"s_lshl_b32 s{sT2}, s{sH}, 17")
        e(f"s_lshl_b32 s{sT3}, s{sJ}, 7")
        e(f"s_add_u32 s{sT2}, s{sT2}, s{sT3}")
        e(f"s_lshl_b32 s{sT3}, s{sWAVE}, 5")
        e(f"s_add_u32 s{sT2}, s{sT2}, s{sT3}")

    def set_wq(self):
        e = self.e
        self.srd(sW, sWQ, 512 * 4096 * 2)
        e(f"s_mov_b32 s{sT1}, 8192")
        e(f"s_lshr_b32 s{sT2}, s{sJ}, 1")
        e(f"s_lshl_b32 s{sT2}, s{sT2}, 20")
        e(f"s_lshl_b32 s{sT3}, s{sH}, 8")
        e(f"s_add_u32 s{sT2}, s{sT2}, s{sT3}")
        e(f"s_and_b32 s{sT3}, s{sJ}, 1")
        e(f"s_lshl_b32 s{sT3}, s{sT3}, 7")
        e(f"s_add_u32 s{sT2}, s{sT2}, s{sT3}")
        e(f"s_lshl_b32 s{sT3}, s{sWAVE}, 5")
        e(f"s_add_u32 s{sT2}, s{sT2}, s{sT3}")

    def set_w1(self):
        e = self.e
        self.srd(sW, sW1, 512 * 1792 * 2)
        e(f"s_mov_b32 s{sT1}, 3584")
        e(f"s_mul_i32 s{sT2}, s{sWAVE}, {128*3584}")
        e(f"s_lshl_b32 s{sT3}, s2, 5")
        e(f"s_add_u32 s{sT2}, s{sT2}, s{sT3}")

    def stage1_dma(self):
        self.set_wo()
        self.w_dma(vT0, tag="wo")

    def stage2_dma(self):
        lf, lj = self.lab("Ls2"), self.lab("Ls2j")
        self.e(f"s_cmp_lt_u32 s2, {NF}")
        self.e(f"s_cbranch_scc1 {lf}")
        self.set_wq()
        self.e(f"s_branch {lj}")
        self.label(lf)
        self.set_w1()
        self.label(lj)
        self.w_dma(vT0, tag="w2nd")

    def last_block_hooks(self):
        def h0():
            L = self.L
            self.vm_wait("wo")
            self.w_frags(vQF, vT0)
            self.bfly_row("v_add_f32", [vLR])
            self.swap_reduce("v_add_f32", [vLR], [vT0], 16)
            self.swap_reduce("v_add_f32", [vLR], [vT0], 32)
            self.e(f"s_lshl_b32 s{sT0}, s{sWAVE}, 3")
            self.e(f"s_add_u32 s{sT0}, s{sT0}, {L['ML']}")
            self.e(f"v_mov_b32 v{vT0}, s{sT0}")
            self.ds(f"ds_write_b64 v{vT0}, v[{vMR}:{vMR+1}]")
            self.lg_wait_all()
            self.stage2_dma()
        return h0

    def pass1(self):
        cfg = self.cfg
        NR = cfg.NR
        assert NR == 8
        pas = 1
        self._vo = None
        kB = [("B", n, n % NR, False, [("slot", n % NR, "B", n + 8)] if n < 8 else [("slot", n % NR, "A", n)]) for n in range(16)]
        self.k_phase(kB, pas)
        self.stamp()
        self.softmax(first=True)
        self.v_phase("B", pas, True, list(range(32)), lambda t: False,
                     {31: [("tmpfree",)]}, {})
        self.stamp()
        kA = [("A", n, n % NR, False, [("slot", n % NR, "A", n - 8)]) for n in range(8, 16)] + \
             [("A", n, n, False, []) for n in range(8)]
        self.k_phase(kA, pas)
        self.stamp()
        self.softmax(first=False)
        self.v_phase("A", pas, False, list(range(32)), lambda t: False, {}, {0: self.last_block_hooks()})
        assert not self.pending, self.pending

    def pass1_list(self):
        cfg = self.cfg
        nret = (256 - cfg.NWORK) // 4
        ls = []
        ls += [self.k_desc("B", n, n) for n in range(8)]
        for d in ls:
            d["need"] = None
        ls += [self.v_desc("B", t) for t in range(cfg.INIT_V)]
        ls += [self.k_desc("B", n, n % 8) for n in range(8, 16)]
        ls += [self.v_desc("B", t) for t in range(cfg.INIT_V, 64)]
        ls += [self.k_desc("A", n, n % 8) for n in range(8, 16)]
        ls += [self.k_desc("A", n, n % 8) for n in range(0, 8)]
        ls += [dict(kind="F", fn=self.stage1_dma, need=None, cnt=4, tag="wo")]
        ntmp = 64 - nret
        ls += [self.v_desc("A", t, need=("tmpfree",) if t < ntmp else None) for t in range(64)]
        return ls

    def pass2(self):
        cfg = self.cfg
        pas = 2
        nret = (256 - cfg.NWORK) // 4
        self._vo = None
        for k in list(self.vm_tags):
            if isinstance(k, tuple) and k[0] in ("K", "V"):
                del self.vm_tags[k]
        self.vm_tags.pop("wo", None); self.vm_tags.pop("w2nd", None)
        self.ready = set()
        ls = []
        ls += [self.k_desc("A", n, n % 8) for n in range(8, 16)]
        ls += [self.k_desc("B", n, n % 8) for n in range(0, 16)]
        ls += [dict(kind="F", fn=self.stage1_dma, need=None, cnt=4, tag="wo")]
        ls += [self.v_desc("B", t, need=("afree",)) for t in range(nret, 64)]
        self.pending = ls
        kA = [("A", n, n, True, [("slot", n, "A", n + 8)]) for n in range(8)] + \
             [("A", n, n % 8, False, [("slot", n % 8, "B", n - 8)]) for n in range(8, 16)]
        self.k_phase(kA, pas)
        self.stamp()
        self.softmax(first=True)
        self.v_phase("A", pas, True, list(range(32)), lambda t: True, {31: [("afree",)]}, {})
        self.stamp()
        kB = [("B", n, n % 8, False, [("slot", n % 8, "B", n + 8)] if n < 8 else []) for n in range(16)]
        self.k_phase(kB, pas)
        self.stamp()
        self.softmax(first=False)
        self.v_phase("B", pas, False, list(range(32)), lambda t: t < nret, {}, {0: self.last_block_hooks()})
        assert not self.pending, self.pending

    def prologue(self):
        cfg, L, e = self.cfg, self.L, self.e
        e("s_cmp_ge_u32 s2, 256")
        e("s_cbranch_scc1 L_end")
        self.stamp()
        e("s_load_dwordx4 s[4:7], s[0:1], 8")
        e(f"s_load_dwordx2 s[{sX}:{sX+1}], s[0:1], 0")
        e(f"s_load_dwordx4 s[{sWQ}:{sWQ+3}], s[0:1], 24")
        e(f"s_load_dwordx2 s[{sW1}:{sW1+1}], s[0:1], 48")
        e(f"s_load_dwordx2 s[{sB1}:{sB1+1}], s[0:1], 56")
        e(f"s_load_dwordx2 s[{sW2}:{sW2+1}], s[0:1], 64")
        e(f"s_load_dwordx2 s[{sB2}:{sB2+1}], s[0:1], 72")
        e(f"s_load_dwordx4 s[{sOUT}:{sOUT+3}], s[0:1], 80")
        e(f"s_load_dwordx2 s[{sT4}:{sT4+1}], s[0:1], 96")
        e(f"v_lshrrev_b32 v{vT0}, 6, v0")
        e(f"v_and_b32 v{vLANE}, 63, v0")
        e(f"v_readfirstlane_b32 s{sWAVE}, v{vT0}")
        e(f"s_lshr_b32 s{sH}, s2, 3")
        e(f"s_and_b32 s{sJ}, s2, 7")
        e(f"s_lshr_b32 s{sB}, s{sJ}, 2")
        e(f"s_and_b32 s{sC}, s{sJ}, 3")
        e(f"s_lshl_b32 s{sBLK}, s2, 14")
        e(f"s_mov_b32 s{sL}, 0")
        e(f"s_mul_i32 s{sRING}, s{sWAVE}, {cfg.NR*4096}")
        e(f"s_lshl_b32 s{sWB}, s{sWAVE}, 12")
        e(f"s_add_u32 s{sWB}, s{sWB}, {L['W']}")
        e(f"s_mov_b32 s{sM0}, 0x00010001"); e(f"s_mov_b32 s{sM0+1}, 0x00010001")
        e(f"s_mov_b32 s{sLT8}, 0x00ff00ff"); e(f"s_mov_b32 s{sLT8+1}, 0x00ff00ff")
        e(f"s_mov_b32 s{sN2}, 0x00030003"); e(f"s_mov_b32 s{sN2+1}, 0x00030003")
        e(f"s_mov_b32 s{sN3}, 0x00070007"); e(f"s_mov_b32 s{sN3+1}, 0x00070007")
        e(f"s_mov_b32 s{sCS}, {hex(f2u(SCALE))}")
        e(f"s_lshl_b32 s{sT0}, s{sB}, 5")
        e(f"s_add_u32 s{sT0}, s{sT0}, s{sH}")
        e(f"s_lshl_b32 s{sT0}, s{sT0}, 21")
        e(f"s_lshl_b32 s{sT1}, s{sC}, 19")
        e(f"s_add_u32 s{sT0}, s{sT0}, s{sT1}")
        e(f"s_lshl_b32 s{sT1}, s{sWAVE}, 17")
        e(f"s_add_u32 s{sT0}, s{sT0}, s{sT1}")
        e("s_waitcnt lgkmcnt(0)")
        e(f"s_mov_b32 s{sT2}, s6"); e(f"s_mov_b32 s{sT3}, s7")
        self.srd(sK, 4, 131072, add=sT0)
        self.srd(sV, sT2, 131072, add=sT0)
        self.srd(sWS, sT4, 256 * BLK + (1 << 20))
        self.consts()
        self.c("clear own hand-off slots")
        for r in range(4):
            e(f"v_mov_b32 v{vD+r}, -1")
        e(f"s_lshl_b32 s{sT0}, s{sWAVE}, 10")
        e(f"s_add_u32 s{sT0}, s{sT0}, s{sBLK}")
        self.vm(f"buffer_store_dwordx4 v[{vD}:{vD+3}], v{vVOFF}, s[{sWS}:{sWS+3}], s{sT0} offen sc1")
        e(f"s_add_u32 s{sT1}, s{sT0}, {LOFF}")
        self.vm(f"buffer_store_dwordx4 v[{vD}:{vD+3}], v{vVOFF}, s[{sWS}:{sWS+3}], s{sT1} offen sc1")
        lnf = self.lab("Lnf")
        e(f"s_cmp_lt_u32 s2, {NF}")
        e(f"s_cbranch_scc0 {lnf}")
        e(f"s_add_u32 s{sT0}, s{sT0}, {FP}")
        e(f"s_add_u32 s{sT1}, s{sT1}, {FP}")
        self.vm(f"buffer_store_dwordx4 v[{vD}:{vD+3}], v{vVOFF}, s[{sWS}:{sWS+3}], s{sT0} offen sc1", cond=True)
        self.vm(f"buffer_store_dwordx4 v[{vD}:{vD+3}], v{vVOFF}, s[{sWS}:{sWS+3}], s{sT1} offen sc1", cond=True)
        self.label(lnf)
        self.c("x quarter, wq slice")
        self.srd(sW, sX, 2048)
        e(f"s_lshr_b32 s{sT0}, s{sJ}, 1")
        e(f"s_lshl_b32 s{sT0}, s{sT0}, 8")
        e(f"v_lshrrev_b32 v{vT0}, 5, v{vLANE}")
        e(f"v_lshlrev_b32 v{vT0}, 10, v{vT0}")
        e(f"v_and_b32 v{vT1}, 31, v{vLANE}")
        e(f"v_lshl_add_u32 v{vT0}, v{vT1}, 3, v{vT0}")
        self.vm(f"buffer_load_dwordx2 v[{vO}:{vO+1}], v{vT0}, s[{sW}:{sW+3}], s{sT0} offen", tag="xq")
        lnr = self.lab("Lnr")
        e(f"s_cmp_ge_u32 s2, {R0}")
        e(f"s_cbranch_scc0 {lnr}")
        e(f"s_sub_u32 s{sT0}, s2, {R0}")
        e(f"s_lshl_b32 s{sT0}, s{sT0}, 6")
        e(f"v_and_b32 v{vT0}, 7, v{vLANE}")
        e(f"v_lshlrev_b32 v{vT0}, 3, v{vT0}")
        self.vm(f"buffer_load_dwordx2 v[{vO+2}:{vO+3}], v{vT0}, s[{sW}:{sW+3}], s{sT0} offen", cond=True)
        self.label(lnr)
        self.set_wq()
        self.w_dma(vD + 6, tag="wq0")
        self.pending = self.pass1_list()
        init = []
        n = 0
        while n < 32 + cfg.INIT_V:
            d = self.pending.pop(0)
            init.append(d); n += d["cnt"]
        lw0 = self.lab("Lw0"); lj = self.lab("Lw0j")
        e(f"s_cmp_eq_u32 s{sWAVE}, 0")
        e(f"s_cbranch_scc1 {lw0}")
        save = (self.vm_n, dict(self.vm_tags), self.vm_done)
        self._vo = None
        for d in init:
            self.issue_desc(d, 1)
        self.vm_wait("wq0")
        e(f"s_branch {lj}")
        after = (self.vm_n, dict(self.vm_tags), self.vm_done)
        self.label(lw0)
        e("s_waitcnt vmcnt(0)")
        self.label(lj)
        self.init_loads = init
        self.after_init = after
        e(f"v_lshrrev_b32 v{vT0}, 5, v{vLANE}")
        e(f"v_lshlrev_b32 v{vT0}, 8, v{vT0}")
        e(f"v_and_b32 v{vT1}, 31, v{vLANE}")
        e(f"v_lshl_add_u32 v{vT0}, v{vT1}, 3, v{vT0}")
        e(f"v_add_u32 v{vT0}, {L['XQ']}, v{vT0}")
        self.ds(f"ds_write_b64 v{vT0}, v[{vO}:{vO+1}]")
        e(f"v_lshlrev_b32 v{vT1}, 3, v{vT1}")
        e(f"v_add_u32 v{vT1}, {L['XQ']+512}, v{vT1}")
        e(f"v_mov_b32 v{vD}, 0x3f803f80"); e(f"v_mov_b32 v{vD+1}, 0x3f803f80")
        self.ds(f"ds_write_b64 v{vT1}, v[{vD}:{vD+1}]")
        e(f"v_lshlrev_b32 v{vD+2}, 16, v{vO}")
        e(f"v_and_b32 v{vD+3}, 0xffff0000, v{vO}")
        e(f"v_lshlrev_b32 v{vD+4}, 16, v{vO+1}")
        e(f"v_and_b32 v{vD+5}, 0xffff0000, v{vO+1}")
        self.stats_partial(vD + 2)
        lnr2 = self.lab("Lnr2")
        e(f"s_cmp_ge_u32 s2, {R0}")
        e(f"s_cbranch_scc0 {lnr2}")
        e(f"v_lshlrev_b32 v{vD+2}, 16, v{vO+2}")
        e(f"v_and_b32 v{vD+3}, 0xffff0000, v{vO+2}")
        e(f"v_lshlrev_b32 v{vD+4}, 16, v{vO+3}")
        e(f"v_and_b32 v{vD+5}, 0xffff0000, v{vO+3}")
        e(f"v_and_b32 v{vT0}, 7, v{vLANE}")
        e(f"v_lshlrev_b32 v{vT0}, 4, v{vT0}")
        e(f"v_add_u32 v{vT0}, {L['XRES']}, v{vT0}")
        e(f"ds_write_b64 v{vT0}, v[{vD+2}:{vD+3}]")
        e(f"ds_write_b64 v{vT0}, v[{vD+4}:{vD+5}] offset:8")
        self.label(lnr2)
        self.w_frags(vKF, vT0)
        self.lg_wait_all()

    def stats_partial(self, x):
        e = self.e
        e(f"v_add_f32 v{vMR}, v{x}, v{x+1}")
        e(f"v_mul_f32 v{vLR}, v{x}, v{x}")
        e(f"v_add_f32 v{vMR}, v{vMR}, v{x+2}")
        e(f"v_fmac_f32 v{vLR}, v{x+1}, v{x+1}")
        e(f"v_add_f32 v{vMR}, v{vMR}, v{x+3}")
        e(f"v_fmac_f32 v{vLR}, v{x+2}, v{x+2}")
        e(f"v_fmac_f32 v{vLR}, v{x+3}, v{x+3}")
        self.bfly_row("v_add_f32", [vMR, vLR])
        self.swap_reduce("v_add_f32", [vMR, vLR], [vT0, vT1], 16)

    def qe(self):
        cfg, L, e = self.cfg, self.L, self.e
        self.label("L_QE")
        e("s_barrier")
        e(f"v_and_b32 v{vT0}, 15, v{vLANE}")
        e(f"v_min_u32 v{vT1}, 2, v{vT0}")
        e(f"v_lshlrev_b32 v{vT1}, 8, v{vT1}")
        e(f"v_and_b32 v{vO}, 48, v{vLANE}")
        e(f"v_add_u32 v{vT1}, v{vT1}, v{vO}")
        e(f"v_add_u32 v{vT1}, {L['XQ']}, v{vT1}")
        e(f"v_lshlrev_b32 v{vT0}, 8, v{vT0}")
        e(f"v_add_u32 v{vT0}, v{vT0}, v{vO}")
        for s in range(4):
            e(f"ds_read_b128 v[{vD+4*s}:{vD+4*s+3}], v{vT1} offset:{s*64}")
        e(f"s_lshl_b32 s{sT0}, s{sWAVE}, 6")
        e(f"s_add_u32 s{sT0}, s{sT0}, s{sBLK}")
        e(f"s_add_u32 s{sT0}, s{sT0}, s{sL}")
        e("s_waitcnt lgkmcnt(0)")
        d = vO + 4
        for s in range(4):
            c = "0" if s == 0 else f"v[{d}:{d+3}]"
            e(f"v_mfma_f32_16x16x32_bf16 v[{d}:{d+3}], v[{vKF+4*s}:{vKF+4*s+3}], v[{vD+4*s}:{vD+4*s+3}], {c}")
        e(f"s_mov_b64 s[{sEX}:{sEX+1}], exec")
        e(f"s_mov_b64 exec, s[{sN3}:{sN3+1}]")
        e(f"buffer_store_dwordx4 v[{d}:{d+3}], v{vT0}, s[{sWS}:{sWS+3}], s{sT0} offen offset:{QP} sc1")
        e(f"s_mov_b64 exec, s[{sEX}:{sEX+1}]")
        e(f"s_cmp_lg_u32 s{sWAVE}, 0")
        e("s_cbranch_scc1 L_QE_wait")
        e(f"v_lshrrev_b32 v{vT0}, 5, v{vLANE}")
        e(f"v_lshlrev_b32 v{vT0}, 3, v{vT0}")
        e(f"s_add_u32 s{sT0}, s{sBLK}, s{sL}")
        e("s_mov_b32 exec_lo, 1"); e("s_mov_b32 exec_hi, 1")
        e(f"buffer_store_dwordx2 v[{vMR}:{vMR+1}], v{vT0}, s[{sWS}:{sWS+3}], s{sT0} offen offset:{QST} sc1")
        e(f"s_mov_b64 exec, s[{sEX}:{sEX+1}]")
        l1 = self.lab("Lq1")
        e(f"s_cmp_lg_u32 s{sL}, 0")
        e(f"s_cbranch_scc1 {l1}")
        self.srd(sW, sDBG, 256)
        e(f"s_lshl_b32 s{sT1}, s{sH}, 2")
        e(f"v_mov_b32 v{vT0}, s{sT1}")
        e(f"v_mov_b32 v{vT1}, 1")
        e("s_mov_b64 exec, 1")
        e(f"buffer_atomic_add v{vT1}, v{vT0}, s[{sW}:{sW+3}], 0 offen sc1")
        e(f"s_mov_b64 exec, s[{sEX}:{sEX+1}]")
        e(f"v_and_b32 v{vT0}, 31, v{vLANE}")
        e(f"v_lshlrev_b32 v{vT0}, 2, v{vT0}")
        lp = self.poll_begin()
        e(f"buffer_load_dword v{vT1}, v{vT0}, s[{sW}:{sW+3}], 0 offen sc1")
        e("s_waitcnt vmcnt(0)")
        e(f"v_cmp_ne_u32 vcc, 8, v{vT1}")
        self.poll_end(lp)
        self.label(l1)
        e(f"v_bfe_u32 v{vT0}, v{vLANE}, 4, 1")
        e(f"v_lshrrev_b32 v{vT1}, 5, v{vLANE}")
        e(f"v_lshl_add_u32 v{vT0}, v{vT1}, 1, v{vT0}")
        e(f"v_lshlrev_b32 v{vT0}, 14, v{vT0}")
        e(f"v_and_b32 v{vT1}, 15, v{vLANE}")
        e(f"v_lshl_add_u32 v{vT0}, v{vT1}, 4, v{vT0}")
        e(f"s_lshl_b32 s{sT0}, s{sH}, 17")
        e(f"s_add_u32 s{sT0}, s{sT0}, s{sL}")
        e(f"s_lshl_b32 s{sT1}, s{sB}, 8")
        e(f"s_add_u32 s{sT1}, s{sT1}, s{sT0}")
        e(f"s_add_u32 s{sT2}, s{sT1}, {4*BLK}")
        e(f"v_and_b32 v{vT1}, 3, v{vLANE}")
        e(f"v_lshlrev_b32 v{vT1}, 15, v{vT1}")
        e(f"s_lshl_b32 s{sT3}, s{sB}, 3")
        e(f"s_add_u32 s{sT3}, s{sT3}, s{sT0}")
        lp = self.poll_begin()
        e(f"buffer_load_dwordx4 v[{vD}:{vD+3}], v{vT0}, s[{sWS}:{sWS+3}], s{sT1} offen offset:{QP} sc1")
        e(f"buffer_load_dwordx4 v[{vD+4}:{vD+7}], v{vT0}, s[{sWS}:{sWS+3}], s{sT2} offen offset:{QP} sc1")
        e(f"buffer_load_dwordx2 v[{vD+8}:{vD+9}], v{vT1}, s[{sWS}:{sWS+3}], s{sT3} offen offset:{QST} sc1")
        e("s_waitcnt vmcnt(0)")
        self.poll_check(range(vD, vD + 10), vO)
        self.poll_end(lp)
        cs = vD + 12
        l2 = self.lab("Lq2"); l3 = self.lab("Lq3")
        e(f"v_and_b32 v{vO+4}, 31, v{vLANE}")
        e(f"v_lshlrev_b32 v{vO+4}, 4, v{vO+4}")
        e(f"v_add_u32 v{vO+4}, {L['CSB']}, v{vO+4}")
        e(f"s_cmp_lg_u32 s{sL}, 0")
        e(f"s_cbranch_scc1 {l2}")
        e(f"s_add_u32 s{sT1}, s{sT0}, 512")
        e(f"s_add_u32 s{sT2}, s{sT1}, {4*BLK}")
        lp = self.poll_begin()
        e(f"buffer_load_dwordx4 v[{cs}:{cs+3}], v{vT0}, s[{sWS}:{sWS+3}], s{sT1} offen offset:{QP} sc1")
        e(f"buffer_load_dwordx4 v[{vO+6}:{vO+7}], v{vT0}, s[{sWS}:{sWS+3}], s{sT2} offen offset:{QP} sc1".replace(f"dwordx4 v[{vO+6}:{vO+7}]", f"dwordx4 v[{vKF}:{vKF+3}]"))
        e("s_waitcnt vmcnt(0)")
        self.poll_check(list(range(cs, cs + 4)) + list(range(vKF, vKF + 4)), vO + 5)
        self.poll_end(lp)
        for r in range(4):
            e(f"v_add_f32 v{cs+r}, v{cs+r}, v{vKF+r}")
        self.swap_reduce("v_add_f32", [cs + r for r in range(4)], [vKF + r for r in range(4)], 32)
        e(f"ds_write_b128 v{vO+4}, v[{cs}:{cs+3}]")
        e(f"s_branch {l3}")
        self.label(l2)
        e(f"ds_read_b128 v[{cs}:{cs+3}], v{vO+4}")
        self.label(l3)
        for r in range(4):
            e(f"v_add_f32 v{vD+r}, v{vD+r}, v{vD+4+r}")
        self.swap_reduce("v_add_f32", [vD + r for r in range(4)], [vD + 4 + r for r in range(4)], 32)
        s1, s2 = vD + 8, vD + 9
        for qp in ("[1,0,3,2]", "[2,3,0,1]"):
            for r in (s1, s2):
                e(f"v_add_f32_dpp v{r}, v{r}, v{r} quad_perm:{qp} row_mask:0xf bank_mask:0xf")
        self.mean_rstd(s1, s2, vD + 10)
        e("s_waitcnt lgkmcnt(0)")
        for r in range(4):
            e(f"v_fma_f32 v{vD+r}, -v{s1}, v{cs+r}, v{vD+r}")
        for r in range(4):
            e(f"v_mul_f32 v{vD+r}, v{s2}, v{vD+r}")
        e(f"v_cvt_pk_bf16_f32 v{vD+4}, v{vD}, v{vD+1}")
        e(f"v_cvt_pk_bf16_f32 v{vD+5}, v{vD+2}, v{vD+3}")
        e(f"v_and_b32 v{vT0}, 31, v{vLANE}")
        e(f"v_lshlrev_b32 v{vT0}, 3, v{vT0}")
        e(f"v_add_u32 v{vT0}, {L['QBUF']}, v{vT0}")
        e(f"ds_write_b64 v{vT0}, v[{vD+4}:{vD+5}]")
        self.label("L_QE_wait")
        e("s_waitcnt lgkmcnt(0)")
        e("s_barrier")
        e(f"v_and_b32 v{vT0}, 48, v{vLANE}")
        e(f"v_add_u32 v{vT0}, {L['QBUF']}, v{vT0}")
        for s in range(4):
            e(f"ds_read_b128 v[{vQF+4*s}:{vQF+4*s+3}], v{vT0} offset:{s*64}")
        e("s_waitcnt lgkmcnt(0)")
        e(f"s_cmp_lg_u32 s{sL}, 0")
        e("s_cbranch_scc1 L_PASS2")

    def mean_rstd(self, s1, s2, t):
        e = self.e
        e(f"v_mul_f32 v{s1}, {hex(f2u(1/512))}, v{s1}")
        e(f"v_mul_f32 v{s2}, {hex(f2u(1/512))}, v{s2}")
        e(f"v_fma_f32 v{s2}, -v{s1}, v{s1}, v{s2}")
        e(f"v_max_f32 v{s2}, 0, v{s2}")
        e(f"v_add_f32 v{s2}, {hex(f2u(1e-5))}, v{s2}")
        e(f"v_rsq_f32 v{s2}, v{s2}")

    def tail(self):
        cfg, L, e = self.cfg, self.L, self.e
        self.label("L_TAIL")
        t = vD
        e(f"v_and_b32 v{vT0}, 15, v{vLANE}")
        e(f"v_lshrrev_b32 v{vT1}, 3, v{vT0}")
        e(f"s_lshl_b32 s{sT0}, s{sWAVE}, 1")
        e(f"v_add_u32 v{vT1}, s{sT0}, v{vT1}")
        e(f"v_lshlrev_b32 v{vT1}, 9, v{vT1}")
        e(f"v_and_b32 v{vT0}, 7, v{vT0}")
        e(f"v_lshl_add_u32 v{vT1}, v{vT0}, 2, v{vT1}")
        e(f"v_lshrrev_b32 v{vT0}, 4, v{vLANE}")
        e(f"v_lshl_add_u32 v{vT1}, v{vT0}, 7, v{vT1}")
        e(f"v_add_u32 v{vT1}, {L['RED']}, v{vT1}")
        for r in range(4):
            e(f"v_cndmask_b32 v{t+r}, v{vO+4+r}, v{vO+r}, s[{sLT8}:{sLT8+1}]")
        for r in range(4):
            e(f"ds_write_b32 v{vT1}, v{t+r} offset:{r*32}")
        dv = 2
        e(f"s_and_b32 s{sT0}, s{sWAVE}, 1")
        e(f"s_lshl_b32 s{sT0}, s{sT0}, 8")
        e(f"v_lshlrev_b32 v{dv}, 2, v{vLANE}")
        e(f"v_add_u32 v{dv}, s{sT0}, v{dv}")
        e(f"v_add_u32 v{vT0}, {L['RED']}, v{dv}")
        e(f"v_mov_b32 v{vT1}, {L['ML']}")
        e("s_waitcnt lgkmcnt(0)")
        e("s_barrier")
        for p in range(8):
            e(f"ds_read_b32 v{t+p}, v{vT0} offset:{p*512}")
        e(f"ds_read_b128 v[{vS}:{vS+3}], v{vT1}")
        e(f"ds_read_b128 v[{vO}:{vO+3}], v{vT1} offset:16")
        e(f"s_add_u32 s{sT0}, s{sBLK}, s{sL}")
        e("s_waitcnt lgkmcnt(0)")
        m = [vS, vS + 2, vO, vO + 2]; l = [vS + 1, vS + 3, vO + 1, vO + 3]
        M = vO + 4
        e(f"v_max3_f32 v{M}, v{m[0]}, v{m[1]}, v{m[2]}")
        e(f"v_max_f32 v{M}, v{M}, v{m[3]}")
        for w in range(4):
            e(f"v_sub_f32 v{m[w]}, v{m[w]}, v{M}")
        for w in range(4):
            e(f"v_mul_f32 v{m[w]}, s{sCS}, v{m[w]}")
        for w in range(4):
            e(f"v_exp_f32 v{m[w]}, v{m[w]}")
        for w in range(4):
            e(f"v_add_f32 v{t+2*w}, v{t+2*w}, v{t+2*w+1}")
        e(f"v_mul_f32 v{t}, v{m[0]}, v{t}")
        e(f"v_mul_f32 v{M+1}, v{m[0]}, v{l[0]}")
        for w in range(1, 4):
            e(f"v_fmac_f32 v{t}, v{m[w]}, v{t+2*w}")
            e(f"v_fmac_f32 v{M+1}, v{m[w]}, v{l[w]}")
        lsk = self.lab("Lop")
        e(f"s_cmp_ge_u32 s{sWAVE}, 2")
        e(f"s_cbranch_scc1 {lsk}")
        e(f"buffer_store_dword v{t}, v{dv}, s[{sWS}:{sWS+3}], s{sT0} offen offset:{OP} sc1")
        e(f"s_cmp_lg_u32 s{sWAVE}, 0")
        e(f"s_cbranch_scc1 {lsk}")
        e(f"s_mov_b64 s[{sEX}:{sEX+1}], exec")
        e("s_mov_b64 exec, 1")
        e(f"buffer_store_dwordx2 v[{M}:{M+1}], off, s[{sWS}:{sWS+3}], s{sT0} offset:{OP+512} sc1")
        e(f"s_mov_b64 exec, s[{sEX}:{sEX+1}]")
        self.label(lsk)
        self.stamp_tail(0)
        e("s_waitcnt vmcnt(0)")
        self.w_frags(vKF, vT0)
        lnf = self.lab("Lnf")
        e(f"s_cmp_lt_u32 s2, {NF}")
        e(f"s_cbranch_scc0 {lnf}")
        e(f"v_mov_b32 v{t}, 0x3f803f80")
        for r in range(1, 4):
            e(f"v_mov_b32 v{t+r}, v{t}")
        e("s_waitcnt lgkmcnt(0)")
        for s in range(4):
            c = "0" if s == 0 else f"v[{vO}:{vO+3}]"
            e(f"v_mfma_f32_16x16x32_bf16 v[{vO}:{vO+3}], v[{vKF+4*s}:{vKF+4*s+3}], v[{t}:{t+3}], {c}")
        e(f"s_lshl_b32 s{sT0}, s{sWAVE}, 6")
        e(f"s_add_u32 s{sT0}, s{sT0}, {L['CS1P']}")
        e(f"v_and_b32 v{vT0}, 48, v{vLANE}")
        e(f"v_add_u32 v{vT0}, s{sT0}, v{vT0}")
        e(f"ds_write_b128 v{vT0}, v[{vO}:{vO+3}]")
        self.label(lnf)
        e("s_waitcnt lgkmcnt(0)")
        self.c("stage A")
        e(f"s_lshr_b32 s{sT0}, s{sWAVE}, 1")
        e(f"s_lshl_b32 s{sT0}, s{sT0}, 2")
        e(f"s_lshl_b32 s{sT1}, s{sH}, 3")
        e(f"s_add_u32 s{sT0}, s{sT0}, s{sT1}")
        e(f"s_lshl_b32 s{sT0}, s{sT0}, 14")
        e(f"s_add_u32 s{sT0}, s{sT0}, s{sL}")
        e(f"s_add_u32 s{sT1}, s{sT0}, {BLK}")
        e(f"s_add_u32 s{sT2}, s{sT0}, {2*BLK}")
        e(f"s_add_u32 s{sT3}, s{sT0}, {3*BLK}")
        so = [sT0, sT1, sT2, sT3]
        lp = self.poll_begin()
        for c in range(4):
            e(f"buffer_load_dword v{t+c}, v{dv}, s[{sWS}:{sWS+3}], s{so[c]} offen offset:{OP} sc1")
        for c in range(4):
            e(f"buffer_load_dwordx2 v[{t+4+2*c}:{t+5+2*c}], off, s[{sWS}:{sWS+3}], s{so[c]} offset:{OP+512} sc1")
        e("s_waitcnt vmcnt(0)")
        self.poll_check(range(t, t + 12), vT0)
        self.poll_end(lp)
        m = [t + 4 + 2 * c for c in range(4)]; l = [t + 5 + 2 * c for c in range(4)]
        M = vO
        e(f"v_max3_f32 v{M}, v{m[0]}, v{m[1]}, v{m[2]}")
        e(f"v_max_f32 v{M}, v{M}, v{m[3]}")
        for c in range(4):
            e(f"v_sub_f32 v{m[c]}, v{m[c]}, v{M}")
        for c in range(4):
            e(f"v_mul_f32 v{m[c]}, s{sCS}, v{m[c]}")
        for c in range(4):
            e(f"v_exp_f32 v{m[c]}, v{m[c]}")
        e(f"v_lshrrev_b32 v{vT0}, 1, v{dv}")
        e(f"s_lshr_b32 s{sT0}, s{sWAVE}, 1")
        e(f"s_lshl_b32 s{sT0}, s{sT0}, 8")
        e(f"s_add_u32 s{sT0}, s{sT0}, {L['XQ']}")
        e(f"v_add_u32 v{vT0}, s{sT0}, v{vT0}")
        e(f"v_mul_f32 v{M+1}, v{m[0]}, v{l[0]}")
        e(f"v_mul_f32 v{t}, v{m[0]}, v{t}")
        for c in range(1, 4):
            e(f"v_fmac_f32 v{M+1}, v{m[c]}, v{l[c]}")
            e(f"v_fmac_f32 v{t}, v{m[c]}, v{t+c}")
        e(f"v_rcp_f32 v{M+1}, v{M+1}")
        e(f"v_mul_f32 v{t}, v{M+1}, v{t}")
        e(f"v_cvt_pk_bf16_f32 v{t}, v{t}, v{t}")
        e(f"ds_write_b16 v{vT0}, v{t}")
        e(f"v_and_b32 v{vT0}, 15, v{vLANE}")
        e(f"v_min_u32 v{vT1}, 2, v{vT0}")
        e(f"v_lshlrev_b32 v{vT1}, 8, v{vT1}")
        e(f"v_and_b32 v{3}, 48, v{vLANE}")
        e(f"v_add_u32 v{vT1}, v{vT1}, v3")
        e(f"v_add_u32 v{vT1}, {L['XQ']}, v{vT1}")
        e(f"v_lshlrev_b32 v{vT0}, 8, v{vT0}")
        e(f"v_add_u32 v{vT0}, v{vT0}, v3")
        e(f"s_lshl_b32 s{sT0}, s{sWAVE}, 6")
        e(f"s_add_u32 s{sT0}, s{sT0}, s{sBLK}")
        e(f"s_add_u32 s{sT0}, s{sT0}, s{sL}")
        e("s_waitcnt lgkmcnt(0)")
        e("s_barrier")
        for s in range(4):
            e(f"ds_read_b128 v[{t+4*s}:{t+4*s+3}], v{vT1} offset:{s*64}")
        e("s_waitcnt lgkmcnt(0)")
        d = vO + 4
        for s in range(4):
            c = "0" if s == 0 else f"v[{d}:{d+3}]"
            e(f"v_mfma_f32_16x16x32_bf16 v[{d}:{d+3}], v[{vQF+4*s}:{vQF+4*s+3}], v[{t+4*s}:{t+4*s+3}], {c}")
        e(f"s_mov_b64 s[{sEX}:{sEX+1}], exec")
        e(f"s_mov_b64 exec, s[{sN2}:{sN2+1}]")
        e(f"buffer_store_dwordx4 v[{d}:{d+3}], v{vT0}, s[{sWS}:{sWS+3}], s{sT0} offen offset:{YP} sc1")
        e(f"s_mov_b64 exec, s[{sEX}:{sEX+1}]")
        self.stamp_tail(1)
        e(f"s_cmp_lt_u32 s2, {NF}")
        e("s_cbranch_scc1 L_FFN")
        e(f"s_cmp_ge_u32 s2, {R0}")
        e("s_cbranch_scc1 L_RED")
        e(f"s_cmp_lg_u32 s{sL}, 0")
        e("s_cbranch_scc1 L_end")
        e("s_branch L_G2")
        self.ffn()
        self.reducer()
        self.g2()

    def stamp_tail(self, k):
        if self.cfg.PROF:
            pass

    def red_reduce(self, x):
        L, e = self.L, self.e
        regs = [x + r for r in range(4)]
        self.bfly_row("v_add_f32", regs, steps=(8,))
        tm = [x + 4 + r for r in range(4)]
        self.swap_reduce("v_add_f32", regs, tm, 16)
        self.swap_reduce("v_add_f32", regs, tm, 32)
        e(f"s_lshl_b32 s{sT0}, s{sWAVE}, 7")
        e(f"s_add_u32 s{sT0}, s{sT0}, {L['PART']}")
        e(f"v_and_b32 v{vT0}, 7, v{vLANE}")
        e(f"v_lshlrev_b32 v{vT0}, 4, v{vT0}")
        e(f"v_add_u32 v{vT1}, s{sT0}, v{vT0}")
        e(f"ds_write_b128 v{vT1}, v[{x}:{x+3}]")
        e("s_waitcnt lgkmcnt(0)")
        e("s_barrier")

    def reducer(self):
        cfg, L, e = self.cfg, self.L, self.e
        self.label("L_RED")
        x = vD
        sR, sRB, sCB = sT4, sT5, 49
        e(f"s_sub_u32 s{sR}, s2, {R0}")
        e(f"s_lshr_b32 s{sRB}, s{sR}, 4")
        e(f"s_and_b32 s{sCB}, s{sR}, 15")
        self.srd(sW, sB2, 1024)
        e(f"v_and_b32 v2, 7, v{vLANE}")
        e(f"v_lshlrev_b32 v3, 3, v2")
        e(f"s_lshl_b32 s{sT0}, s{sCB}, 6")
        e(f"buffer_load_dwordx2 v[4:5], v3, s[{sW}:{sW+3}], s{sT0} offen")
        e(f"v_lshrrev_b32 v6, 3, v{vLANE}")
        e(f"v_lshlrev_b32 v7, 17, v6")
        e(f"v_lshl_add_u32 v7, v2, 4, v7")
        e(f"s_lshl_b32 s{sT0}, s{sWAVE}, 6")
        e(f"s_lshr_b32 s{sT1}, s{sCB}, 1")
        e(f"s_add_u32 s{sT0}, s{sT0}, s{sT1}")
        e(f"s_lshl_b32 s{sT0}, s{sT0}, 14")
        e(f"s_add_u32 s{sT0}, s{sT0}, s{sL}")
        e(f"s_lshl_b32 s{sT1}, s{sRB}, 8")
        e(f"s_add_u32 s{sT0}, s{sT0}, s{sT1}")
        e(f"s_and_b32 s{sT1}, s{sCB}, 1")
        e(f"s_lshl_b32 s{sT1}, s{sT1}, 7")
        e(f"s_add_u32 s{sT0}, s{sT0}, s{sT1}")
        lp = self.poll_begin()
        e(f"buffer_load_dwordx4 v[{x}:{x+3}], v7, s[{sWS}:{sWS+3}], s{sT0} offen offset:{YP} sc1")
        e("s_waitcnt vmcnt(0)")
        self.poll_check(range(x, x + 4), vT0)
        self.poll_end(lp)
        self.red_reduce(x)
        lw = self.lab("Lr1")
        e(f"s_cmp_lg_u32 s{sWAVE}, 0")
        e(f"s_cbranch_scc1 {lw}")

        def final_sum():
            e(f"v_add_u32 v{vT1}, {L['PART']}, v{vT0}")
            for w in range(4):
                e(f"ds_read_b128 v[{x+4*w}:{x+4*w+3}], v{vT1} offset:{w*128}")
            e(f"v_add_u32 v{vT0}, {L['XRES']}, v{vT0}")
            e(f"ds_read_b128 v[{vO+4}:{vO+7}], v{vT0}")
            e("s_waitcnt lgkmcnt(0)")
            for r in range(4):
                e(f"v_add_f32 v{x+r}, v{x+r}, v{x+4+r}")
                e(f"v_add_f32 v{x+8+r}, v{x+8+r}, v{x+12+r}")
            for r in range(4):
                e(f"v_add_f32 v{x+r}, v{x+r}, v{x+8+r}")
            for r in range(4):
                e(f"v_add_f32 v{x+r}, v{x+r}, v{vO+4+r}")
        final_sum()
        e(f"ds_write_b128 v{vT0}, v[{x}:{x+3}]")
        e(f"s_add_u32 s{sT0}, s{sBLK}, s{sL}")
        e(f"v_lshlrev_b32 v3, 4, v2")
        e(f"s_mov_b64 s[{sEX}:{sEX+1}], exec")
        e("s_mov_b64 exec, 0xff")
        e(f"buffer_store_dwordx4 v[{x}:{x+3}], v3, s[{sWS}:{sWS+3}], s{sT0} offen offset:{X1} sc1")
        e(f"s_mov_b64 exec, s[{sEX}:{sEX+1}]")
        self.label(lw)
        e("s_waitcnt lgkmcnt(0)")
        e("s_barrier")
        e(f"v_lshlrev_b32 v7, 14, v6")
        e(f"v_lshl_add_u32 v7, v2, 4, v7")
        e(f"s_lshl_b32 s{sT0}, s{sWAVE}, 17")
        e(f"s_add_u32 s{sT0}, s{sT0}, s{sL}")
        e(f"s_lshl_b32 s{sT1}, s{sRB}, 11")
        e(f"s_add_u32 s{sT0}, s{sT0}, s{sT1}")
        e(f"s_lshl_b32 s{sT1}, s{sCB}, 7")
        e(f"s_add_u32 s{sT0}, s{sT0}, s{sT1}")
        e(f"s_add_u32 s{sT0}, s{sT0}, {FP}")
        e(f"s_add_u32 s{sT1}, s{sT0}, {32*BLK}")
        e(f"s_add_u32 s{sT2}, s{sT0}, {64*BLK}")
        e(f"s_add_u32 s{sT3}, s{sT0}, {96*BLK}")
        for r in range(4):
            e(f"v_mov_b32 v{x+12+r}, 0")
        lp = self.poll_begin()
        l3 = self.lab("Lr3")
        for k, so in enumerate((sT0, sT1, sT2)):
            e(f"buffer_load_dwordx4 v[{x+4*k}:{x+4*k+3}], v7, s[{sWS}:{sWS+3}], s{so} offen sc1")
        e(f"s_cmp_ge_u32 s{sWAVE}, 2")
        e(f"s_cbranch_scc1 {l3}")
        e(f"buffer_load_dwordx4 v[{x+12}:{x+15}], v7, s[{sWS}:{sWS+3}], s{sT3} offen sc1")
        self.label(l3)
        e("s_waitcnt vmcnt(0)")
        self.poll_check(range(x, x + 16), vT0)
        self.poll_end(lp)
        for r in range(4):
            e(f"v_add_f32 v{x+r}, v{x+r}, v{x+4+r}")
            e(f"v_add_f32 v{x+8+r}, v{x+8+r}, v{x+12+r}")
        for r in range(4):
            e(f"v_add_f32 v{x+r}, v{x+r}, v{x+8+r}")
        self.red_reduce(x)
        lw = self.lab("Lr4")
        e(f"s_cmp_lg_u32 s{sWAVE}, 0")
        e(f"s_cbranch_scc1 {lw}")
        final_sum()
        e(f"v_lshlrev_b32 v{x+4}, 16, v4")
        e(f"v_and_b32 v{x+5}, 0xffff0000, v4")
        e(f"v_lshlrev_b32 v{x+6}, 16, v5")
        e(f"v_and_b32 v{x+7}, 0xffff0000, v5")
        for r in range(4):
            e(f"v_add_f32 v{x+r}, v{x+r}, v{x+4+r}")
        lo = self.lab("Lout")
        e(f"s_mov_b64 s[{sEX}:{sEX+1}], exec")
        e(f"s_cmp_lg_u32 s{sL}, 0")
        e(f"s_cbranch_scc1 {lo}")
        e(f"ds_write_b128 v{vT0}, v[{x}:{x+3}]")
        e(f"s_add_u32 s{sT0}, s{sBLK}, s{sL}")
        e(f"v_lshlrev_b32 v3, 4, v2")
        e("s_mov_b64 exec, 0xff")
        e(f"buffer_store_dwordx4 v[{x}:{x+3}], v3, s[{sWS}:{sWS+3}], s{sT0} offen offset:{X2} sc1")
        e(f"s_mov_b64 exec, s[{sEX}:{sEX+1}]")
        e("s_waitcnt lgkmcnt(0)")
        e("s_branch L_G2")
        self.label(lo)
        self.srd(sW, sOUT, 2048)
        e(f"v_cvt_pk_bf16_f32 v{x+4}, v{x}, v{x+1}")
        e(f"v_cvt_pk_bf16_f32 v{x+5}, v{x+2}, v{x+3}")
        e(f"s_lshl_b32 s{sT0}, s{sR}, 6")
        e(f"v_lshlrev_b32 v3, 3, v2")
        e("s_mov_b64 exec, 0xff")
        e(f"buffer_store_dwordx2 v[{x+4}:{x+5}], v3, s[{sW}:{sW+3}], s{sT0} offen")
        e("s_waitcnt vmcnt(0)")
        e("s_branch L_end")
        self.label(lw)
        e(f"s_cmp_lg_u32 s{sL}, 0")
        e("s_cbranch_scc1 L_end")
        e("s_branch L_G2")

    def ffn(self):
        cfg, L, e = self.cfg, self.L, self.e
        self.label("L_FFN")
        t = vD
        self.srd(sW, sW2, 1792 * 512 * 2)
        e(f"v_lshrrev_b32 v2, 4, v{vLANE}")
        e(f"v_lshlrev_b32 v2, 10, v2")
        e(f"v_and_b32 v3, 15, v{vLANE}")
        e(f"v_lshl_add_u32 v2, v3, 4, v2")
        e(f"s_lshl_b32 s{sT0}, s2, 14")
        e(f"s_lshl_b32 s{sT1}, s{sWAVE}, 8")
        e(f"s_add_u32 s{sT0}, s{sT0}, s{sT1}")
        for i in range(4):
            e(f"s_add_u32 m0, s{sWB}, {i*1024}")
            if i > 0:
                e(f"s_add_u32 s{sT0}, s{sT0}, 4096")
            e(f"buffer_load_dwordx4 v2, s[{sW}:{sW+3}], s{sT0} offen lds")
        self.srd(sW, sB1, 1792 * 2)
        e(f"v_lshrrev_b32 v3, 4, v{vLANE}")
        e(f"v_lshlrev_b32 v3, 3, v3")
        e(f"s_lshl_b32 s{sT0}, s2, 5")
        e(f"buffer_load_dwordx2 v[4:5], v3, s[{sW}:{sW+3}], s{sT0} offen")
        e(f"v_lshrrev_b32 v2, 4, v{vLANE}")
        e(f"v_lshlrev_b32 v2, 2, v2")
        e(f"v_bfe_u32 v3, v{vLANE}, 2, 2")
        e(f"v_add_u32 v2, v2, v3")
        e(f"v_lshlrev_b32 v2, 8, v2")
        e(f"v_and_b32 v3, 3, v{vLANE}")
        e(f"v_lshl_add_u32 v2, v3, 3, v2")
        e(f"v_add_u32 v2, s{sWB}, v2")
        e("s_waitcnt vmcnt(0)")
        for tt in range(8):
            e(f"ds_read_b64_tr_b16 v[{vQF+2*tt}:{vQF+2*tt+1}], v2 offset:{tt*32}")
        e(f"v_lshlrev_b32 v2, 16, v4")
        e(f"v_and_b32 v3, 0xffff0000, v4")
        e(f"v_lshlrev_b32 v4, 16, v5")
        e(f"v_and_b32 v5, 0xffff0000, v5")
        e(f"v_lshrrev_b32 v10, 3, v{vLANE}")
        e(f"v_lshlrev_b32 v10, 14, v10")
        e(f"v_and_b32 v11, 7, v{vLANE}")
        e(f"v_lshl_add_u32 v10, v11, 4, v10")
        e(f"s_lshl_b32 s{sT0}, s{sWAVE}, 3")
        e(f"s_add_u32 s{sT0}, s{sT0}, {R0}")
        e(f"s_lshl_b32 s{sT0}, s{sT0}, 14")
        e(f"s_add_u32 s{sT0}, s{sT0}, s{sL}")
        e(f"s_lshl_b32 s{sT1}, s{sWAVE}, 9")
        e(f"s_add_u32 s{sT1}, s{sT1}, {L['XBUF']}")
        e(f"v_lshlrev_b32 v11, 3, v{vLANE}")
        e(f"v_add_u32 v11, s{sT1}, v11")
        e(f"v_and_b32 v12, 1, v{vLANE}")
        e(f"v_lshlrev_b32 v13, 10, v12")
        e(f"v_and_b32 v14, 48, v{vLANE}")
        e(f"v_add_u32 v13, v13, v14")
        e(f"s_lshl_b32 s{sT1}, s{sWAVE}, 8")
        e(f"s_add_u32 s{sT1}, s{sT1}, {L['XBUF']}")
        e(f"v_add_u32 v13, s{sT1}, v13")
        e(f"v_lshlrev_b32 v14, 1, v14")
        e(f"v_lshl_add_u32 v14, v12, 4, v14")
        e(f"v_add_u32 v14, {L['PART']}, v14")
        e(f"s_lshl_b32 s{sT1}, s{sWAVE}, 7")
        e(f"v_add_u32 v15, s{sT1}, v14")
        e("s_waitcnt lgkmcnt(0)")
        lp = self.poll_begin()
        e(f"buffer_load_dwordx4 v[{t}:{t+3}], v10, s[{sWS}:{sWS+3}], s{sT0} offen offset:{X1} sc1")
        e("s_waitcnt vmcnt(0)")
        self.poll_check(range(t, t + 4), vT0)
        self.poll_end(lp)
        e(f"v_cvt_pk_bf16_f32 v{t+4}, v{t}, v{t+1}")
        e(f"v_cvt_pk_bf16_f32 v{t+5}, v{t+2}, v{t+3}")
        e(f"ds_write_b64 v11, v[{t+4}:{t+5}]")
        e(f"v_lshlrev_b32 v{t}, 16, v{t+4}")
        e(f"v_and_b32 v{t+1}, 0xffff0000, v{t+4}")
        e(f"v_lshlrev_b32 v{t+2}, 16, v{t+5}")
        e(f"v_and_b32 v{t+3}, 0xffff0000, v{t+5}")
        e(f"v_add_f32 v{vMR}, v{t}, v{t+1}")
        e(f"v_mul_f32 v{vLR}, v{t}, v{t}")
        e(f"v_add_f32 v{vMR}, v{vMR}, v{t+2}")
        e(f"v_fmac_f32 v{vLR}, v{t+1}, v{t+1}")
        e(f"v_add_f32 v{vMR}, v{vMR}, v{t+3}")
        e(f"v_fmac_f32 v{vLR}, v{t+2}, v{t+2}")
        e(f"v_fmac_f32 v{vLR}, v{t+3}, v{t+3}")
        e("s_waitcnt lgkmcnt(0)")
        e("s_barrier")
        for s in range(4):
            e(f"ds_read_b128 v[{t+4*s}:{t+4*s+3}], v13 offset:{s*64}")
        e(f"v_and_b32 v10, 48, v{vLANE}")
        e(f"v_add_u32 v10, {L['CS1P']}, v10")
        e(f"ds_read_b128 v[6:9], v10")
        self.bfly_row("v_add_f32", [vMR, vLR])
        self.swap_reduce("v_add_f32", [vMR, vLR], [vT0, vT1], 16)
        self.swap_reduce("v_add_f32", [vMR, vLR], [vT0, vT1], 32)
        e("s_waitcnt lgkmcnt(0)")
        d = vO + 4
        for s in range(4):
            c = "0" if s == 0 else f"v[{d}:{d+3}]"
            e(f"v_mfma_f32_16x16x32_bf16 v[{d}:{d+3}], v[{vKF+4*s}:{vKF+4*s+3}], v[{t+4*s}:{t+4*s+3}], {c}")
        e(f"s_lshl_b32 s{sT1}, s{sWAVE}, 3")
        e(f"s_add_u32 s{sT1}, s{sT1}, {L['ST']}")
        e(f"v_mov_b32 v{vT0}, s{sT1}")
        e(f"ds_write_b64 v{vT0}, v[{vMR}:{vMR+1}]")
        for w in range(1, 4):
            e(f"ds_read_b128 v[{t+4*w}:{t+4*w+3}], v10 offset:{w*64}")
        e(f"ds_write_b128 v15, v[{d}:{d+3}]")
        e("s_waitcnt lgkmcnt(0)")
        for w in range(1, 4):
            for r in range(4):
                e(f"v_add_f32 v{6+r}, v{6+r}, v{t+4*w+r}")
        e("s_barrier")
        for w in range(4):
            e(f"ds_read_b128 v[{t+4*w}:{t+4*w+3}], v14 offset:{w*128}")
        e(f"v_lshlrev_b32 v{vT0}, 4, v12")
        e(f"v_add_u32 v{vT0}, {L['ST']}, v{vT0}")
        e(f"ds_read_b128 v[{d}:{d+3}], v{vT0}")
        e("s_waitcnt lgkmcnt(0)")
        e(f"v_add_f32 v{vMR}, v{d}, v{d+2}")
        e(f"v_add_f32 v{vLR}, v{d+1}, v{d+3}")
        self.mean_rstd(vMR, vLR, None)
        for r in range(4):
            e(f"v_add_f32 v{t+r}, v{t+r}, v{t+4+r}")
            e(f"v_add_f32 v{t+8+r}, v{t+8+r}, v{t+12+r}")
        for r in range(4):
            e(f"v_add_f32 v{t+r}, v{t+r}, v{t+8+r}")
        for r in range(4):
            e(f"v_fma_f32 v{t+r}, -v{vMR}, v{6+r}, v{t+r}")
        for r in range(4):
            e(f"v_fma_f32 v{t+r}, v{vLR}, v{t+r}, v{2+r}")
        k0 = -2.0 * 0.7978845608028654 * 1.4426950408889634
        e(f"s_mov_b32 s{sT1}, {hex(f2u(0.044715))}")
        e(f"s_mov_b32 s{sT2}, {hex(f2u(k0))}")
        for r in range(4):
            e(f"v_mul_f32 v{t+4+r}, v{t+r}, v{t+r}")
        for r in range(4):
            e(f"v_fma_f32 v{t+4+r}, v{t+4+r}, s{sT1}, 1.0")
        for r in range(4):
            e(f"v_mul_f32 v{t+4+r}, v{t+4+r}, v{t+r}")
        for r in range(4):
            e(f"v_mul_f32 v{t+4+r}, s{sT2}, v{t+4+r}")
        for r in range(4):
            e(f"v_exp_f32 v{t+4+r}, v{t+4+r}")
        for r in range(4):
            e(f"v_add_f32 v{t+4+r}, 1.0, v{t+4+r}")
        for r in range(4):
            e(f"v_rcp_f32 v{t+4+r}, v{t+4+r}")
        for r in range(4):
            e(f"v_mul_f32 v{t+r}, v{t+r}, v{t+4+r}")
        e(f"v_cvt_pk_bf16_f32 v{t+8}, v{t}, v{t+1}")
        e(f"v_cvt_pk_bf16_f32 v{t+9}, v{t+2}, v{t+3}")
        e(f"v_lshlrev_b32 v10, 11, v12")
        e(f"v_bfe_u32 v11, v{vLANE}, 1, 3")
        e(f"v_lshl_add_u32 v10, v11, 6, v10")
        e(f"v_and_b32 v11, 48, v{vLANE}")
        e(f"v_add_u32 v10, v10, v11")
        e(f"s_lshl_b32 s{sT0}, s{sWAVE}, 9")
        e(f"s_add_u32 s{sT0}, s{sT0}, s{sBLK}")
        e(f"s_add_u32 s{sT0}, s{sT0}, s{sL}")
        e(f"s_add_u32 s{sT0}, s{sT0}, {FP}")
        bb = [t + 10, t + 12]
        def mk(tt):
            b = bb[tt & 1]
            e(f"s_lshl_b64 s[{sMK}:{sMK+1}], s[{sN2}:{sN2+1}], {2*tt}")
            e(f"v_cndmask_b32 v{b}, 0, v{t+8}, s[{sMK}:{sMK+1}]")
            e(f"v_cndmask_b32 v{b+1}, 0, v{t+9}, s[{sMK}:{sMK+1}]")
        mk(0)
        for tt in range(8):
            if tt + 1 < 8:
                mk(tt + 1)
            b = bb[tt & 1]
            c = "0" if tt == 0 else f"v[{d}:{d+3}]"
            e(f"v_mfma_f32_16x16x16_bf16 v[{d}:{d+3}], v[{vQF+2*tt}:{vQF+2*tt+1}], v[{b}:{b+1}], {c}")
        e(f"buffer_store_dwordx4 v[{d}:{d+3}], v10, s[{sWS}:{sWS+3}], s{sT0} offen sc1")
        e(f"s_cmp_lg_u32 s{sL}, 0")
        e("s_cbranch_scc1 L_end")
        self.set_wq()
        self.w_dma(vT0, cond=True)
        e("s_waitcnt vmcnt(0)")
        self.w_frags(vKF, vT0)
        e("s_waitcnt lgkmcnt(0)")
        e("s_branch L_G2")

    def g2(self):
        cfg, L, e = self.cfg, self.L, self.e
        self.label("L_G2")
        self.consts()
        lw = self.lab("Lg2")
        e(f"s_cmp_lg_u32 s{sWAVE}, 0")
        e(f"s_cbranch_scc1 {lw}")
        t = vD
        e(f"v_lshrrev_b32 v{vT0}, 5, v{vLANE}")
        e(f"v_lshlrev_b32 v{vT0}, 4, v{vT0}")
        e(f"v_bfe_u32 v{vT1}, v{vLANE}, 3, 2")
        e(f"v_add_u32 v{vT0}, v{vT0}, v{vT1}")
        e(f"v_lshlrev_b32 v{vT0}, 14, v{vT0}")
        e(f"v_and_b32 v{vT1}, 7, v{vLANE}")
        e(f"v_lshl_add_u32 v{vT0}, v{vT1}, 4, v{vT0}")
        e(f"s_lshr_b32 s{sT0}, s{sJ}, 1")
        e(f"s_lshl_b32 s{sT0}, s{sT0}, 2")
        e(f"s_add_u32 s{sT0}, s{sT0}, {R0}")
        e(f"s_lshl_b32 s{sT0}, s{sT0}, 14")
        e(f"v_lshrrev_b32 v{t+8}, 5, v{vLANE}")
        e(f"v_lshlrev_b32 v{t+8}, 8, v{t+8}")
        e(f"v_and_b32 v{t+9}, 31, v{vLANE}")
        e(f"v_lshl_add_u32 v{t+8}, v{t+9}, 3, v{t+8}")
        e(f"v_add_u32 v{t+8}, {L['XQ']}, v{t+8}")
        lp = self.poll_begin()
        e(f"buffer_load_dwordx4 v[{t}:{t+3}], v{vT0}, s[{sWS}:{sWS+3}], s{sT0} offen offset:{X2} sc1")
        e("s_waitcnt vmcnt(0)")
        self.poll_check(range(t, t + 4), vT1)
        self.poll_end(lp)
        e(f"v_cvt_pk_bf16_f32 v{t+4}, v{t}, v{t+1}")
        e(f"v_cvt_pk_bf16_f32 v{t+5}, v{t+2}, v{t+3}")
        e(f"ds_write_b64 v{t+8}, v[{t+4}:{t+5}]")
        e(f"v_lshlrev_b32 v{t}, 16, v{t+4}")
        e(f"v_and_b32 v{t+1}, 0xffff0000, v{t+4}")
        e(f"v_lshlrev_b32 v{t+2}, 16, v{t+5}")
        e(f"v_and_b32 v{t+3}, 0xffff0000, v{t+5}")
        self.stats_partial(t)
        self.label(lw)
        e(f"s_mov_b32 s{sL}, {LOFF}")
        e("s_waitcnt lgkmcnt(0)")
        e("s_branch L_QE")

    def build(self):
        cfg, e = self.cfg, self.e
        self.prologue()
        self.qe()
        self.label("L_PASS1")
        lj = self.lab("Lp1")
        e(f"s_cmp_lg_u32 s{sWAVE}, 0")
        e(f"s_cbranch_scc1 {lj}")
        self._vo = None
        keep = (self.vm_n, dict(self.vm_tags), self.vm_done)
        for d in self.init_loads:
            self.issue_desc(d, 1)
        self.label(lj)
        n0 = 1000
        self.vm_tags = {}
        self.vm_n = n0
        self.vm_done = n0
        for d in self.init_loads:
            self.vm_n += d["cnt"]
            self.vm_tags[d["tag"]] = self.vm_n
        self._vo = None
        self.stamp()
        self.pass1()
        self.stamp()
        e("s_branch L_TAIL")
        self.label("L_PASS2")
        self.vm_n = 5000; self.vm_done = 5000; self.vm_tags = {}
        self.stamp()
        self.pass2()
        self.stamp()
        e(f"s_mov_b32 s{sL}, {LOFF}")
        self.tail()
        self.label("L_end")
        e("s_endpgm")

    def text(self):
        cfg = self.cfg
        body, nn = hazard_pass(self.lines)
        hdr = []
        ref = open("interleave_layers__mha_block_cached__dense_activation_gelu__decode.s.ref").read().split("\n")
        for l in ref:
            if l.startswith("; @launch"):
                hdr.append("; @launch grid=(256,1,1) block=(256,1,1) lds=163840")
                break
            if l.startswith(";"):
                hdr.append(l)
        hdr += ['.amdgcn_target "amdgcn-amd-amdhsa--gfx950"', ".text", f".globl {KNAME}", ".p2align 8",
                f".type {KNAME},@function", f"{KNAME}:"]
        ftr = ['.section .rodata,"a"', ".p2align 6", f".amdhsa_kernel {KNAME}",
               "  .amdhsa_next_free_vgpr 512", "  .amdhsa_next_free_sgpr 102", "  .amdhsa_accum_offset 256",
               "  .amdhsa_group_segment_fixed_size 0", "  .amdhsa_kernarg_size 104", "  .amdhsa_user_sgpr_count 2",
               "  .amdhsa_user_sgpr_kernarg_segment_ptr 1", "  .amdhsa_system_sgpr_workgroup_id_x 1",
               ".end_amdhsa_kernel", ""]
        return "\n".join(hdr + body + ftr), nn


def generate(path, **kw):
    cfg = Cfg()
    for k, v in kw.items():
        setattr(cfg, k, v)
    g = Gen(cfg)
    g.build()
    txt, nn = g.text()
    open(path, "w").write(txt)
    return len(txt), nn, len(g.lines)


if __name__ == "__main__":
    out = sys.argv[1] if len(sys.argv) > 1 else "interleave_layers__mha_block_cached__dense_activation_gelu__decode.s"
    kw = {}
    for a in sys.argv[2:]:
        k, v = a.split("=")
        kw[k] = v if k.endswith("POL") else int(v)
    print(generate(out, **kw))
```

```python
import sys, struct, os
sys.path.insert(0, os.path.dirname(os.path.abspath(__file__)))
from asmlib import Asm, hazard_pass

KNAME = "interleave_layers__mha_block_cached__dense_activation_gelu__decode_kernel"


def f2u(x):
    return struct.unpack("<I", struct.pack("<f", x))[0]


class Cfg:
    NR = 8
    NWORK = 72
    CAP = 48
    INIT_V = 24
    CAP0 = 60
    XMAP = 1
    KRET = 0
    SPIN = 200000
    KPOL = "nt"
    VPOL = "nt"
    PROF = False
    POLL_SLEEP = 0


RING = 0
def lds_map(cfg):
    m = {}
    m["W"] = cfg.NR * 4096 * 4
    misc = m["W"] + 16384
    m["PBUF"] = misc
    m["RED"] = misc + 4608
    m["ML"] = misc + 8704
    m["XQ"] = misc + 8768
    m["QBUF"] = misc + 9536
    m["CSB"] = misc + 9792
    m["XRES"] = misc + 10304
    m["XBUF"] = misc + 10432
    m["PART"] = misc + 12480
    m["ST"] = misc + 12992
    m["CS1P"] = misc + 13056
    m["END"] = misc + 13312
    return m

BLK = 16384
LOFF = 8192
QP, QST, OP, YP, X1, X2, FP = 0, 768, 1024, 2048, 3072, 3200, 4096
PROF_OFF = 256 * BLK
NF = 112
R0 = 224

sK, sV, sWS, sW = 4, 8, 12, 16
sWQ, sWO, sW1, sW2, sB1, sB2, sOUT, sDBG, sX = 20, 22, 24, 26, 28, 30, 32, 34, 36
sWAVE, sH, sJ, sB, sC = 38, 39, 40, 41, 42
sRING, sWB, sL, sROLE, sSPIN = 43, 44, 46, 47, 48
sEX = 50
sMK = 52
sT0, sT1, sT2, sT3, sT4, sT5 = 54, 55, 56, 57, 64, 65
sM0 = 58
sCS = 60
sBLK = 61
sLT8 = 62
sKO, sVO = 66, 67
sN2 = 68
sN3 = 70
sBLKW = 72
sP0 = 74

vLANE, vVOFF = 0, 1
vKD = 2
vKR = 6
vM = 10
vPW, vPR = 14, 15
vQF = 16
vKF = 32
vB0, vB1, vP0, vP1 = 32, 36, 40, 44
vD = 48
vS = 56
vO = 60
vMR, vLR = 68, 69
vT0, vT1 = 70, 71

SCALE = 128 ** -0.5 * 1.4426950408889634


class Gen(Asm):
    def __init__(self, cfg):
        super().__init__()
        self.cfg = cfg
        self.L = lds_map(cfg)
        assert self.L["END"] <= 163840
        self.nstamp = 0
        self.pending = []
        self.ready = set()
        self.cap = cfg.CAP

    def stamp(self, sid, shared=False, last=False):
        if not self.cfg.PROF:
            return
        e = self.e
        vST = self.cfg.NWORK - 1
        if sid == 0:
            e(f"v_mov_b32 v{vST}, 0")
            e(f"s_getreg_b32 s{sP0}, hwreg(HW_REG_XCC_ID)")
            e(f"s_or_b32 s{sP0}, s{sP0}, 0x10000")
            e(f"v_writelane_b32 v{vST}, s{sP0}, 62")
            e(f"s_getreg_b32 s{sP0}, hwreg(HW_REG_HW_ID)")
            e(f"v_writelane_b32 v{vST}, s{sP0}, 61")
            e(f"s_memrealtime s[{sP0}:{sP0+1}]")
            e(f"s_mov_b32 s{sP0+2}, 0")
            return
        e("s_waitcnt lgkmcnt(0)")
        e(f"s_mov_b32 m0, s{sP0+2}")
        e("s_nop 0")
        e(f"v_writelane_b32 v{vST}, s{sP0}, m0")
        if shared:
            e(f"s_lshr_b32 s{sP0+2}, s{sL}, 8")
            e(f"s_add_u32 s{sP0+2}, s{sP0+2}, {sid}")
        else:
            e(f"s_mov_b32 s{sP0+2}, {sid}")
        e(f"s_memrealtime s[{sP0}:{sP0+1}]")
        if last:
            e("s_waitcnt lgkmcnt(0)")
            e(f"s_mov_b32 m0, s{sP0+2}")
            e("s_nop 0")
            e(f"v_writelane_b32 v{vST}, s{sP0}, m0")
            e(f"s_lshl_b32 s{sT0}, s2, 2")
            e(f"s_add_u32 s{sT0}, s{sT0}, s{sWAVE}")
            e(f"s_lshl_b32 s{sT0}, s{sT0}, 8")
            e(f"s_add_u32 s{sT0}, s{sT0}, {PROF_OFF}")
            e(f"s_mov_b64 exec, -1")
            e(f"v_lshlrev_b32 v1, 2, v0")
            e(f"buffer_store_dword v{vST}, v1, s[{sWS}:{sWS+3}], s{sT0} offen")
            e("s_waitcnt vmcnt(0)")

    def srd(self, d, ptr, nbytes, add=None):
        if add is None:
            self.e(f"s_mov_b32 s{d}, s{ptr}")
            self.e(f"s_and_b32 s{d+1}, s{ptr+1}, 0xffff")
        else:
            self.e(f"s_add_u32 s{d}, s{ptr}, s{add}")
            self.e(f"s_addc_u32 s{d+1}, s{ptr+1}, 0")
            self.e(f"s_and_b32 s{d+1}, s{d+1}, 0xffff")
        self.e(f"s_mov_b32 s{d+2}, {nbytes}")
        self.e(f"s_mov_b32 s{d+3}, 0x20000")

    def bfly_row(self, op, regs, steps=(8, 4, 2, 1)):
        for st in steps:
            for r in regs:
                self.e(f"{op}_dpp v{r}, v{r}, v{r} row_ror:{st} row_mask:0xf bank_mask:0xf")

    def swap_reduce(self, op, regs, tmps, which):
        for r, t in zip(regs, tmps):
            self.e(f"v_mov_b32 v{t}, v{r}")
        for r, t in zip(regs, tmps):
            self.e(f"v_permlane{which}_swap_b32 v{t}, v{r}")
        for r, t in zip(regs, tmps):
            self.e(f"{op} v{r}, v{t}, v{r}")

    def poll_begin(self):
        l = self.lab("Lpoll")
        self.e(f"s_mov_b32 s{sSPIN}, {self.cfg.SPIN}")
        self.label(l)
        return l

    def poll_check(self, regs, tmp):
        regs = list(regs)
        if len(regs) == 1:
            self.e(f"v_cmp_eq_u32 vcc, -1, v{regs[0]}")
            return
        if len(regs) == 2:
            self.e(f"v_max_u32 v{tmp}, v{regs[0]}, v{regs[1]}")
            rest = []
        else:
            self.e(f"v_max3_u32 v{tmp}, v{regs[0]}, v{regs[1]}, v{regs[2]}")
            rest = regs[3:]
        while len(rest) >= 2:
            self.e(f"v_max3_u32 v{tmp}, v{tmp}, v{rest[0]}, v{rest[1]}")
            rest = rest[2:]
        if rest:
            self.e(f"v_max_u32 v{tmp}, v{tmp}, v{rest[0]}")
        self.e(f"v_cmp_eq_u32 vcc, -1, v{tmp}")

    def poll_end(self, l):
        ok = self.lab("Lok")
        self.e(f"s_cbranch_vccz {ok}")
        if self.cfg.POLL_SLEEP:
            self.e(f"s_sleep {self.cfg.POLL_SLEEP}")
        self.e(f"s_sub_u32 s{sSPIN}, s{sSPIN}, 1")
        self.e(f"s_cmp_lg_u32 s{sSPIN}, 0")
        self.e(f"s_cbranch_scc1 {l}")
        self.label(ok)

    def consts(self):
        L = self.L
        e = self.e
        self.c("per-lane stream constants")
        e(f"v_lshlrev_b32 v{vVOFF}, 4, v{vLANE}")
        e(f"v_and_b32 v{vT0}, 15, v{vLANE}")
        e(f"v_lshrrev_b32 v{vT1}, 4, v{vLANE}")
        for t in range(4):
            e(f"v_add_u32 v{vD}, {4*t}, v{vT1}")
            e(f"v_xor_b32 v{vD}, v{vD}, v{vT0}")
            e(f"v_lshlrev_b32 v{vD}, 4, v{vD}")
            e(f"v_lshl_add_u32 v{vKD+t}, v{vT1}, 8, v{vD}")
        for s in range(4):
            e(f"v_add_u32 v{vD}, {4*s}, v{vT1}")
            e(f"v_xor_b32 v{vD}, v{vD}, v{vT0}")
            e(f"v_lshlrev_b32 v{vD}, 4, v{vD}")
            e(f"v_lshl_add_u32 v{vD}, v{vT0}, 8, v{vD}")
            e(f"v_add_u32 v{vKR+s}, s{sRING}, v{vD}")
        e(f"v_and_b32 v{vD}, 7, v{vT0}")
        e(f"v_mov_b32 v{vD+1}, 0xffff")
        e(f"v_mov_b32 v{vD+2}, 0xffff0000")
        for jj in range(4):
            e(f"v_mov_b32 v{vM+jj}, 0")
            e(f"v_cmp_eq_u32 vcc, {2*jj}, v{vD}")
            e(f"v_cndmask_b32 v{vM+jj}, v{vM+jj}, v{vD+1}, vcc")
            e(f"v_cmp_eq_u32 vcc, {2*jj+1}, v{vD}")
            e(f"v_cndmask_b32 v{vM+jj}, v{vM+jj}, v{vD+2}, vcc")
        e(f"s_mul_i32 s{sT0}, s{sWAVE}, 1152")
        e(f"s_add_u32 s{sT0}, s{sT0}, {L['PBUF']}")
        e(f"v_and_b32 v{vD}, 1, v{vT1}")
        e(f"v_mul_u32_u24 v{vD}, 576, v{vD}")
        e(f"v_lshrrev_b32 v{vD+1}, 1, v{vT1}")
        e(f"v_lshl_add_u32 v{vD+1}, v{vT0}, 1, v{vD+1}")
        e(f"v_lshl_add_u32 v{vD}, v{vD+1}, 2, v{vD}")
        e(f"v_add_u32 v{vPW}, s{sT0}, v{vD}")
        e(f"v_lshrrev_b32 v{vD}, 3, v{vT0}")
        e(f"v_lshl_add_u32 v{vD}, v{vD}, 2, v{vT1}")
        e(f"v_mul_u32_u24 v{vD}, 144, v{vD}")
        e(f"v_add_u32 v{vPR}, s{sT0}, v{vD}")

    def vreg_of(self, blk, t, pas):
        nret = (256 - self.cfg.NWORK) // 4
        if blk in ("A", "Q"):
            return f"a[{4*t}:{4*t+3}]"
        if t < nret:
            r = self.cfg.NWORK + 4 * t
            return f"v[{r}:{r+3}]"
        r = 4 * (t - nret)
        return f"a[{r}:{r+3}]"

    def k_desc(self, blk, n, slot):
        return dict(kind="K", blk=blk, n=n, slot=slot, tag=("K", blk, n), need=("slot", slot, blk, n), cnt=4)

    def v_desc(self, blk, t, need=None):
        return dict(kind="V", blk=blk, t=t, tag=("V", blk, t), need=need, cnt=1)

    def issue_desc(self, d, pas):
        cfg = self.cfg
        if d["kind"] == "K":
            tile = d["n"] + (0 if d["blk"] == "A" else 16)
            self.e(f"s_add_u32 m0, s{sRING}, {d['slot']*4096}")
            self.e(f"s_mov_b32 s{sKO}, {tile*4096}")
            pol = cfg.KPOL
            if d["blk"] == "A" and 8 <= d["n"] < 8 + cfg.KRET and pas == 1:
                pol = ""
            for t in range(4):
                self.vm(f"buffer_load_dwordx4 v{vKD+t}, s[{sK}:{sK+3}], s{sKO} offen offset:{t*1024} {pol} lds",
                        tag=d["tag"] if t == 3 else None)
        elif d["kind"] == "V":
            gt = d["t"] + (0 if d["blk"] == "A" else 64)
            base = (gt >> 2) * 4096
            if getattr(self, "_vo", None) != base:
                self.e(f"s_mov_b32 s{sVO}, {base}")
                self._vo = base
            self.vm(f"buffer_load_dwordx4 {self.vreg_of(d['blk'], d['t'], pas)}, v{vVOFF}, s[{sV}:{sV+3}], s{sVO} offen offset:{(gt&3)*1024} {cfg.VPOL}",
                    tag=d["tag"])
        elif d["kind"] == "Q":
            t = d["t"]
            if t > 0:
                self.e(f"s_add_u32 s{sT2}, s{sT2}, 32768")
            self.vm(f"buffer_load_dwordx4 {self.vreg_of('Q', t, pas)}, v{vT1}, s[{sW}:{sW+3}], s{sT2} offen", tag=d["tag"])
        elif d["kind"] == "F":
            d["fn"]()

    def pump(self, pas, limit=None):
        n = 0
        while self.pending:
            d = self.pending[0]
            if d["need"] is not None and d["need"] not in self.ready:
                break
            if self.vm_outstanding() + d["cnt"] > self.cap:
                break
            if limit is not None and n + d["cnt"] > limit:
                break
            self.pending.pop(0)
            self.issue_desc(d, pas)
            n += d["cnt"]

    def force_issued(self, tag, pas):
        while tag not in self.vm_tags or self.vm_tags[tag] < 0:
            d = self.pending[0]
            assert d["need"] is None or d["need"] in self.ready, ("not ready", d, tag)
            if self.vm_outstanding() + d["cnt"] > self.cap:
                target = self.vm_n + d["cnt"] - self.cap
                self.e(f"s_waitcnt vmcnt({self.vm_n - target})")
                self.vm_done = max(self.vm_done, target)
            self.pending.pop(0)
            self.issue_desc(d, pas)

    def k_phase(self, tiles, pas):
        e = self.e

        def reads(i):
            blk, n, slot, resident, frees = tiles[i]
            if not resident:
                self.force_issued(("K", blk, n), pas)
                self.vm_wait(("K", blk, n))
            for s in range(4):
                self.ds(f"ds_read_b128 v[{vKF+4*s}:{vKF+4*s+3}], v{vKR+s} offset:{slot*4096}")

        def select(i):
            blk, n, slot, resident, frees = tiles[i]
            d = vD + 4 * (i & 1)
            e(f"s_lshl_b64 s[{sMK}:{sMK+1}], s[{sM0}:{sM0+1}], {n}")
            for r in range(4):
                e(f"v_cndmask_b32 v{vS+r}, v{vS+r}, v{d+r}, s[{sMK}:{sMK+1}]")

        reads(0)
        for i in range(len(tiles)):
            blk, n, slot, resident, frees = tiles[i]
            self.lg_wait_all()
            for tok in frees:
                self.ready.add(tok)
            d = vD + 4 * (i & 1)
            for s in range(4):
                c = "0" if s == 0 else f"v[{d}:{d+3}]"
                e(f"v_mfma_f32_16x16x32_bf16 v[{d}:{d+3}], v[{vKF+4*s}:{vKF+4*s+3}], v[{vQF+4*s}:{vQF+4*s+3}], {c}")
            self.pump(pas)
            if i + 1 < len(tiles):
                reads(i + 1)
            if i > 0:
                select(i - 1)
        select(len(tiles) - 1)

    def softmax(self, first):
        e = self.e
        a, b = vT0, vT1
        e(f"v_max3_f32 v{a}, v{vS}, v{vS+1}, v{vS+2}")
        e(f"v_max_f32 v{a}, v{a}, v{vS+3}")
        self.bfly_row("v_max_f32", [a])
        self.swap_reduce("v_max_f32", [a], [b], 16)
        self.swap_reduce("v_max_f32", [a], [b], 32)
        if first:
            e(f"v_mov_b32 v{vMR}, v{a}")
        else:
            e(f"v_max_f32 v{a}, v{a}, v{vMR}")
            e(f"v_sub_f32 v{b}, v{vMR}, v{a}")
            e(f"v_mul_f32 v{b}, s{sCS}, v{b}")
            e(f"v_exp_f32 v{b}, v{b}")
            e(f"v_mov_b32 v{vMR}, v{a}")
            for r in range(8):
                e(f"v_mul_f32 v{vO+r}, v{b}, v{vO+r}")
            e(f"v_mul_f32 v{vLR}, v{b}, v{vLR}")
        e(f"v_mul_f32 v{a}, s{sCS}, v{vMR}")
        for r in range(4):
            e(f"v_fma_f32 v{vS+r}, v{vS+r}, s{sCS}, -v{a}")
        for r in range(4):
            e(f"v_exp_f32 v{vS+r}, v{vS+r}")
        for r in range(4):
            e(f"v_cvt_pk_bf16_f32 v{vD+r}, v{vS+r}, v{vS+r}")
        for r in range(4):
            self.ds(f"ds_write_b32 v{vPW}, v{vD+r} offset:{r*144}")
        e(f"v_add_f32 v{vS}, v{vS}, v{vS+1}")
        e(f"v_add_f32 v{vS+2}, v{vS+2}, v{vS+3}")
        e(f"v_add_f32 v{vS}, v{vS}, v{vS+2}")
        if first:
            e(f"v_mov_b32 v{vLR}, v{vS}")
        else:
            e(f"v_add_f32 v{vLR}, v{vLR}, v{vS}")
        self.lg_wait_all()

    def v_phase(self, blk, pas, first, order, resident, frees, hooks):
        e = self.e
        groups = [order[i:i + 4] for i in range(0, len(order), 4)]
        for g in groups:
            assert g == list(range(g[0], g[0] + 4)) and g[0] % 4 == 0

        def pread(gi):
            p = vP0 if (gi & 1) == 0 else vP1
            self.ds(f"ds_read_b128 v[{p}:{p+3}], v{vPR} offset:{groups[gi][0]*4}", tag=("P", gi))

        def bbuild(pos, half):
            gi, k = pos // 4, pos % 4
            p = (vP0 if (gi & 1) == 0 else vP1) + k
            b = vB0 if (pos & 1) == 0 else vB1
            for jj in (2 * half, 2 * half + 1):
                e(f"v_and_b32 v{b+jj}, v{p}, v{vM+jj}")

        pread(0)
        self.lg_wait(("P", 0))
        if len(groups) > 1:
            pread(1)
        bbuild(0, 0); bbuild(0, 1)
        for pos, u in enumerate(order):
            if pos in hooks:
                hooks[pos]()
            b = vB0 if (pos & 1) == 0 else vB1
            nxt = pos + 1 < len(order)
            if nxt and (pos + 1) % 4 == 0:
                self.lg_wait(("P", (pos + 1) // 4))
            for half in range(2):
                t = 2 * u + half
                if not resident(t):
                    self.force_issued(("V", blk, t), pas)
                    self.vm_wait(("V", blk, t))
                if nxt:
                    bbuild(pos + 1, half)
                o = vO + 4 * half
                c = "0" if (first and pos == 0) else f"v[{o}:{o+3}]"
                e(f"v_mfma_f32_16x16x32_bf16 v[{o}:{o+3}], {self.vreg_of(blk, t, pas)}, v[{b}:{b+3}], {c}")
            if nxt and (pos + 1) % 4 == 0 and (pos + 1) // 4 + 1 < len(groups):
                pread((pos + 1) // 4 + 1)
            for tok in frees.get(u, []):
                self.ready.add(tok)
            self.pump(pas)

    def w_dma(self, vtmp, cond=False, tag=None):
        e = self.e
        e(f"v_lshrrev_b32 v{vtmp}, 1, v{vLANE}")
        e(f"v_mul_lo_u32 v{vtmp}, v{vtmp}, s{sT1}")
        e(f"v_and_b32 v{vtmp+1}, 1, v{vLANE}")
        e(f"v_lshl_add_u32 v{vtmp}, v{vtmp+1}, 4, v{vtmp}")
        e(f"s_lshl_b32 s{sT3}, s{sT1}, 5")
        for i in range(4):
            e(f"s_add_u32 m0, s{sWB}, {i*1024}")
            if i > 0:
                e(f"s_add_u32 s{sT2}, s{sT2}, s{sT3}")
            self.vm(f"buffer_load_dwordx4 v{vtmp}, s[{sW}:{sW+3}], s{sT2} offen lds", tag=tag if i == 3 else None, cond=cond)

    def w_frags(self, dst, vtmp):
        e = self.e
        e(f"v_lshrrev_b32 v{vtmp}, 4, v{vLANE}")
        e(f"v_lshlrev_b32 v{vtmp}, 3, v{vtmp}")
        e(f"v_bfe_u32 v{vtmp+1}, v{vLANE}, 2, 2")
        e(f"v_add_u32 v{vtmp}, v{vtmp}, v{vtmp+1}")
        e(f"v_lshlrev_b32 v{vtmp}, 5, v{vtmp}")
        e(f"v_and_b32 v{vtmp+1}, 3, v{vLANE}")
        e(f"v_lshl_add_u32 v{vtmp}, v{vtmp+1}, 3, v{vtmp}")
        e(f"v_add_u32 v{vtmp}, s{sWB}, v{vtmp}")
        for s in range(4):
            self.ds(f"ds_read_b64_tr_b16 v[{dst+4*s}:{dst+4*s+1}], v{vtmp} offset:{s*1024}")
            self.ds(f"ds_read_b64_tr_b16 v[{dst+4*s+2}:{dst+4*s+3}], v{vtmp} offset:{s*1024+128}")

    def set_wo(self):
        e = self.e
        self.srd(sW, sWO, 4096 * 512 * 2)
        e(f"s_mov_b32 s{sT1}, 1024")
        e(f"s_lshl_b32 s{sT2}, s{sH}, 17")
        e(f"s_lshl_b32 s{sT3}, s{sJ}, 7")
        e(f"s_add_u32 s{sT2}, s{sT2}, s{sT3}")
        e(f"s_lshl_b32 s{sT3}, s{sWAVE}, 5")
        e(f"s_add_u32 s{sT2}, s{sT2}, s{sT3}")

    def set_wq(self):
        e = self.e
        self.srd(sW, sWQ, 512 * 4096 * 2)
        e(f"s_mov_b32 s{sT1}, 8192")
        e(f"s_lshr_b32 s{sT2}, s{sJ}, 1")
        e(f"s_lshl_b32 s{sT2}, s{sT2}, 20")
        e(f"s_lshl_b32 s{sT3}, s{sH}, 8")
        e(f"s_add_u32 s{sT2}, s{sT2}, s{sT3}")
        e(f"s_and_b32 s{sT3}, s{sJ}, 1")
        e(f"s_lshl_b32 s{sT3}, s{sT3}, 7")
        e(f"s_add_u32 s{sT2}, s{sT2}, s{sT3}")
        e(f"s_lshl_b32 s{sT3}, s{sWAVE}, 5")
        e(f"s_add_u32 s{sT2}, s{sT2}, s{sT3}")

    def set_w1(self):
        e = self.e
        self.srd(sW, sW1, 512 * 1792 * 2)
        e(f"s_mov_b32 s{sT1}, 3584")
        e(f"s_mul_i32 s{sT2}, s{sWAVE}, {128*3584}")
        e(f"s_lshl_b32 s{sT3}, s2, 5")
        e(f"s_add_u32 s{sT2}, s{sT2}, s{sT3}")

    def stage1_dma(self):
        self.set_wo()
        self.w_dma(vT0, tag="wo")

    def stage2_dma(self):
        lf, lj = self.lab("Ls2"), self.lab("Ls2j")
        self.e(f"s_cmp_lt_u32 s2, {NF}")
        self.e(f"s_cbranch_scc1 {lf}")
        self.set_wq()
        self.e(f"s_branch {lj}")
        self.label(lf)
        self.set_w1()
        self.label(lj)
        self.w_dma(vT0, tag="w2nd")

    def last_block_hooks(self, pas):
        def h0():
            if pas == 1:
                self.arrival_load()
            L = self.L
            self.vm_wait("wo")
            self.w_frags(vQF, vT0)
            self.bfly_row("v_add_f32", [vLR])
            self.swap_reduce("v_add_f32", [vLR], [vT0], 16)
            self.swap_reduce("v_add_f32", [vLR], [vT0], 32)
            self.e(f"s_lshl_b32 s{sT0}, s{sWAVE}, 3")
            self.e(f"s_add_u32 s{sT0}, s{sT0}, {L['ML']}")
            self.e(f"v_mov_b32 v{vT0}, s{sT0}")
            self.ds(f"ds_write_b64 v{vT0}, v[{vMR}:{vMR+1}]")
            self.lg_wait_all()
            self.stage2_dma()
        return h0

    def pass1(self):
        cfg = self.cfg
        NR = cfg.NR
        assert NR == 8
        pas = 1
        self._vo = None
        kB = [("B", n, n % NR, False, [("slot", n % NR, "B", n + 8)] if n < 8 else [("slot", n % NR, "A", n)]) for n in range(16)]
        self.k_phase(kB, pas)
        self.stamp(6)
        self.softmax(first=True)
        self.v_phase("B", pas, True, list(range(32)), lambda t: False,
                     {31: [("tmpfree",)]}, {})
        self.stamp(7)
        kA = [("A", n, n % NR, False, [("slot", n % NR, "A", n - 8)]) for n in range(8, 16)] + \
             [("A", n, n, False, []) for n in range(8)]
        self.k_phase(kA, pas)
        self.stamp(8)
        self.softmax(first=False)
        self.v_phase("A", pas, False, list(range(32)), lambda t: False, {}, {0: self.last_block_hooks(1)})
        assert not self.pending, self.pending
        self.arrival_check()

    def pass1_list(self):
        cfg = self.cfg
        nret = (256 - cfg.NWORK) // 4
        ls = [dict(kind="Q", t=t, tag=("V", "Q", t), need=None, cnt=1) for t in range(32)]
        k0 = [self.k_desc("B", n, n) for n in range(8)]
        for d in k0:
            d["need"] = None
        ls += k0
        vb = lambda t: self.v_desc("B", t, need=("qdone",) if t >= nret else None)
        ls += [vb(t) for t in range(cfg.INIT_V)]
        ls += [self.k_desc("B", n, n % 8) for n in range(8, 16)]
        ls += [vb(t) for t in range(cfg.INIT_V, 64)]
        ls += [self.k_desc("A", n, n % 8) for n in range(8, 16)]
        ls += [self.k_desc("A", n, n % 8) for n in range(0, 8)]
        ls += [dict(kind="F", fn=self.stage1_dma, need=None, cnt=4, tag="wo")]
        ntmp = 64 - nret
        ls += [self.v_desc("A", t, need=("tmpfree",) if t < ntmp else None) for t in range(64)]
        return ls

    def pass2(self):
        cfg = self.cfg
        pas = 2
        nret = (256 - cfg.NWORK) // 4
        self._vo = None
        for k in list(self.vm_tags):
            if isinstance(k, tuple) and k[0] in ("K", "V"):
                del self.vm_tags[k]
        self.vm_tags.pop("wo", None); self.vm_tags.pop("w2nd", None)
        self.ready = set()
        ls = []
        ls += [self.k_desc("A", n, n % 8) for n in range(8, 16)]
        ls += [self.k_desc("B", n, n % 8) for n in range(0, 16)]
        ls += [dict(kind="F", fn=self.stage1_dma, need=None, cnt=4, tag="wo")]
        ls += [self.v_desc("B", t, need=("afree",)) for t in range(nret, 64)]
        self.pending = ls
        kA = [("A", n, n, True, [("slot", n, "A", n + 8)]) for n in range(8)] + \
             [("A", n, n % 8, False, [("slot", n % 8, "B", n - 8)]) for n in range(8, 16)]
        self.k_phase(kA, pas)
        self.stamp(38)
        self.softmax(first=True)
        self.v_phase("A", pas, True, list(range(32)), lambda t: True, {31: [("afree",)]}, {})
        self.stamp(39)
        kB = [("B", n, n % 8, False, [("slot", n % 8, "B", n + 8)] if n < 8 else []) for n in range(16)]
        self.k_phase(kB, pas)
        self.stamp(40)
        self.softmax(first=False)
        self.v_phase("B", pas, False, list(range(32)), lambda t: t < nret, {}, {0: self.last_block_hooks(2)})
        assert not self.pending, self.pending

    def prologue(self):
        cfg, L, e = self.cfg, self.L, self.e
        e("s_cmp_ge_u32 s2, 256")
        e("s_cbranch_scc1 L_exit")
        self.stamp(0)
        e("s_load_dwordx4 s[4:7], s[0:1], 8")
        e(f"s_load_dwordx2 s[{sX}:{sX+1}], s[0:1], 0")
        e(f"s_load_dwordx4 s[{sWQ}:{sWQ+3}], s[0:1], 24")
        e(f"s_load_dwordx2 s[{sT4}:{sT4+1}], s[0:1], 96")
        e(f"s_load_dwordx2 s[{sW1}:{sW1+1}], s[0:1], 48")
        e(f"s_load_dwordx2 s[{sB1}:{sB1+1}], s[0:1], 56")
        e(f"s_load_dwordx2 s[{sW2}:{sW2+1}], s[0:1], 64")
        e(f"s_load_dwordx2 s[{sB2}:{sB2+1}], s[0:1], 72")
        e(f"s_load_dwordx4 s[{sOUT}:{sOUT+3}], s[0:1], 80")
        e(f"v_lshrrev_b32 v{vT0}, 6, v0")
        e(f"v_and_b32 v{vLANE}, 63, v0")
        e(f"v_readfirstlane_b32 s{sWAVE}, v{vT0}")
        if cfg.XMAP:
            e(f"s_and_b32 s{sH}, s2, 7")
            e(f"s_lshl_b32 s{sH}, s{sH}, 2")
            e(f"s_bfe_u32 s{sJ}, s2, 0x20003")
            e(f"s_add_u32 s{sH}, s{sH}, s{sJ}")
            e(f"s_lshr_b32 s{sJ}, s2, 5")
        else:
            e(f"s_lshr_b32 s{sH}, s2, 3")
            e(f"s_and_b32 s{sJ}, s2, 7")
        e(f"s_lshr_b32 s{sB}, s{sJ}, 2")
        e(f"s_and_b32 s{sC}, s{sJ}, 3")
        e(f"s_lshl_b32 s{sBLK}, s{sH}, 3")
        e(f"s_add_u32 s{sBLK}, s{sBLK}, s{sJ}")
        e(f"s_lshl_b32 s{sBLK}, s{sBLK}, 14")
        e(f"s_lshl_b32 s{sBLKW}, s2, 14")
        e(f"s_mov_b32 s{sL}, 0")
        e(f"s_mul_i32 s{sRING}, s{sWAVE}, {cfg.NR*4096}")
        e(f"s_lshl_b32 s{sWB}, s{sWAVE}, 12")
        e(f"s_add_u32 s{sWB}, s{sWB}, {L['W']}")
        e(f"s_mov_b32 s{sM0}, 0x00010001"); e(f"s_mov_b32 s{sM0+1}, 0x00010001")
        e(f"s_mov_b32 s{sLT8}, 0x00ff00ff"); e(f"s_mov_b32 s{sLT8+1}, 0x00ff00ff")
        e(f"s_mov_b32 s{sN2}, 0x00030003"); e(f"s_mov_b32 s{sN2+1}, 0x00030003")
        e(f"s_mov_b32 s{sN3}, 0x00070007"); e(f"s_mov_b32 s{sN3+1}, 0x00070007")
        e(f"s_mov_b32 s{sCS}, {hex(f2u(SCALE))}")
        e(f"s_lshl_b32 s{sT0}, s{sB}, 5")
        e(f"s_add_u32 s{sT0}, s{sT0}, s{sH}")
        e(f"s_lshl_b32 s{sT0}, s{sT0}, 21")
        e(f"s_lshl_b32 s{sT1}, s{sC}, 19")
        e(f"s_add_u32 s{sT0}, s{sT0}, s{sT1}")
        e(f"s_lshl_b32 s{sT1}, s{sWAVE}, 17")
        e(f"s_add_u32 s{sT0}, s{sT0}, s{sT1}")
        e(f"v_lshlrev_b32 v{vVOFF}, 4, v{vLANE}")
        e(f"v_lshrrev_b32 v{vT1}, 4, v{vLANE}")
        e(f"v_lshlrev_b32 v{vT1}, 13, v{vT1}")
        e(f"v_and_b32 v{vT0}, 15, v{vLANE}")
        e(f"v_lshl_add_u32 v{vT1}, v{vT0}, 4, v{vT1}")
        e(f"s_lshl_b32 s{sT2}, s{sWAVE}, 20")
        e(f"s_lshl_b32 s{sT3}, s{sH}, 8")
        e(f"s_add_u32 s{sT2}, s{sT2}, s{sT3}")
        e("s_waitcnt lgkmcnt(0)")
        e(f"s_add_u32 s{sV}, s6, s{sT0}")
        e(f"s_addc_u32 s{sV+1}, s7, 0")
        e(f"s_and_b32 s{sV+1}, s{sV+1}, 0xffff")
        e(f"s_mov_b32 s{sV+2}, 131072")
        e(f"s_mov_b32 s{sV+3}, 0x20000")
        self.srd(sK, 4, 131072, add=sT0)
        self.srd(sWS, sT4, 256 * BLK + (1 << 20))
        self.c("clear own hand-off slots")
        for r in range(4):
            e(f"v_mov_b32 v{vD+r}, -1")
        e(f"s_cmp_eq_u32 s{sWAVE}, 3")
        e(f"s_cselect_b32 s{sT1}, s{sBLKW}, s{sBLK}")
        e(f"s_lshl_b32 s{sT0}, s{sWAVE}, 10")
        e(f"s_add_u32 s{sT1}, s{sT0}, s{sT1}")
        self.vm(f"buffer_store_dwordx4 v[{vD}:{vD+3}], v{vVOFF}, s[{sWS}:{sWS+3}], s{sT1} offen sc1")
        e(f"s_add_u32 s{sT1}, s{sT1}, {LOFF}")
        self.vm(f"buffer_store_dwordx4 v[{vD}:{vD+3}], v{vVOFF}, s[{sWS}:{sWS+3}], s{sT1} offen sc1")
        lnf = self.lab("Lnf")
        e(f"s_cmp_lt_u32 s2, {NF}")
        e(f"s_cbranch_scc0 {lnf}")
        e(f"s_add_u32 s{sT0}, s{sT0}, s{sBLKW}")
        e(f"s_add_u32 s{sT0}, s{sT0}, {FP}")
        e(f"s_add_u32 s{sT1}, s{sT0}, {LOFF}")
        self.vm(f"buffer_store_dwordx4 v[{vD}:{vD+3}], v{vVOFF}, s[{sWS}:{sWS+3}], s{sT0} offen sc1", cond=True)
        self.vm(f"buffer_store_dwordx4 v[{vD}:{vD+3}], v{vVOFF}, s[{sWS}:{sWS+3}], s{sT1} offen sc1", cond=True)
        self.label(lnf)
        self.srd(sW, sX, 2048)
        lnr = self.lab("Lnr")
        e(f"s_cmp_ge_u32 s2, {R0}")
        e(f"s_cbranch_scc0 {lnr}")
        e(f"s_sub_u32 s{sT0}, s2, {R0}")
        e(f"s_lshl_b32 s{sT0}, s{sT0}, 6")
        e(f"v_and_b32 v{vT0}, 7, v{vLANE}")
        e(f"v_lshlrev_b32 v{vT0}, 3, v{vT0}")
        self.vm(f"buffer_load_dwordx2 v[{vO}:{vO+1}], v{vT0}, s[{sW}:{sW+3}], s{sT0} offen", cond=True)
        self.label(lnr)
        e(f"s_lshl_b32 s{sT0}, s{sB}, 10")
        self.vm(f"buffer_load_dwordx4 v[{vS}:{vS+3}], v{vVOFF}, s[{sW}:{sW+3}], s{sT0} offen", tag="xrow")
        self.srd(sW, sWQ, 512 * 4096 * 2)
        self.pending = self.pass1_list()
        self.cap = cfg.CAP0
        self._vo = None
        self.pump(1, limit=32)
        self.consts()
        self.pump(1)
        self.stamp(1)
        e(f"v_and_b32 v{vD}, 31, v{vLANE}")
        e(f"v_lshlrev_b32 v{vD}, 3, v{vD}")
        e(f"v_add_u32 v{vD}, {L['XQ']+512}, v{vD}")
        e(f"v_mov_b32 v{vD+2}, 0x3f803f80"); e(f"v_mov_b32 v{vD+3}, 0x3f803f80")
        self.ds(f"ds_write_b64 v{vD}, v[{vD+2}:{vD+3}]")
        self.vm_wait("xrow")
        self.stamp(3)
        x = vD
        for r in range(4):
            e(f"v_lshlrev_b32 v{x+2*r}, 16, v{vS+r}")
            e(f"v_and_b32 v{x+2*r+1}, 0xffff0000, v{vS+r}")
        e(f"v_add_f32 v{vMR}, v{x}, v{x+1}")
        e(f"v_mul_f32 v{vLR}, v{x}, v{x}")
        e(f"v_fmac_f32 v{vLR}, v{x+1}, v{x+1}")
        for r in range(2, 8):
            e(f"v_add_f32 v{vMR}, v{vMR}, v{x+r}")
            e(f"v_fmac_f32 v{vLR}, v{x+r}, v{x+r}")
        lnr2 = self.lab("Lnr2")
        e(f"s_cmp_ge_u32 s2, {R0}")
        e(f"s_cbranch_scc0 {lnr2}")
        e(f"v_lshlrev_b32 v{vO+4}, 16, v{vO}")
        e(f"v_and_b32 v{vO+5}, 0xffff0000, v{vO}")
        e(f"v_lshlrev_b32 v{vO+6}, 16, v{vO+1}")
        e(f"v_and_b32 v{vO+7}, 0xffff0000, v{vO+1}")
        e(f"v_and_b32 v{vT0}, 7, v{vLANE}")
        e(f"v_lshlrev_b32 v{vT0}, 4, v{vT0}")
        e(f"v_add_u32 v{vT0}, {L['XRES']}, v{vT0}")
        e(f"ds_write_b128 v{vT0}, v[{vO+4}:{vO+7}]")
        self.label(lnr2)
        self.bfly_row("v_add_f32", [vMR, vLR])
        self.swap_reduce("v_add_f32", [vMR, vLR], [vT0, vT1], 16)
        self.swap_reduce("v_add_f32", [vMR, vLR], [vT0, vT1], 32)
        self.mean_rstd(vMR, vLR, None)
        for r in range(8):
            e(f"v_sub_f32 v{x+r}, v{x+r}, v{vMR}")
        for r in range(8):
            e(f"v_mul_f32 v{x+r}, v{vLR}, v{x+r}")
        for r in range(8):
            e(f"v_cvt_pk_bf16_f32 v{x+r}, v{x+r}, v{x+r}")
        e(f"s_mul_i32 s{sT0}, s{sWAVE}, 1152")
        e(f"s_add_u32 s{sT0}, s{sT0}, {L['PBUF']}")
        e(f"v_and_b32 v{vT0}, 15, v{vLANE}")
        e(f"v_lshlrev_b32 v{vT0}, 2, v{vT0}")
        e(f"v_add_u32 v{vT0}, s{sT0}, v{vT0}")
        e(f"s_lshl_b32 s{sT0}, s{sWAVE}, 4")
        e(f"s_mov_b64 s[{sMK}:{sMK+1}], 0xffff")
        e(f"s_lshl_b64 s[{sMK}:{sMK+1}], s[{sMK}:{sMK+1}], s{sT0}")
        e(f"s_mov_b64 exec, s[{sMK}:{sMK+1}]")
        for r in range(8):
            self.ds(f"ds_write_b32 v{vT0}, v{x+r} offset:{r*144}")
        e("s_mov_b64 exec, -1")
        self.lg_wait_all()
        self.stamp(4)
        self.v_phase("Q", 1, True, list(range(16)), lambda t: False, {15: [("qdone",)]}, {})
        self.cap = cfg.CAP
        self.stamp(2)
        t = vS
        e(f"v_and_b32 v{vT0}, 15, v{vLANE}")
        e(f"v_lshrrev_b32 v{vT1}, 3, v{vT0}")
        e(f"s_lshl_b32 s{sT0}, s{sWAVE}, 1")
        e(f"v_add_u32 v{vT1}, s{sT0}, v{vT1}")
        e(f"v_lshlrev_b32 v{vT1}, 9, v{vT1}")
        e(f"v_and_b32 v{vT0}, 7, v{vT0}")
        e(f"v_lshl_add_u32 v{vT1}, v{vT0}, 2, v{vT1}")
        e(f"v_lshrrev_b32 v{vT0}, 4, v{vLANE}")
        e(f"v_lshl_add_u32 v{vT1}, v{vT0}, 7, v{vT1}")
        e(f"v_add_u32 v{vT1}, {L['RED']}, v{vT1}")
        for r in range(4):
            e(f"v_cndmask_b32 v{t+r}, v{vO+4+r}, v{vO+r}, s[{sLT8}:{sLT8+1}]")
        for r in range(4):
            e(f"ds_write_b32 v{vT1}, v{t+r} offset:{r*32}")
        e(f"s_and_b32 s{sT0}, s{sWAVE}, 1")
        e(f"s_lshl_b32 s{sT0}, s{sT0}, 8")
        e(f"v_lshlrev_b32 v{vT0}, 2, v{vLANE}")
        e(f"v_add_u32 v{vT0}, s{sT0}, v{vT0}")
        e(f"v_lshrrev_b32 v{vT1}, 1, v{vT0}")
        e(f"v_add_u32 v{vT1}, {L['QBUF']}, v{vT1}")
        e(f"v_add_u32 v{vT0}, {L['RED']}, v{vT0}")
        e("s_waitcnt lgkmcnt(0)")
        e("s_barrier")
        t = vD
        for p in range(8):
            e(f"ds_read_b32 v{t+p}, v{vT0} offset:{p*512}")
        la = self.lab("Larr")
        e(f"s_cmp_lg_u32 s{sWAVE}, 0")
        e(f"s_cbranch_scc1 {la}")
        self.srd(sW, sDBG, 256)
        e(f"s_lshl_b32 s{sT1}, s{sH}, 2")
        e(f"v_mov_b32 v{vS}, s{sT1}")
        e(f"v_mov_b32 v{vS+1}, 1")
        e("s_mov_b64 exec, 1")
        self.vm(f"buffer_atomic_add v{vS+1}, v{vS}, s[{sW}:{sW+3}], 0 offen sc1", cond=True)
        e("s_mov_b64 exec, -1")
        self.label(la)
        e("s_waitcnt lgkmcnt(0)")
        for p in range(0, 8, 2):
            e(f"v_add_f32 v{t+p}, v{t+p}, v{t+p+1}")
        e(f"v_add_f32 v{t}, v{t}, v{t+2}")
        e(f"v_add_f32 v{t+4}, v{t+4}, v{t+6}")
        e(f"v_add_f32 v{t}, v{t}, v{t+4}")
        e(f"v_cvt_pk_bf16_f32 v{t}, v{t}, v{t}")
        e(f"ds_write_b16 v{vT1}, v{t}")
        e(f"v_and_b32 v{vT0}, 48, v{vLANE}")
        e(f"v_add_u32 v{vT0}, {L['QBUF']}, v{vT0}")
        e("s_waitcnt lgkmcnt(0)")
        e("s_barrier")
        for s in range(4):
            e(f"ds_read_b128 v[{vQF+4*s}:{vQF+4*s+3}], v{vT0} offset:{s*64}")
        e("s_waitcnt lgkmcnt(0)")
        self.stamp(5)

    def arrival_load(self):
        e = self.e
        l = self.lab("Lal")
        e(f"s_cmp_lg_u32 s{sWAVE}, 0")
        e(f"s_cbranch_scc1 {l}")
        self.srd(sW, sDBG, 256)
        e(f"v_and_b32 v{vS+1}, 31, v{vLANE}")
        e(f"v_lshlrev_b32 v{vS+1}, 2, v{vS+1}")
        self.vm(f"buffer_load_dword v{vS}, v{vS+1}, s[{sW}:{sW+3}], 0 offen sc1", cond=True)
        self.label(l)

    def arrival_check(self):
        e = self.e
        l = self.lab("Lac")
        e(f"s_cmp_lg_u32 s{sWAVE}, 0")
        e(f"s_cbranch_scc1 {l}")
        e("s_waitcnt vmcnt(0)")
        e(f"v_cmp_gt_u32 vcc, 8, v{vS}")
        e(f"s_cbranch_vccz {l}")
        self.srd(sW, sDBG, 256)
        lp = self.poll_begin()
        e(f"buffer_load_dword v{vS}, v{vS+1}, s[{sW}:{sW+3}], 0 offen sc1")
        e("s_waitcnt vmcnt(0)")
        e(f"v_cmp_gt_u32 vcc, 8, v{vS}")
        self.poll_end(lp)
        self.label(l)

    def stats_partial(self, x):
        e = self.e
        e(f"v_add_f32 v{vMR}, v{x}, v{x+1}")
        e(f"v_mul_f32 v{vLR}, v{x}, v{x}")
        e(f"v_add_f32 v{vMR}, v{vMR}, v{x+2}")
        e(f"v_fmac_f32 v{vLR}, v{x+1}, v{x+1}")
        e(f"v_add_f32 v{vMR}, v{vMR}, v{x+3}")
        e(f"v_fmac_f32 v{vLR}, v{x+2}, v{x+2}")
        e(f"v_fmac_f32 v{vLR}, v{x+3}, v{x+3}")
        self.bfly_row("v_add_f32", [vMR, vLR])
        self.swap_reduce("v_add_f32", [vMR, vLR], [vT0, vT1], 16)

    def qe(self):
        cfg, L, e = self.cfg, self.L, self.e
        self.label("L_QE")
        e("s_barrier")
        self.stamp(34)
        e(f"v_and_b32 v{vT0}, 15, v{vLANE}")
        e(f"v_min_u32 v{vT1}, 2, v{vT0}")
        e(f"v_lshlrev_b32 v{vT1}, 8, v{vT1}")
        e(f"v_and_b32 v{vO}, 48, v{vLANE}")
        e(f"v_add_u32 v{vT1}, v{vT1}, v{vO}")
        e(f"v_add_u32 v{vT1}, {L['XQ']}, v{vT1}")
        e(f"v_lshlrev_b32 v{vT0}, 8, v{vT0}")
        e(f"v_add_u32 v{vT0}, v{vT0}, v{vO}")
        for s in range(4):
            e(f"ds_read_b128 v[{vD+4*s}:{vD+4*s+3}], v{vT1} offset:{s*64}")
        e(f"s_lshl_b32 s{sT0}, s{sWAVE}, 6")
        e(f"s_add_u32 s{sT0}, s{sT0}, s{sBLK}")
        e(f"s_add_u32 s{sT0}, s{sT0}, s{sL}")
        e("s_waitcnt lgkmcnt(0)")
        d = vO + 4
        for s in range(4):
            c = "0" if s == 0 else f"v[{d}:{d+3}]"
            e(f"v_mfma_f32_16x16x32_bf16 v[{d}:{d+3}], v[{vKF+4*s}:{vKF+4*s+3}], v[{vD+4*s}:{vD+4*s+3}], {c}")
        e(f"s_mov_b64 exec, s[{sN3}:{sN3+1}]")
        e(f"buffer_store_dwordx4 v[{d}:{d+3}], v{vT0}, s[{sWS}:{sWS+3}], s{sT0} offen offset:{QP} sc1")
        e("s_mov_b64 exec, -1")
        e(f"s_cmp_lg_u32 s{sWAVE}, 0")
        e("s_cbranch_scc1 L_QE_wait")
        e(f"v_lshrrev_b32 v{vT0}, 5, v{vLANE}")
        e(f"v_lshlrev_b32 v{vT0}, 3, v{vT0}")
        e(f"s_add_u32 s{sT0}, s{sBLK}, s{sL}")
        e("s_mov_b32 exec_lo, 1"); e("s_mov_b32 exec_hi, 1")
        e(f"buffer_store_dwordx2 v[{vMR}:{vMR+1}], v{vT0}, s[{sWS}:{sWS+3}], s{sT0} offen offset:{QST} sc1")
        e("s_mov_b64 exec, -1")
        e(f"v_bfe_u32 v{vT0}, v{vLANE}, 4, 1")
        e(f"v_lshrrev_b32 v{vT1}, 5, v{vLANE}")
        e(f"v_lshl_add_u32 v{vT0}, v{vT1}, 1, v{vT0}")
        e(f"v_lshlrev_b32 v{vT0}, 14, v{vT0}")
        e(f"v_and_b32 v{vT1}, 15, v{vLANE}")
        e(f"v_lshl_add_u32 v{vT0}, v{vT1}, 4, v{vT0}")
        e(f"s_lshl_b32 s{sT0}, s{sH}, 17")
        e(f"s_add_u32 s{sT0}, s{sT0}, s{sL}")
        e(f"s_lshl_b32 s{sT1}, s{sB}, 8")
        e(f"s_add_u32 s{sT1}, s{sT1}, s{sT0}")
        e(f"s_add_u32 s{sT2}, s{sT1}, {4*BLK}")
        e(f"v_and_b32 v{vT1}, 3, v{vLANE}")
        e(f"v_lshlrev_b32 v{vT1}, 15, v{vT1}")
        e(f"s_lshl_b32 s{sT3}, s{sB}, 3")
        e(f"s_add_u32 s{sT3}, s{sT3}, s{sT0}")
        e(f"s_add_u32 s{sT4}, s{sT0}, 512")
        e(f"s_add_u32 s{sT5}, s{sT4}, {4*BLK}")
        cs = vD + 12
        lp = self.poll_begin()
        e(f"buffer_load_dwordx4 v[{vD}:{vD+3}], v{vT0}, s[{sWS}:{sWS+3}], s{sT1} offen offset:{QP} sc1")
        e(f"buffer_load_dwordx4 v[{vD+4}:{vD+7}], v{vT0}, s[{sWS}:{sWS+3}], s{sT2} offen offset:{QP} sc1")
        e(f"buffer_load_dwordx2 v[{vD+8}:{vD+9}], v{vT1}, s[{sWS}:{sWS+3}], s{sT3} offen offset:{QST} sc1")
        e(f"buffer_load_dwordx4 v[{cs}:{cs+3}], v{vT0}, s[{sWS}:{sWS+3}], s{sT4} offen offset:{QP} sc1")
        e(f"buffer_load_dwordx4 v[{vKF}:{vKF+3}], v{vT0}, s[{sWS}:{sWS+3}], s{sT5} offen offset:{QP} sc1")
        e("s_waitcnt vmcnt(0)")
        self.poll_check(list(range(vD, vD + 10)) + list(range(cs, cs + 4)) + list(range(vKF, vKF + 4)), vKF + 4)
        self.poll_end(lp)
        self.stamp(36)
        for r in range(4):
            e(f"v_add_f32 v{cs+r}, v{cs+r}, v{vKF+r}")
            e(f"v_add_f32 v{vD+r}, v{vD+r}, v{vD+4+r}")
        self.swap_reduce("v_add_f32", [cs + r for r in range(4)] + [vD + r for r in range(4)],
                         [vKF + r for r in range(4)] + [vD + 4 + r for r in range(4)], 32)
        s1, s2 = vD + 8, vD + 9
        for qp in ("[1,0,3,2]", "[2,3,0,1]"):
            for r in (s1, s2):
                e(f"v_add_f32_dpp v{r}, v{r}, v{r} quad_perm:{qp} row_mask:0xf bank_mask:0xf")
        self.mean_rstd(s1, s2, vD + 10)
        for r in range(4):
            e(f"v_fma_f32 v{vD+r}, -v{s1}, v{cs+r}, v{vD+r}")
        for r in range(4):
            e(f"v_mul_f32 v{vD+r}, v{s2}, v{vD+r}")
        e(f"v_cvt_pk_bf16_f32 v{vD+4}, v{vD}, v{vD+1}")
        e(f"v_cvt_pk_bf16_f32 v{vD+5}, v{vD+2}, v{vD+3}")
        e(f"v_and_b32 v{vT0}, 31, v{vLANE}")
        e(f"v_lshlrev_b32 v{vT0}, 3, v{vT0}")
        e(f"v_add_u32 v{vT0}, {L['QBUF']}, v{vT0}")
        e(f"ds_write_b64 v{vT0}, v[{vD+4}:{vD+5}]")
        self.label("L_QE_wait")
        e(f"v_and_b32 v{vT1}, 48, v{vLANE}")
        e(f"v_add_u32 v{vT1}, {L['QBUF']}, v{vT1}")
        e("s_waitcnt lgkmcnt(0)")
        e("s_barrier")
        for s in range(4):
            e(f"ds_read_b128 v[{vQF+4*s}:{vQF+4*s+3}], v{vT1} offset:{s*64}")
        e("s_waitcnt lgkmcnt(0)")
        self.stamp(37)

    def mean_rstd(self, s1, s2, t):
        e = self.e
        e(f"v_mul_f32 v{s1}, {hex(f2u(1/512))}, v{s1}")
        e(f"v_mul_f32 v{s2}, {hex(f2u(1/512))}, v{s2}")
        e(f"v_fma_f32 v{s2}, -v{s1}, v{s1}, v{s2}")
        e(f"v_max_f32 v{s2}, 0, v{s2}")
        e(f"v_add_f32 v{s2}, {hex(f2u(1e-5))}, v{s2}")
        e(f"v_rsq_f32 v{s2}, v{s2}")

    def tail(self):
        cfg, L, e = self.cfg, self.L, self.e
        self.label("L_TAIL")
        self.stamp(9, True)
        t = vD
        e(f"v_and_b32 v{vT0}, 15, v{vLANE}")
        e(f"v_lshrrev_b32 v{vT1}, 3, v{vT0}")
        e(f"s_lshl_b32 s{sT0}, s{sWAVE}, 1")
        e(f"v_add_u32 v{vT1}, s{sT0}, v{vT1}")
        e(f"v_lshlrev_b32 v{vT1}, 9, v{vT1}")
        e(f"v_and_b32 v{vT0}, 7, v{vT0}")
        e(f"v_lshl_add_u32 v{vT1}, v{vT0}, 2, v{vT1}")
        e(f"v_lshrrev_b32 v{vT0}, 4, v{vLANE}")
        e(f"v_lshl_add_u32 v{vT1}, v{vT0}, 7, v{vT1}")
        e(f"v_add_u32 v{vT1}, {L['RED']}, v{vT1}")
        for r in range(4):
            e(f"v_cndmask_b32 v{t+r}, v{vO+4+r}, v{vO+r}, s[{sLT8}:{sLT8+1}]")
        for r in range(4):
            e(f"ds_write_b32 v{vT1}, v{t+r} offset:{r*32}")
        dv = 2
        e(f"s_and_b32 s{sT0}, s{sWAVE}, 1")
        e(f"s_lshl_b32 s{sT0}, s{sT0}, 8")
        e(f"v_lshlrev_b32 v{dv}, 2, v{vLANE}")
        e(f"v_add_u32 v{dv}, s{sT0}, v{dv}")
        e(f"v_add_u32 v{vT0}, {L['RED']}, v{dv}")
        e(f"v_mov_b32 v{vT1}, {L['ML']}")
        e("s_waitcnt lgkmcnt(0)")
        e("s_barrier")
        for p in range(8):
            e(f"ds_read_b32 v{t+p}, v{vT0} offset:{p*512}")
        e(f"ds_read_b128 v[{vS}:{vS+3}], v{vT1}")
        e(f"ds_read_b128 v[{vO}:{vO+3}], v{vT1} offset:16")
        e(f"s_add_u32 s{sT0}, s{sBLK}, s{sL}")
        e("s_waitcnt lgkmcnt(0)")
        m = [vS, vS + 2, vO, vO + 2]; l = [vS + 1, vS + 3, vO + 1, vO + 3]
        M = vO + 4
        e(f"v_max3_f32 v{M}, v{m[0]}, v{m[1]}, v{m[2]}")
        e(f"v_max_f32 v{M}, v{M}, v{m[3]}")
        for w in range(4):
            e(f"v_sub_f32 v{m[w]}, v{m[w]}, v{M}")
        for w in range(4):
            e(f"v_mul_f32 v{m[w]}, s{sCS}, v{m[w]}")
        for w in range(4):
            e(f"v_exp_f32 v{m[w]}, v{m[w]}")
        for w in range(4):
            e(f"v_add_f32 v{t+2*w}, v{t+2*w}, v{t+2*w+1}")
        e(f"v_mul_f32 v{t}, v{m[0]}, v{t}")
        e(f"v_mul_f32 v{M+1}, v{m[0]}, v{l[0]}")
        for w in range(1, 4):
            e(f"v_fmac_f32 v{t}, v{m[w]}, v{t+2*w}")
            e(f"v_fmac_f32 v{M+1}, v{m[w]}, v{l[w]}")
        lsk = self.lab("Lop")
        e(f"s_cmp_ge_u32 s{sWAVE}, 2")
        e(f"s_cbranch_scc1 {lsk}")
        e(f"buffer_store_dword v{t}, v{dv}, s[{sWS}:{sWS+3}], s{sT0} offen offset:{OP} sc1")
        e(f"s_cmp_lg_u32 s{sWAVE}, 0")
        e(f"s_cbranch_scc1 {lsk}")
        e(f"s_mov_b64 s[{sEX}:{sEX+1}], exec")
        e("s_mov_b64 exec, 1")
        e(f"buffer_store_dwordx2 v[{M}:{M+1}], off, s[{sWS}:{sWS+3}], s{sT0} offset:{OP+512} sc1")
        e(f"s_mov_b64 exec, s[{sEX}:{sEX+1}]")
        self.label(lsk)
        self.stamp(10, True)
        e("s_waitcnt vmcnt(0)")
        self.w_frags(vKF, vT0)
        lnf = self.lab("Lnf")
        e(f"s_cmp_lt_u32 s2, {NF}")
        e(f"s_cbranch_scc0 {lnf}")
        e(f"v_mov_b32 v{t}, 0x3f803f80")
        for r in range(1, 4):
            e(f"v_mov_b32 v{t+r}, v{t}")
        e("s_waitcnt lgkmcnt(0)")
        for s in range(4):
            c = "0" if s == 0 else f"v[{vO}:{vO+3}]"
            e(f"v_mfma_f32_16x16x32_bf16 v[{vO}:{vO+3}], v[{vKF+4*s}:{vKF+4*s+3}], v[{t}:{t+3}], {c}")
        e(f"s_lshl_b32 s{sT0}, s{sWAVE}, 6")
        e(f"s_add_u32 s{sT0}, s{sT0}, {L['CS1P']}")
        e(f"v_and_b32 v{vT0}, 48, v{vLANE}")
        e(f"v_add_u32 v{vT0}, s{sT0}, v{vT0}")
        e(f"ds_write_b128 v{vT0}, v[{vO}:{vO+3}]")
        self.label(lnf)
        e("s_waitcnt lgkmcnt(0)")
        self.c("stage A")
        e(f"s_lshr_b32 s{sT0}, s{sWAVE}, 1")
        e(f"s_lshl_b32 s{sT0}, s{sT0}, 2")
        e(f"s_lshl_b32 s{sT1}, s{sH}, 3")
        e(f"s_add_u32 s{sT0}, s{sT0}, s{sT1}")
        e(f"s_lshl_b32 s{sT0}, s{sT0}, 14")
        e(f"s_add_u32 s{sT0}, s{sT0}, s{sL}")
        e(f"s_add_u32 s{sT1}, s{sT0}, {BLK}")
        e(f"s_add_u32 s{sT2}, s{sT0}, {2*BLK}")
        e(f"s_add_u32 s{sT3}, s{sT0}, {3*BLK}")
        so = [sT0, sT1, sT2, sT3]
        lp = self.poll_begin()
        for c in range(4):
            e(f"buffer_load_dword v{t+c}, v{dv}, s[{sWS}:{sWS+3}], s{so[c]} offen offset:{OP} sc1")
        for c in range(4):
            e(f"buffer_load_dwordx2 v[{t+4+2*c}:{t+5+2*c}], off, s[{sWS}:{sWS+3}], s{so[c]} offset:{OP+512} sc1")
        e("s_waitcnt vmcnt(0)")
        self.poll_check(range(t, t + 12), vT0)
        self.poll_end(lp)
        self.stamp(11, True)
        m = [t + 4 + 2 * c for c in range(4)]; l = [t + 5 + 2 * c for c in range(4)]
        M = vO
        e(f"v_max3_f32 v{M}, v{m[0]}, v{m[1]}, v{m[2]}")
        e(f"v_max_f32 v{M}, v{M}, v{m[3]}")
        for c in range(4):
            e(f"v_sub_f32 v{m[c]}, v{m[c]}, v{M}")
        for c in range(4):
            e(f"v_mul_f32 v{m[c]}, s{sCS}, v{m[c]}")
        for c in range(4):
            e(f"v_exp_f32 v{m[c]}, v{m[c]}")
        e(f"v_lshrrev_b32 v{vT0}, 1, v{dv}")
        e(f"s_lshr_b32 s{sT0}, s{sWAVE}, 1")
        e(f"s_lshl_b32 s{sT0}, s{sT0}, 8")
        e(f"s_add_u32 s{sT0}, s{sT0}, {L['XQ']}")
        e(f"v_add_u32 v{vT0}, s{sT0}, v{vT0}")
        e(f"v_mul_f32 v{M+1}, v{m[0]}, v{l[0]}")
        e(f"v_mul_f32 v{t}, v{m[0]}, v{t}")
        for c in range(1, 4):
            e(f"v_fmac_f32 v{M+1}, v{m[c]}, v{l[c]}")
            e(f"v_fmac_f32 v{t}, v{m[c]}, v{t+c}")
        e(f"v_rcp_f32 v{M+1}, v{M+1}")
        e(f"v_mul_f32 v{t}, v{M+1}, v{t}")
        e(f"v_cvt_pk_bf16_f32 v{t}, v{t}, v{t}")
        e(f"ds_write_b16 v{vT0}, v{t}")
        e(f"v_and_b32 v{vT0}, 15, v{vLANE}")
        e(f"v_min_u32 v{vT1}, 2, v{vT0}")
        e(f"v_lshlrev_b32 v{vT1}, 8, v{vT1}")
        e(f"v_and_b32 v{3}, 48, v{vLANE}")
        e(f"v_add_u32 v{vT1}, v{vT1}, v3")
        e(f"v_add_u32 v{vT1}, {L['XQ']}, v{vT1}")
        e(f"v_lshlrev_b32 v{vT0}, 8, v{vT0}")
        e(f"v_add_u32 v{vT0}, v{vT0}, v3")
        e(f"s_lshl_b32 s{sT0}, s{sWAVE}, 6")
        e(f"s_add_u32 s{sT0}, s{sT0}, s{sBLK}")
        e(f"s_add_u32 s{sT0}, s{sT0}, s{sL}")
        e("s_waitcnt lgkmcnt(0)")
        e("s_barrier")
        for s in range(4):
            e(f"ds_read_b128 v[{t+4*s}:{t+4*s+3}], v{vT1} offset:{s*64}")
        e("s_waitcnt lgkmcnt(0)")
        d = vO + 4
        for s in range(4):
            c = "0" if s == 0 else f"v[{d}:{d+3}]"
            e(f"v_mfma_f32_16x16x32_bf16 v[{d}:{d+3}], v[{vQF+4*s}:{vQF+4*s+3}], v[{t+4*s}:{t+4*s+3}], {c}")
        e(f"s_mov_b64 s[{sEX}:{sEX+1}], exec")
        e(f"s_mov_b64 exec, s[{sN2}:{sN2+1}]")
        e(f"buffer_store_dwordx4 v[{d}:{d+3}], v{vT0}, s[{sWS}:{sWS+3}], s{sT0} offen offset:{YP} sc1")
        e(f"s_mov_b64 exec, s[{sEX}:{sEX+1}]")
        self.stamp(12, True)
        e(f"s_cmp_lt_u32 s2, {NF}")
        e("s_cbranch_scc1 L_FFN")
        e(f"s_cmp_ge_u32 s2, {R0}")
        e("s_cbranch_scc1 L_RED")
        e(f"s_cmp_lg_u32 s{sL}, 0")
        e("s_cbranch_scc1 L_end")
        e("s_branch L_G2")
        self.ffn()
        self.reducer()
        self.g2()

    def red_reduce(self, x):
        L, e = self.L, self.e
        regs = [x + r for r in range(4)]
        self.bfly_row("v_add_f32", regs, steps=(8,))
        tm = [x + 4 + r for r in range(4)]
        self.swap_reduce("v_add_f32", regs, tm, 16)
        self.swap_reduce("v_add_f32", regs, tm, 32)
        e(f"s_lshl_b32 s{sT0}, s{sWAVE}, 7")
        e(f"s_add_u32 s{sT0}, s{sT0}, {L['PART']}")
        e(f"v_and_b32 v{vT0}, 7, v{vLANE}")
        e(f"v_lshlrev_b32 v{vT0}, 4, v{vT0}")
        e(f"v_add_u32 v{vT1}, s{sT0}, v{vT0}")
        e(f"ds_write_b128 v{vT1}, v[{x}:{x+3}]")
        e("s_waitcnt lgkmcnt(0)")
        e("s_barrier")

    def reducer(self):
        cfg, L, e = self.cfg, self.L, self.e
        self.label("L_RED")
        x = vD
        sR, sRB, sCB = sT4, sT5, 49
        e(f"s_sub_u32 s{sR}, s2, {R0}")
        e(f"s_lshr_b32 s{sRB}, s{sR}, 4")
        e(f"s_and_b32 s{sCB}, s{sR}, 15")
        self.srd(sW, sB2, 1024)
        e(f"v_and_b32 v2, 7, v{vLANE}")
        e(f"v_lshlrev_b32 v3, 3, v2")
        e(f"s_lshl_b32 s{sT0}, s{sCB}, 6")
        e(f"buffer_load_dwordx2 v[4:5], v3, s[{sW}:{sW+3}], s{sT0} offen")
        e(f"v_lshrrev_b32 v6, 3, v{vLANE}")
        e(f"v_lshlrev_b32 v7, 17, v6")
        e(f"v_lshl_add_u32 v7, v2, 4, v7")
        e(f"s_lshl_b32 s{sT0}, s{sWAVE}, 6")
        e(f"s_lshr_b32 s{sT1}, s{sCB}, 1")
        e(f"s_add_u32 s{sT0}, s{sT0}, s{sT1}")
        e(f"s_lshl_b32 s{sT0}, s{sT0}, 14")
        e(f"s_add_u32 s{sT0}, s{sT0}, s{sL}")
        e(f"s_lshl_b32 s{sT1}, s{sRB}, 8")
        e(f"s_add_u32 s{sT0}, s{sT0}, s{sT1}")
        e(f"s_and_b32 s{sT1}, s{sCB}, 1")
        e(f"s_lshl_b32 s{sT1}, s{sT1}, 7")
        e(f"s_add_u32 s{sT0}, s{sT0}, s{sT1}")
        lp = self.poll_begin()
        e(f"buffer_load_dwordx4 v[{x}:{x+3}], v7, s[{sWS}:{sWS+3}], s{sT0} offen offset:{YP} sc1")
        e("s_waitcnt vmcnt(0)")
        self.poll_check(range(x, x + 4), vT0)
        self.poll_end(lp)
        self.stamp(17, True)
        self.red_reduce(x)
        lw = self.lab("Lr1")
        e(f"s_cmp_lg_u32 s{sWAVE}, 0")
        e(f"s_cbranch_scc1 {lw}")

        def final_sum():
            e(f"v_add_u32 v{vT1}, {L['PART']}, v{vT0}")
            for w in range(4):
                e(f"ds_read_b128 v[{x+4*w}:{x+4*w+3}], v{vT1} offset:{w*128}")
            e(f"v_add_u32 v{vT0}, {L['XRES']}, v{vT0}")
            e(f"ds_read_b128 v[{vO+4}:{vO+7}], v{vT0}")
            e("s_waitcnt lgkmcnt(0)")
            for r in range(4):
                e(f"v_add_f32 v{x+r}, v{x+r}, v{x+4+r}")
                e(f"v_add_f32 v{x+8+r}, v{x+8+r}, v{x+12+r}")
            for r in range(4):
                e(f"v_add_f32 v{x+r}, v{x+r}, v{x+8+r}")
            for r in range(4):
                e(f"v_add_f32 v{x+r}, v{x+r}, v{vO+4+r}")
        final_sum()
        e(f"ds_write_b128 v{vT0}, v[{x}:{x+3}]")
        e(f"s_add_u32 s{sT0}, s{sBLKW}, s{sL}")
        e(f"v_lshlrev_b32 v3, 4, v2")
        e(f"s_mov_b64 s[{sEX}:{sEX+1}], exec")
        e("s_mov_b64 exec, 0xff")
        e(f"buffer_store_dwordx4 v[{x}:{x+3}], v3, s[{sWS}:{sWS+3}], s{sT0} offen offset:{X1} sc1")
        e(f"s_mov_b64 exec, s[{sEX}:{sEX+1}]")
        self.label(lw)
        self.stamp(18, True)
        e("s_waitcnt lgkmcnt(0)")
        e("s_barrier")
        e(f"v_lshlrev_b32 v7, 14, v6")
        e(f"v_lshl_add_u32 v7, v2, 4, v7")
        e(f"s_lshl_b32 s{sT0}, s{sWAVE}, 17")
        e(f"s_add_u32 s{sT0}, s{sT0}, s{sL}")
        e(f"s_lshl_b32 s{sT1}, s{sRB}, 11")
        e(f"s_add_u32 s{sT0}, s{sT0}, s{sT1}")
        e(f"s_lshl_b32 s{sT1}, s{sCB}, 7")
        e(f"s_add_u32 s{sT0}, s{sT0}, s{sT1}")
        e(f"s_add_u32 s{sT0}, s{sT0}, {FP}")
        e(f"s_add_u32 s{sT1}, s{sT0}, {32*BLK}")
        e(f"s_add_u32 s{sT2}, s{sT0}, {64*BLK}")
        e(f"s_add_u32 s{sT3}, s{sT0}, {96*BLK}")
        for r in range(4):
            e(f"v_mov_b32 v{x+12+r}, 0")
        lp = self.poll_begin()
        l3 = self.lab("Lr3")
        for k, so in enumerate((sT0, sT1, sT2)):
            e(f"buffer_load_dwordx4 v[{x+4*k}:{x+4*k+3}], v7, s[{sWS}:{sWS+3}], s{so} offen sc1")
        e(f"s_cmp_ge_u32 s{sWAVE}, 2")
        e(f"s_cbranch_scc1 {l3}")
        e(f"buffer_load_dwordx4 v[{x+12}:{x+15}], v7, s[{sWS}:{sWS+3}], s{sT3} offen sc1")
        self.label(l3)
        e("s_waitcnt vmcnt(0)")
        self.poll_check(range(x, x + 16), vT0)
        self.poll_end(lp)
        self.stamp(19, True)
        for r in range(4):
            e(f"v_add_f32 v{x+r}, v{x+r}, v{x+4+r}")
            e(f"v_add_f32 v{x+8+r}, v{x+8+r}, v{x+12+r}")
        for r in range(4):
            e(f"v_add_f32 v{x+r}, v{x+r}, v{x+8+r}")
        self.red_reduce(x)
        lw = self.lab("Lr4")
        e(f"s_cmp_lg_u32 s{sWAVE}, 0")
        e(f"s_cbranch_scc1 {lw}")
        final_sum()
        e(f"v_lshlrev_b32 v{x+4}, 16, v4")
        e(f"v_and_b32 v{x+5}, 0xffff0000, v4")
        e(f"v_lshlrev_b32 v{x+6}, 16, v5")
        e(f"v_and_b32 v{x+7}, 0xffff0000, v5")
        for r in range(4):
            e(f"v_add_f32 v{x+r}, v{x+r}, v{x+4+r}")
        lo = self.lab("Lout")
        e(f"s_mov_b64 s[{sEX}:{sEX+1}], exec")
        e(f"s_cmp_lg_u32 s{sL}, 0")
        e(f"s_cbranch_scc1 {lo}")
        e(f"ds_write_b128 v{vT0}, v[{x}:{x+3}]")
        e(f"s_add_u32 s{sT0}, s{sBLKW}, s{sL}")
        e(f"v_lshlrev_b32 v3, 4, v2")
        e("s_mov_b64 exec, 0xff")
        e(f"buffer_store_dwordx4 v[{x}:{x+3}], v3, s[{sWS}:{sWS+3}], s{sT0} offen offset:{X2} sc1")
        e(f"s_mov_b64 exec, s[{sEX}:{sEX+1}]")
        e("s_waitcnt lgkmcnt(0)")
        e("s_branch L_G2")
        self.label(lo)
        self.srd(sW, sOUT, 2048)
        e(f"v_cvt_pk_bf16_f32 v{x+4}, v{x}, v{x+1}")
        e(f"v_cvt_pk_bf16_f32 v{x+5}, v{x+2}, v{x+3}")
        e(f"s_lshl_b32 s{sT0}, s{sR}, 6")
        e(f"v_lshlrev_b32 v3, 3, v2")
        e("s_mov_b64 exec, 0xff")
        e(f"buffer_store_dwordx2 v[{x+4}:{x+5}], v3, s[{sW}:{sW+3}], s{sT0} offen")
        e("s_waitcnt vmcnt(0)")
        e("s_branch L_end")
        self.label(lw)
        e(f"s_cmp_lg_u32 s{sL}, 0")
        e("s_cbranch_scc1 L_end")
        e("s_branch L_G2")

    def ffn(self):
        cfg, L, e = self.cfg, self.L, self.e
        self.label("L_FFN")
        t = vD
        self.srd(sW, sW2, 1792 * 512 * 2)
        e(f"v_lshrrev_b32 v2, 4, v{vLANE}")
        e(f"v_lshlrev_b32 v2, 10, v2")
        e(f"v_and_b32 v3, 15, v{vLANE}")
        e(f"v_lshl_add_u32 v2, v3, 4, v2")
        e(f"s_lshl_b32 s{sT0}, s2, 14")
        e(f"s_lshl_b32 s{sT1}, s{sWAVE}, 8")
        e(f"s_add_u32 s{sT0}, s{sT0}, s{sT1}")
        for i in range(4):
            e(f"s_add_u32 m0, s{sWB}, {i*1024}")
            if i > 0:
                e(f"s_add_u32 s{sT0}, s{sT0}, 4096")
            e(f"buffer_load_dwordx4 v2, s[{sW}:{sW+3}], s{sT0} offen lds")
        self.srd(sW, sB1, 1792 * 2)
        e(f"v_lshrrev_b32 v3, 4, v{vLANE}")
        e(f"v_lshlrev_b32 v3, 3, v3")
        e(f"s_lshl_b32 s{sT0}, s2, 5")
        e(f"buffer_load_dwordx2 v[4:5], v3, s[{sW}:{sW+3}], s{sT0} offen")
        e(f"v_lshrrev_b32 v2, 4, v{vLANE}")
        e(f"v_lshlrev_b32 v2, 2, v2")
        e(f"v_bfe_u32 v3, v{vLANE}, 2, 2")
        e(f"v_add_u32 v2, v2, v3")
        e(f"v_lshlrev_b32 v2, 8, v2")
        e(f"v_and_b32 v3, 3, v{vLANE}")
        e(f"v_lshl_add_u32 v2, v3, 3, v2")
        e(f"v_add_u32 v2, s{sWB}, v2")
        e("s_waitcnt vmcnt(0)")
        for tt in range(8):
            e(f"ds_read_b64_tr_b16 v[{vQF+2*tt}:{vQF+2*tt+1}], v2 offset:{tt*32}")
        e(f"v_lshlrev_b32 v2, 16, v4")
        e(f"v_and_b32 v3, 0xffff0000, v4")
        e(f"v_lshlrev_b32 v4, 16, v5")
        e(f"v_and_b32 v5, 0xffff0000, v5")
        e(f"v_lshrrev_b32 v10, 3, v{vLANE}")
        e(f"v_lshlrev_b32 v10, 14, v10")
        e(f"v_and_b32 v11, 7, v{vLANE}")
        e(f"v_lshl_add_u32 v10, v11, 4, v10")
        e(f"s_lshl_b32 s{sT0}, s{sWAVE}, 3")
        e(f"s_add_u32 s{sT0}, s{sT0}, {R0}")
        e(f"s_lshl_b32 s{sT0}, s{sT0}, 14")
        e(f"s_add_u32 s{sT0}, s{sT0}, s{sL}")
        e(f"s_lshl_b32 s{sT1}, s{sWAVE}, 9")
        e(f"s_add_u32 s{sT1}, s{sT1}, {L['XBUF']}")
        e(f"v_lshlrev_b32 v11, 3, v{vLANE}")
        e(f"v_add_u32 v11, s{sT1}, v11")
        e(f"v_and_b32 v12, 1, v{vLANE}")
        e(f"v_lshlrev_b32 v13, 10, v12")
        e(f"v_and_b32 v14, 48, v{vLANE}")
        e(f"v_add_u32 v13, v13, v14")
        e(f"s_lshl_b32 s{sT1}, s{sWAVE}, 8")
        e(f"s_add_u32 s{sT1}, s{sT1}, {L['XBUF']}")
        e(f"v_add_u32 v13, s{sT1}, v13")
        e(f"v_lshlrev_b32 v14, 1, v14")
        e(f"v_lshl_add_u32 v14, v12, 4, v14")
        e(f"v_add_u32 v14, {L['PART']}, v14")
        e(f"s_lshl_b32 s{sT1}, s{sWAVE}, 7")
        e(f"v_add_u32 v15, s{sT1}, v14")
        e("s_waitcnt lgkmcnt(0)")
        self.stamp(13, True)
        lp = self.poll_begin()
        e(f"buffer_load_dwordx4 v[{t}:{t+3}], v10, s[{sWS}:{sWS+3}], s{sT0} offen offset:{X1} sc1")
        e("s_waitcnt vmcnt(0)")
        self.poll_check(range(t, t + 4), vT0)
        self.poll_end(lp)
        self.stamp(14, True)
        e(f"v_cvt_pk_bf16_f32 v{t+4}, v{t}, v{t+1}")
        e(f"v_cvt_pk_bf16_f32 v{t+5}, v{t+2}, v{t+3}")
        e(f"ds_write_b64 v11, v[{t+4}:{t+5}]")
        e(f"v_lshlrev_b32 v{t}, 16, v{t+4}")
        e(f"v_and_b32 v{t+1}, 0xffff0000, v{t+4}")
        e(f"v_lshlrev_b32 v{t+2}, 16, v{t+5}")
        e(f"v_and_b32 v{t+3}, 0xffff0000, v{t+5}")
        e(f"v_add_f32 v{vMR}, v{t}, v{t+1}")
        e(f"v_mul_f32 v{vLR}, v{t}, v{t}")
        e(f"v_add_f32 v{vMR}, v{vMR}, v{t+2}")
        e(f"v_fmac_f32 v{vLR}, v{t+1}, v{t+1}")
        e(f"v_add_f32 v{vMR}, v{vMR}, v{t+3}")
        e(f"v_fmac_f32 v{vLR}, v{t+2}, v{t+2}")
        e(f"v_fmac_f32 v{vLR}, v{t+3}, v{t+3}")
        e("s_waitcnt lgkmcnt(0)")
        e("s_barrier")
        for s in range(4):
            e(f"ds_read_b128 v[{t+4*s}:{t+4*s+3}], v13 offset:{s*64}")
        e(f"v_and_b32 v10, 48, v{vLANE}")
        e(f"v_add_u32 v10, {L['CS1P']}, v10")
        e(f"ds_read_b128 v[6:9], v10")
        self.bfly_row("v_add_f32", [vMR, vLR])
        self.swap_reduce("v_add_f32", [vMR, vLR], [vT0, vT1], 16)
        self.swap_reduce("v_add_f32", [vMR, vLR], [vT0, vT1], 32)
        e("s_waitcnt lgkmcnt(0)")
        d = vO + 4
        for s in range(4):
            c = "0" if s == 0 else f"v[{d}:{d+3}]"
            e(f"v_mfma_f32_16x16x32_bf16 v[{d}:{d+3}], v[{vKF+4*s}:{vKF+4*s+3}], v[{t+4*s}:{t+4*s+3}], {c}")
        e(f"s_lshl_b32 s{sT1}, s{sWAVE}, 3")
        e(f"s_add_u32 s{sT1}, s{sT1}, {L['ST']}")
        e(f"v_mov_b32 v{vT0}, s{sT1}")
        e(f"ds_write_b64 v{vT0}, v[{vMR}:{vMR+1}]")
        for w in range(1, 4):
            e(f"ds_read_b128 v[{t+4*w}:{t+4*w+3}], v10 offset:{w*64}")
        e(f"ds_write_b128 v15, v[{d}:{d+3}]")
        e("s_waitcnt lgkmcnt(0)")
        for w in range(1, 4):
            for r in range(4):
                e(f"v_add_f32 v{6+r}, v{6+r}, v{t+4*w+r}")
        e("s_barrier")
        for w in range(4):
            e(f"ds_read_b128 v[{t+4*w}:{t+4*w+3}], v14 offset:{w*128}")
        e(f"v_lshlrev_b32 v{vT0}, 4, v12")
        e(f"v_add_u32 v{vT0}, {L['ST']}, v{vT0}")
        e(f"ds_read_b128 v[{d}:{d+3}], v{vT0}")
        e("s_waitcnt lgkmcnt(0)")
        e(f"v_add_f32 v{vMR}, v{d}, v{d+2}")
        e(f"v_add_f32 v{vLR}, v{d+1}, v{d+3}")
        self.mean_rstd(vMR, vLR, None)
        for r in range(4):
            e(f"v_add_f32 v{t+r}, v{t+r}, v{t+4+r}")
            e(f"v_add_f32 v{t+8+r}, v{t+8+r}, v{t+12+r}")
        for r in range(4):
            e(f"v_add_f32 v{t+r}, v{t+r}, v{t+8+r}")
        for r in range(4):
            e(f"v_fma_f32 v{t+r}, -v{vMR}, v{6+r}, v{t+r}")
        for r in range(4):
            e(f"v_fma_f32 v{t+r}, v{vLR}, v{t+r}, v{2+r}")
        k0 = -2.0 * 0.7978845608028654 * 1.4426950408889634
        e(f"s_mov_b32 s{sT1}, {hex(f2u(0.044715))}")
        e(f"s_mov_b32 s{sT2}, {hex(f2u(k0))}")
        for r in range(4):
            e(f"v_mul_f32 v{t+4+r}, v{t+r}, v{t+r}")
        for r in range(4):
            e(f"v_fma_f32 v{t+4+r}, v{t+4+r}, s{sT1}, 1.0")
        for r in range(4):
            e(f"v_mul_f32 v{t+4+r}, v{t+4+r}, v{t+r}")
        for r in range(4):
            e(f"v_mul_f32 v{t+4+r}, s{sT2}, v{t+4+r}")
        for r in range(4):
            e(f"v_exp_f32 v{t+4+r}, v{t+4+r}")
        for r in range(4):
            e(f"v_add_f32 v{t+4+r}, 1.0, v{t+4+r}")
        for r in range(4):
            e(f"v_rcp_f32 v{t+4+r}, v{t+4+r}")
        for r in range(4):
            e(f"v_mul_f32 v{t+r}, v{t+r}, v{t+4+r}")
        e(f"v_cvt_pk_bf16_f32 v{t+8}, v{t}, v{t+1}")
        e(f"v_cvt_pk_bf16_f32 v{t+9}, v{t+2}, v{t+3}")
        e(f"v_lshlrev_b32 v10, 11, v12")
        e(f"v_bfe_u32 v11, v{vLANE}, 1, 3")
        e(f"v_lshl_add_u32 v10, v11, 6, v10")
        e(f"v_and_b32 v11, 48, v{vLANE}")
        e(f"v_add_u32 v10, v10, v11")
        e(f"s_lshl_b32 s{sT0}, s{sWAVE}, 9")
        e(f"s_add_u32 s{sT0}, s{sT0}, s{sBLKW}")
        e(f"s_add_u32 s{sT0}, s{sT0}, s{sL}")
        e(f"s_add_u32 s{sT0}, s{sT0}, {FP}")
        bb = [t + 10, t + 12]
        def mk(tt):
            b = bb[tt & 1]
            e(f"s_lshl_b64 s[{sMK}:{sMK+1}], s[{sN2}:{sN2+1}], {2*tt}")
            e(f"v_cndmask_b32 v{b}, 0, v{t+8}, s[{sMK}:{sMK+1}]")
            e(f"v_cndmask_b32 v{b+1}, 0, v{t+9}, s[{sMK}:{sMK+1}]")
        mk(0)
        for tt in range(8):
            if tt + 1 < 8:
                mk(tt + 1)
            b = bb[tt & 1]
            c = "0" if tt == 0 else f"v[{d}:{d+3}]"
            e(f"v_mfma_f32_16x16x16_bf16 v[{d}:{d+3}], v[{vQF+2*tt}:{vQF+2*tt+1}], v[{b}:{b+1}], {c}")
        e(f"buffer_store_dwordx4 v[{d}:{d+3}], v10, s[{sWS}:{sWS+3}], s{sT0} offen sc1")
        self.stamp(15, True)
        e(f"s_cmp_lg_u32 s{sL}, 0")
        e("s_cbranch_scc1 L_end")
        self.set_wq()
        self.w_dma(vT0, cond=True)
        e("s_waitcnt vmcnt(0)")
        self.w_frags(vKF, vT0)
        e("s_waitcnt lgkmcnt(0)")
        e("s_branch L_G2")

    def g2(self):
        cfg, L, e = self.cfg, self.L, self.e
        self.label("L_G2")
        self.stamp(21)
        self.consts()
        lw = self.lab("Lg2")
        e(f"s_cmp_lg_u32 s{sWAVE}, 0")
        e(f"s_cbranch_scc1 {lw}")
        t = vD
        e(f"v_lshrrev_b32 v{vT0}, 5, v{vLANE}")
        e(f"v_lshlrev_b32 v{vT0}, 4, v{vT0}")
        e(f"v_bfe_u32 v{vT1}, v{vLANE}, 3, 2")
        e(f"v_add_u32 v{vT0}, v{vT0}, v{vT1}")
        e(f"v_lshlrev_b32 v{vT0}, 14, v{vT0}")
        e(f"v_and_b32 v{vT1}, 7, v{vLANE}")
        e(f"v_lshl_add_u32 v{vT0}, v{vT1}, 4, v{vT0}")
        e(f"s_lshr_b32 s{sT0}, s{sJ}, 1")
        e(f"s_lshl_b32 s{sT0}, s{sT0}, 2")
        e(f"s_add_u32 s{sT0}, s{sT0}, {R0}")
        e(f"s_lshl_b32 s{sT0}, s{sT0}, 14")
        e(f"v_lshrrev_b32 v{t+8}, 5, v{vLANE}")
        e(f"v_lshlrev_b32 v{t+8}, 8, v{t+8}")
        e(f"v_and_b32 v{t+9}, 31, v{vLANE}")
        e(f"v_lshl_add_u32 v{t+8}, v{t+9}, 3, v{t+8}")
        e(f"v_add_u32 v{t+8}, {L['XQ']}, v{t+8}")
        lp = self.poll_begin()
        e(f"buffer_load_dwordx4 v[{t}:{t+3}], v{vT0}, s[{sWS}:{sWS+3}], s{sT0} offen offset:{X2} sc1")
        e("s_waitcnt vmcnt(0)")
        self.poll_check(range(t, t + 4), vT1)
        self.poll_end(lp)
        self.stamp(22)
        e(f"v_cvt_pk_bf16_f32 v{t+4}, v{t}, v{t+1}")
        e(f"v_cvt_pk_bf16_f32 v{t+5}, v{t+2}, v{t+3}")
        e(f"ds_write_b64 v{t+8}, v[{t+4}:{t+5}]")
        e(f"v_lshlrev_b32 v{t}, 16, v{t+4}")
        e(f"v_and_b32 v{t+1}, 0xffff0000, v{t+4}")
        e(f"v_lshlrev_b32 v{t+2}, 16, v{t+5}")
        e(f"v_and_b32 v{t+3}, 0xffff0000, v{t+5}")
        self.stats_partial(t)
        self.label(lw)
        e(f"s_mov_b32 s{sL}, {LOFF}")
        e("s_waitcnt lgkmcnt(0)")
        e("s_branch L_QE")

    def build(self):
        cfg, e = self.cfg, self.e
        self.prologue()
        self.pass1()
        e("s_branch L_TAIL")
        self.qe()
        self.vm_n += 5000; self.vm_done = self.vm_n; self.vm_tags = {}
        self.pass2()
        self.tail()
        self.label("L_end")
        self.stamp(63, last=True)
        self.label("L_exit")
        e("s_endpgm")

    def text(self):
        cfg = self.cfg
        body, nn = hazard_pass(self.lines)
        hdr = []
        ref = open("interleave_layers__mha_block_cached__dense_activation_gelu__decode.s.ref").read().split("\n")
        for l in ref:
            if l.startswith("; @launch"):
                hdr.append("; @launch grid=(256,1,1) block=(256,1,1) lds=163840")
                break
            if l.startswith(";"):
                hdr.append(l)
        hdr += ['.amdgcn_target "amdgcn-amd-amdhsa--gfx950"', ".text", f".globl {KNAME}", ".p2align 8",
                f".type {KNAME},@function", f"{KNAME}:"]
        ftr = ['.section .rodata,"a"', ".p2align 6", f".amdhsa_kernel {KNAME}",
               "  .amdhsa_next_free_vgpr 512", "  .amdhsa_next_free_sgpr 102", "  .amdhsa_accum_offset 256",
               "  .amdhsa_group_segment_fixed_size 0", "  .amdhsa_kernarg_size 104", "  .amdhsa_user_sgpr_count 2",
               "  .amdhsa_user_sgpr_kernarg_segment_ptr 1", "  .amdhsa_system_sgpr_workgroup_id_x 1",
               ".end_amdhsa_kernel", ""]
        return "\n".join(hdr + body + ftr), nn


def generate(path, **kw):
    cfg = Cfg()
    for k, v in kw.items():
        setattr(cfg, k, v)
    g = Gen(cfg)
    g.build()
    txt, nn = g.text()
    open(path, "w").write(txt)
    return len(txt), nn, len(g.lines)


if __name__ == "__main__":
    out = sys.argv[1] if len(sys.argv) > 1 else "interleave_layers__mha_block_cached__dense_activation_gelu__decode.s"
    kw = {}
    for a in sys.argv[2:]:
        k, v = a.split("=")
        kw[k] = v if k.endswith("POL") else int(v)
    print(generate(out, **kw))
```

```python
import sys, struct, os
sys.path.insert(0, os.path.dirname(os.path.abspath(__file__)))
from asmlib import Asm, hazard_pass

KNAME = "interleave_layers__mha_block_cached__dense_activation_gelu__decode_kernel"


def f2u(x):
    return struct.unpack("<I", struct.pack("<f", x))[0]


class Cfg:
    NR = 8
    NWORK = 72
    CAP = 16
    INIT_V = 24
    CAP0 = 44
    XMAP = 1
    PF = 0
    PFF = 0
    PFD = 8
    PFPOL = ""
    CAPEND = 0
    KRET = 0
    SPIN = 200000
    KPOL = "nt"
    VPOL = "nt"
    PROF = False
    POLL_SLEEP = 0


RING = 0
def lds_map(cfg):
    m = {}
    m["W"] = cfg.NR * 4096 * 4
    misc = m["W"] + 16384
    m["PBUF"] = misc
    m["RED"] = misc + 4608
    m["ML"] = misc + 8704
    m["XQ"] = misc + 8768
    m["QBUF"] = misc + 9536
    m["CSB"] = misc + 9792
    m["XRES"] = misc + 10304
    m["XBUF"] = misc + 10432
    m["PART"] = misc + 12480
    m["ST"] = misc + 12992
    m["CS1P"] = misc + 13056
    m["END"] = misc + 13312
    return m

BLK = 16384
LOFF = 8192
QP, QST, OP, YP, X1, X2, FP = 0, 768, 1024, 2048, 3072, 3200, 4096
PROF_OFF = 256 * BLK
NF = 112
R0 = 224

sK, sV, sWS, sW = 4, 8, 12, 16
sWQ, sWO, sW1, sW2, sB1, sB2, sOUT, sDBG, sX = 20, 22, 24, 26, 28, 30, 32, 34, 36
sWAVE, sH, sJ, sB, sC = 38, 39, 40, 41, 42
sRING, sWB, sL, sROLE, sSPIN = 43, 44, 46, 47, 48
sEX = 50
sMK = 52
sT0, sT1, sT2, sT3, sT4, sT5 = 54, 55, 56, 57, 64, 65
sM0 = 58
sCS = 60
sBLK = 61
sLT8 = 62
sKO, sVO = 66, 67
sN2 = 68
sN3 = 70
sBLKW = 72
sP0 = 74

vLANE, vVOFF = 0, 1
vKD = 2
vKR = 6
vM = 10
vPW, vPR = 14, 15
vQF = 16
vKF = 32
vB0, vB1, vP0, vP1 = 32, 36, 40, 44
vD = 48
vS = 56
vO = 60
vMR, vLR = 68, 69
vT0, vT1 = 70, 71

SCALE = 128 ** -0.5 * 1.4426950408889634


class Gen(Asm):
    def __init__(self, cfg):
        super().__init__()
        self.cfg = cfg
        self.L = lds_map(cfg)
        assert self.L["END"] <= 163840
        self.nstamp = 0
        self.pending = []
        self.ready = set()
        self.cap = cfg.CAP

    def stamp(self, sid, shared=False, last=False):
        if not self.cfg.PROF:
            return
        e = self.e
        vST = self.cfg.NWORK - 1
        if sid == 0:
            e(f"v_mov_b32 v{vST}, 0")
            e(f"s_getreg_b32 s{sP0}, hwreg(HW_REG_XCC_ID)")
            e(f"s_or_b32 s{sP0}, s{sP0}, 0x10000")
            e(f"v_writelane_b32 v{vST}, s{sP0}, 62")
            e(f"s_getreg_b32 s{sP0}, hwreg(HW_REG_HW_ID)")
            e(f"v_writelane_b32 v{vST}, s{sP0}, 61")
            e(f"s_memrealtime s[{sP0}:{sP0+1}]")
            e(f"s_mov_b32 s{sP0+2}, 0")
            return
        e("s_waitcnt lgkmcnt(0)")
        e(f"s_mov_b32 m0, s{sP0+2}")
        e("s_nop 0")
        e(f"v_writelane_b32 v{vST}, s{sP0}, m0")
        if shared:
            e(f"s_lshr_b32 s{sP0+2}, s{sL}, 8")
            e(f"s_add_u32 s{sP0+2}, s{sP0+2}, {sid}")
        else:
            e(f"s_mov_b32 s{sP0+2}, {sid}")
        e(f"s_memrealtime s[{sP0}:{sP0+1}]")
        if last:
            e("s_waitcnt lgkmcnt(0)")
            e(f"s_mov_b32 m0, s{sP0+2}")
            e("s_nop 0")
            e(f"v_writelane_b32 v{vST}, s{sP0}, m0")
            e(f"s_lshl_b32 s{sT0}, s2, 2")
            e(f"s_add_u32 s{sT0}, s{sT0}, s{sWAVE}")
            e(f"s_lshl_b32 s{sT0}, s{sT0}, 8")
            e(f"s_add_u32 s{sT0}, s{sT0}, {PROF_OFF}")
            e(f"s_mov_b64 exec, -1")
            e(f"v_lshlrev_b32 v1, 2, v0")
            e(f"buffer_store_dword v{vST}, v1, s[{sWS}:{sWS+3}], s{sT0} offen")
            e("s_waitcnt vmcnt(0)")

    def srd(self, d, ptr, nbytes, add=None):
        if add is None:
            self.e(f"s_mov_b32 s{d}, s{ptr}")
            self.e(f"s_and_b32 s{d+1}, s{ptr+1}, 0xffff")
        else:
            self.e(f"s_add_u32 s{d}, s{ptr}, s{add}")
            self.e(f"s_addc_u32 s{d+1}, s{ptr+1}, 0")
            self.e(f"s_and_b32 s{d+1}, s{d+1}, 0xffff")
        self.e(f"s_mov_b32 s{d+2}, {nbytes}")
        self.e(f"s_mov_b32 s{d+3}, 0x20000")

    def bfly_row(self, op, regs, steps=(8, 4, 2, 1)):
        for st in steps:
            for r in regs:
                self.e(f"{op}_dpp v{r}, v{r}, v{r} row_ror:{st} row_mask:0xf bank_mask:0xf")

    def swap_reduce(self, op, regs, tmps, which):
        for r, t in zip(regs, tmps):
            self.e(f"v_mov_b32 v{t}, v{r}")
        for r, t in zip(regs, tmps):
            self.e(f"v_permlane{which}_swap_b32 v{t}, v{r}")
        for r, t in zip(regs, tmps):
            self.e(f"{op} v{r}, v{t}, v{r}")

    def poll_begin(self):
        l = self.lab("Lpoll")
        self.e(f"s_mov_b32 s{sSPIN}, {self.cfg.SPIN}")
        self.label(l)
        return l

    def poll_check(self, regs, tmp):
        regs = list(regs)
        if len(regs) == 1:
            self.e(f"v_cmp_eq_u32 vcc, -1, v{regs[0]}")
            return
        if len(regs) == 2:
            self.e(f"v_max_u32 v{tmp}, v{regs[0]}, v{regs[1]}")
            rest = []
        else:
            self.e(f"v_max3_u32 v{tmp}, v{regs[0]}, v{regs[1]}, v{regs[2]}")
            rest = regs[3:]
        while len(rest) >= 2:
            self.e(f"v_max3_u32 v{tmp}, v{tmp}, v{rest[0]}, v{rest[1]}")
            rest = rest[2:]
        if rest:
            self.e(f"v_max_u32 v{tmp}, v{tmp}, v{rest[0]}")
        self.e(f"v_cmp_eq_u32 vcc, -1, v{tmp}")

    def poll_end(self, l):
        ok = self.lab("Lok")
        self.e(f"s_cbranch_vccz {ok}")
        if self.cfg.POLL_SLEEP:
            self.e(f"s_sleep {self.cfg.POLL_SLEEP}")
        self.e(f"s_sub_u32 s{sSPIN}, s{sSPIN}, 1")
        self.e(f"s_cmp_lg_u32 s{sSPIN}, 0")
        self.e(f"s_cbranch_scc1 {l}")
        self.label(ok)

    def consts(self):
        L = self.L
        e = self.e
        self.c("per-lane stream constants")
        e(f"v_lshlrev_b32 v{vVOFF}, 4, v{vLANE}")
        e(f"v_and_b32 v{vT0}, 15, v{vLANE}")
        e(f"v_lshrrev_b32 v{vT1}, 4, v{vLANE}")
        for t in range(4):
            e(f"v_add_u32 v{vD}, {4*t}, v{vT1}")
            e(f"v_xor_b32 v{vD}, v{vD}, v{vT0}")
            e(f"v_lshlrev_b32 v{vD}, 4, v{vD}")
            e(f"v_lshl_add_u32 v{vKD+t}, v{vT1}, 8, v{vD}")
        for s in range(4):
            e(f"v_add_u32 v{vD}, {4*s}, v{vT1}")
            e(f"v_xor_b32 v{vD}, v{vD}, v{vT0}")
            e(f"v_lshlrev_b32 v{vD}, 4, v{vD}")
            e(f"v_lshl_add_u32 v{vD}, v{vT0}, 8, v{vD}")
            e(f"v_add_u32 v{vKR+s}, s{sRING}, v{vD}")
        e(f"v_and_b32 v{vD}, 7, v{vT0}")
        e(f"v_mov_b32 v{vD+1}, 0xffff")
        e(f"v_mov_b32 v{vD+2}, 0xffff0000")
        for jj in range(4):
            e(f"v_mov_b32 v{vM+jj}, 0")
            e(f"v_cmp_eq_u32 vcc, {2*jj}, v{vD}")
            e(f"v_cndmask_b32 v{vM+jj}, v{vM+jj}, v{vD+1}, vcc")
            e(f"v_cmp_eq_u32 vcc, {2*jj+1}, v{vD}")
            e(f"v_cndmask_b32 v{vM+jj}, v{vM+jj}, v{vD+2}, vcc")
        e(f"s_mul_i32 s{sT0}, s{sWAVE}, 1152")
        e(f"s_add_u32 s{sT0}, s{sT0}, {L['PBUF']}")
        e(f"v_and_b32 v{vD}, 1, v{vT1}")
        e(f"v_mul_u32_u24 v{vD}, 576, v{vD}")
        e(f"v_lshrrev_b32 v{vD+1}, 1, v{vT1}")
        e(f"v_lshl_add_u32 v{vD+1}, v{vT0}, 1, v{vD+1}")
        e(f"v_lshl_add_u32 v{vD}, v{vD+1}, 2, v{vD}")
        e(f"v_add_u32 v{vPW}, s{sT0}, v{vD}")
        e(f"v_lshrrev_b32 v{vD}, 3, v{vT0}")
        e(f"v_lshl_add_u32 v{vD}, v{vD}, 2, v{vT1}")
        e(f"v_mul_u32_u24 v{vD}, 144, v{vD}")
        e(f"v_add_u32 v{vPR}, s{sT0}, v{vD}")

    def vreg_of(self, blk, t, pas):
        nret = (256 - self.cfg.NWORK) // 4
        if blk in ("A", "Q"):
            return f"a[{4*t}:{4*t+3}]"
        if t < nret:
            r = self.cfg.NWORK + 4 * t
            return f"v[{r}:{r+3}]"
        r = 4 * (t - nret)
        return f"a[{r}:{r+3}]"

    def k_desc(self, blk, n, slot):
        return dict(kind="K", blk=blk, n=n, slot=slot, tag=("K", blk, n), need=("slot", slot, blk, n), cnt=4)

    def v_desc(self, blk, t, need=None):
        return dict(kind="V", blk=blk, t=t, tag=("V", blk, t), need=need, cnt=1)

    def issue_desc(self, d, pas):
        cfg = self.cfg
        if d["kind"] == "K":
            tile = d["n"] + (0 if d["blk"] == "A" else 16)
            self.e(f"s_add_u32 m0, s{sRING}, {d['slot']*4096}")
            self.e(f"s_mov_b32 s{sKO}, {tile*4096}")
            pol = cfg.KPOL
            if d["blk"] == "A" and 8 <= d["n"] < 8 + cfg.KRET and pas == 1:
                pol = ""
            for t in range(4):
                self.vm(f"buffer_load_dwordx4 v{vKD+t}, s[{sK}:{sK+3}], s{sKO} offen offset:{t*1024} {pol} lds",
                        tag=d["tag"] if t == 3 else None)
        elif d["kind"] == "V":
            gt = d["t"] + (0 if d["blk"] == "A" else 64)
            base = (gt >> 2) * 4096
            if getattr(self, "_vo", None) != base:
                self.e(f"s_mov_b32 s{sVO}, {base}")
                self._vo = base
            self.vm(f"buffer_load_dwordx4 {self.vreg_of(d['blk'], d['t'], pas)}, v{vVOFF}, s[{sV}:{sV+3}], s{sVO} offen offset:{(gt&3)*1024} {cfg.VPOL}",
                    tag=d["tag"])
        elif d["kind"] == "Q":
            t = d["t"]
            if t > 0:
                self.e(f"s_add_u32 s{sT2}, s{sT2}, 32768")
            self.vm(f"buffer_load_dwordx4 {self.vreg_of('Q', t, pas)}, v{vT1}, s[{sW}:{sW+3}], s{sT2} offen", tag=d["tag"])
        elif d["kind"] == "F":
            d["fn"]()

    def pump(self, pas, limit=None):
        n = 0
        while self.pending:
            d = self.pending[0]
            if d["need"] is not None and d["need"] not in self.ready:
                break
            if self.vm_outstanding() + d["cnt"] > self.cap:
                break
            if limit is not None and n + d["cnt"] > limit:
                break
            self.pending.pop(0)
            self.issue_desc(d, pas)
            n += d["cnt"]

    def force_issued(self, tag, pas):
        while tag not in self.vm_tags or self.vm_tags[tag] < 0:
            d = self.pending[0]
            assert d["need"] is None or d["need"] in self.ready, ("not ready", d, tag)
            if self.vm_outstanding() + d["cnt"] > self.cap:
                target = self.vm_n + d["cnt"] - self.cap
                self.e(f"s_waitcnt vmcnt({self.vm_n - target})")
                self.vm_done = max(self.vm_done, target)
            self.pending.pop(0)
            self.issue_desc(d, pas)

    def k_phase(self, tiles, pas):
        e = self.e

        def reads(i):
            blk, n, slot, resident, frees = tiles[i]
            if not resident:
                self.force_issued(("K", blk, n), pas)
                self.vm_wait(("K", blk, n))
            for s in range(4):
                self.ds(f"ds_read_b128 v[{vKF+4*s}:{vKF+4*s+3}], v{vKR+s} offset:{slot*4096}")

        def select(i):
            blk, n, slot, resident, frees = tiles[i]
            d = vD + 4 * (i & 1)
            e(f"s_lshl_b64 s[{sMK}:{sMK+1}], s[{sM0}:{sM0+1}], {n}")
            for r in range(4):
                e(f"v_cndmask_b32 v{vS+r}, v{vS+r}, v{d+r}, s[{sMK}:{sMK+1}]")

        reads(0)
        for i in range(len(tiles)):
            blk, n, slot, resident, frees = tiles[i]
            self.lg_wait_all()
            for tok in frees:
                self.ready.add(tok)
            d = vD + 4 * (i & 1)
            for s in range(4):
                c = "0" if s == 0 else f"v[{d}:{d+3}]"
                e(f"v_mfma_f32_16x16x32_bf16 v[{d}:{d+3}], v[{vKF+4*s}:{vKF+4*s+3}], v[{vQF+4*s}:{vQF+4*s+3}], {c}")
            self.pump(pas)
            if i + 1 < len(tiles):
                reads(i + 1)
            if i > 0:
                select(i - 1)
        select(len(tiles) - 1)

    def softmax(self, first):
        e = self.e
        a, b = vT0, vT1
        e(f"v_max3_f32 v{a}, v{vS}, v{vS+1}, v{vS+2}")
        e(f"v_max_f32 v{a}, v{a}, v{vS+3}")
        self.bfly_row("v_max_f32", [a])
        self.swap_reduce("v_max_f32", [a], [b], 16)
        self.swap_reduce("v_max_f32", [a], [b], 32)
        if first:
            e(f"v_mov_b32 v{vMR}, v{a}")
        else:
            e(f"v_max_f32 v{a}, v{a}, v{vMR}")
            e(f"v_sub_f32 v{b}, v{vMR}, v{a}")
            e(f"v_mul_f32 v{b}, s{sCS}, v{b}")
            e(f"v_exp_f32 v{b}, v{b}")
            e(f"v_mov_b32 v{vMR}, v{a}")
            for r in range(8):
                e(f"v_mul_f32 v{vO+r}, v{b}, v{vO+r}")
            e(f"v_mul_f32 v{vLR}, v{b}, v{vLR}")
        e(f"v_mul_f32 v{a}, s{sCS}, v{vMR}")
        for r in range(4):
            e(f"v_fma_f32 v{vS+r}, v{vS+r}, s{sCS}, -v{a}")
        for r in range(4):
            e(f"v_exp_f32 v{vS+r}, v{vS+r}")
        for r in range(4):
            e(f"v_cvt_pk_bf16_f32 v{vD+r}, v{vS+r}, v{vS+r}")
        for r in range(4):
            self.ds(f"ds_write_b32 v{vPW}, v{vD+r} offset:{r*144}")
        e(f"v_add_f32 v{vS}, v{vS}, v{vS+1}")
        e(f"v_add_f32 v{vS+2}, v{vS+2}, v{vS+3}")
        e(f"v_add_f32 v{vS}, v{vS}, v{vS+2}")
        if first:
            e(f"v_mov_b32 v{vLR}, v{vS}")
        else:
            e(f"v_add_f32 v{vLR}, v{vLR}, v{vS}")
        self.lg_wait_all()

    def v_phase(self, blk, pas, first, order, resident, frees, hooks):
        e = self.e
        groups = [order[i:i + 4] for i in range(0, len(order), 4)]
        for g in groups:
            assert g == list(range(g[0], g[0] + 4)) and g[0] % 4 == 0

        def pread(gi):
            p = vP0 if (gi & 1) == 0 else vP1
            self.ds(f"ds_read_b128 v[{p}:{p+3}], v{vPR} offset:{groups[gi][0]*4}", tag=("P", gi))

        def bbuild(pos, half):
            gi, k = pos // 4, pos % 4
            p = (vP0 if (gi & 1) == 0 else vP1) + k
            b = vB0 if (pos & 1) == 0 else vB1
            for jj in (2 * half, 2 * half + 1):
                e(f"v_and_b32 v{b+jj}, v{p}, v{vM+jj}")

        pread(0)
        self.lg_wait(("P", 0))
        if len(groups) > 1:
            pread(1)
        bbuild(0, 0); bbuild(0, 1)
        for pos, u in enumerate(order):
            if pos in hooks:
                hooks[pos]()
            b = vB0 if (pos & 1) == 0 else vB1
            nxt = pos + 1 < len(order)
            if nxt and (pos + 1) % 4 == 0:
                self.lg_wait(("P", (pos + 1) // 4))
            for half in range(2):
                t = 2 * u + half
                if not resident(t):
                    self.force_issued(("V", blk, t), pas)
                    self.vm_wait(("V", blk, t))
                if nxt:
                    bbuild(pos + 1, half)
                o = vO + 4 * half
                c = "0" if (first and pos == 0) else f"v[{o}:{o+3}]"
                e(f"v_mfma_f32_16x16x32_bf16 v[{o}:{o+3}], {self.vreg_of(blk, t, pas)}, v[{b}:{b+3}], {c}")
            if nxt and (pos + 1) % 4 == 0 and (pos + 1) // 4 + 1 < len(groups):
                pread((pos + 1) // 4 + 1)
            for tok in frees.get(u, []):
                self.ready.add(tok)
            self.pump(pas)

    def w_dma(self, vtmp, cond=False, tag=None):
        e = self.e
        e(f"v_lshrrev_b32 v{vtmp}, 1, v{vLANE}")
        e(f"v_mul_lo_u32 v{vtmp}, v{vtmp}, s{sT1}")
        e(f"v_and_b32 v{vtmp+1}, 1, v{vLANE}")
        e(f"v_lshl_add_u32 v{vtmp}, v{vtmp+1}, 4, v{vtmp}")
        e(f"s_lshl_b32 s{sT3}, s{sT1}, 5")
        for i in range(4):
            e(f"s_add_u32 m0, s{sWB}, {i*1024}")
            if i > 0:
                e(f"s_add_u32 s{sT2}, s{sT2}, s{sT3}")
            self.vm(f"buffer_load_dwordx4 v{vtmp}, s[{sW}:{sW+3}], s{sT2} offen lds", tag=tag if i == 3 else None, cond=cond)

    def w_frags(self, dst, vtmp):
        e = self.e
        e(f"v_lshrrev_b32 v{vtmp}, 4, v{vLANE}")
        e(f"v_lshlrev_b32 v{vtmp}, 3, v{vtmp}")
        e(f"v_bfe_u32 v{vtmp+1}, v{vLANE}, 2, 2")
        e(f"v_add_u32 v{vtmp}, v{vtmp}, v{vtmp+1}")
        e(f"v_lshlrev_b32 v{vtmp}, 5, v{vtmp}")
        e(f"v_and_b32 v{vtmp+1}, 3, v{vLANE}")
        e(f"v_lshl_add_u32 v{vtmp}, v{vtmp+1}, 3, v{vtmp}")
        e(f"v_add_u32 v{vtmp}, s{sWB}, v{vtmp}")
        for s in range(4):
            self.ds(f"ds_read_b64_tr_b16 v[{dst+4*s}:{dst+4*s+1}], v{vtmp} offset:{s*1024}")
            self.ds(f"ds_read_b64_tr_b16 v[{dst+4*s+2}:{dst+4*s+3}], v{vtmp} offset:{s*1024+128}")

    def set_wo(self):
        e = self.e
        self.srd(sW, sWO, 4096 * 512 * 2)
        e(f"s_mov_b32 s{sT1}, 1024")
        e(f"s_lshl_b32 s{sT2}, s{sH}, 17")
        e(f"s_lshl_b32 s{sT3}, s{sJ}, 7")
        e(f"s_add_u32 s{sT2}, s{sT2}, s{sT3}")
        e(f"s_lshl_b32 s{sT3}, s{sWAVE}, 5")
        e(f"s_add_u32 s{sT2}, s{sT2}, s{sT3}")

    def set_wq(self):
        e = self.e
        self.srd(sW, sWQ, 512 * 4096 * 2)
        e(f"s_mov_b32 s{sT1}, 8192")
        e(f"s_lshr_b32 s{sT2}, s{sJ}, 1")
        e(f"s_lshl_b32 s{sT2}, s{sT2}, 20")
        e(f"s_lshl_b32 s{sT3}, s{sH}, 8")
        e(f"s_add_u32 s{sT2}, s{sT2}, s{sT3}")
        e(f"s_and_b32 s{sT3}, s{sJ}, 1")
        e(f"s_lshl_b32 s{sT3}, s{sT3}, 7")
        e(f"s_add_u32 s{sT2}, s{sT2}, s{sT3}")
        e(f"s_lshl_b32 s{sT3}, s{sWAVE}, 5")
        e(f"s_add_u32 s{sT2}, s{sT2}, s{sT3}")

    def set_w1(self):
        e = self.e
        self.srd(sW, sW1, 512 * 1792 * 2)
        e(f"s_mov_b32 s{sT1}, 3584")
        e(f"s_mul_i32 s{sT2}, s{sWAVE}, {128*3584}")
        e(f"s_lshl_b32 s{sT3}, s2, 5")
        e(f"s_add_u32 s{sT2}, s{sT2}, s{sT3}")

    def stage1_dma(self):
        self.set_wo()
        self.w_dma(vT0, tag="wo")

    def stage2_dma(self):
        lf, lj = self.lab("Ls2"), self.lab("Ls2j")
        self.e(f"s_cmp_lt_u32 s2, {NF}")
        self.e(f"s_cbranch_scc1 {lf}")
        self.set_wq()
        self.e(f"s_branch {lj}")
        self.label(lf)
        self.set_w1()
        self.label(lj)
        self.w_dma(vT0, tag="w2nd")

    def last_block_hooks(self, pas):
        def h0():
            if pas == 1:
                self.arrival_load()
            L = self.L
            self.vm_wait("wo")
            self.w_frags(vQF, vT0)
            self.bfly_row("v_add_f32", [vLR])
            self.swap_reduce("v_add_f32", [vLR], [vT0], 16)
            self.swap_reduce("v_add_f32", [vLR], [vT0], 32)
            self.e(f"s_lshl_b32 s{sT0}, s{sWAVE}, 3")
            self.e(f"s_add_u32 s{sT0}, s{sT0}, {L['ML']}")
            self.e(f"v_mov_b32 v{vT0}, s{sT0}")
            self.ds(f"ds_write_b64 v{vT0}, v[{vMR}:{vMR+1}]")
            self.lg_wait_all()
            self.stage2_dma()
        return h0

    def pass1(self):
        cfg = self.cfg
        NR = cfg.NR
        assert NR == 8
        pas = 1
        self._vo = None
        kB = [("B", n, n % NR, False, [("slot", n % NR, "B", n + 8)] if n < 8 else [("slot", n % NR, "A", n)]) for n in range(16)]
        self.k_phase(kB, pas)
        self.stamp(6)
        self.softmax(first=True)
        self.v_phase("B", pas, True, list(range(32)), lambda t: False,
                     {31: [("tmpfree",)]}, {})
        self.stamp(7)
        kA = [("A", n, n % NR, False, [("slot", n % NR, "A", n - 8)]) for n in range(8, 16)] + \
             [("A", n, n, False, []) for n in range(8)]
        self.k_phase(kA, pas)
        self.stamp(8)
        self.softmax(first=False)
        if cfg.CAPEND: self.cap = cfg.CAPEND
        self.v_phase("A", pas, False, list(range(32)), lambda t: False, {}, {0: self.last_block_hooks(1)})
        self.cap = cfg.CAP
        assert not self.pending, self.pending
        self.arrival_check()

    def pass1_list(self):
        cfg = self.cfg
        nret = (256 - cfg.NWORK) // 4
        ls = [dict(kind="Q", t=t, tag=("V", "Q", t), need=None, cnt=1) for t in range(32)]
        k0 = [self.k_desc("B", n, n) for n in range(8)]
        for d in k0:
            d["need"] = None
        ls += k0
        vb = lambda t: self.v_desc("B", t, need=("qdone",) if t >= nret else None)
        ls += [vb(t) for t in range(cfg.INIT_V)]
        ls += [self.k_desc("B", n, n % 8) for n in range(8, 16)]
        ls += [vb(t) for t in range(cfg.INIT_V, 64)]
        ls += [self.k_desc("A", n, n % 8) for n in range(8, 16)]
        ls += [self.k_desc("A", n, n % 8) for n in range(0, 8)]
        ls += [dict(kind="F", fn=self.stage1_dma, need=None, cnt=4, tag="wo")]
        ntmp = 64 - nret
        ls += [self.v_desc("A", t, need=("tmpfree",) if t < ntmp else None) for t in range(64)]
        return ls

    def pass2(self):
        cfg = self.cfg
        pas = 2
        nret = (256 - cfg.NWORK) // 4
        self._vo = None
        for k in list(self.vm_tags):
            if isinstance(k, tuple) and k[0] in ("K", "V"):
                del self.vm_tags[k]
        self.vm_tags.pop("wo", None); self.vm_tags.pop("w2nd", None)
        self.ready = set()
        ls = []
        ls += [self.k_desc("A", n, n % 8) for n in range(8, 16)]
        ls += [self.k_desc("B", n, n % 8) for n in range(0, 16)]
        ls += [dict(kind="F", fn=self.stage1_dma, need=None, cnt=4, tag="wo")]
        ls += [self.v_desc("B", t, need=("afree",)) for t in range(nret, 64)]
        self.pending = ls
        kA = [("A", n, n, True, [("slot", n, "A", n + 8)]) for n in range(8)] + \
             [("A", n, n % 8, False, [("slot", n % 8, "B", n - 8)]) for n in range(8, 16)]
        self.k_phase(kA, pas)
        self.stamp(38)
        self.softmax(first=True)
        self.v_phase("A", pas, True, list(range(32)), lambda t: True, {31: [("afree",)]}, {})
        self.stamp(39)
        kB = [("B", n, n % 8, False, [("slot", n % 8, "B", n + 8)] if n < 8 else []) for n in range(16)]
        if cfg.CAPEND: self.cap = cfg.CAPEND
        self.k_phase(kB, pas)
        self.stamp(40)
        self.softmax(first=False)
        self.v_phase("B", pas, False, list(range(32)), lambda t: t < nret, {}, {0: self.last_block_hooks(2)})
        assert not self.pending, self.pending

    def prologue(self):
        cfg, L, e = self.cfg, self.L, self.e
        e("s_cmp_ge_u32 s2, 256")
        e("s_cbranch_scc1 L_exit")
        self.stamp(0)
        e("s_load_dwordx4 s[4:7], s[0:1], 8")
        e(f"s_load_dwordx2 s[{sX}:{sX+1}], s[0:1], 0")
        e(f"s_load_dwordx4 s[{sWQ}:{sWQ+3}], s[0:1], 24")
        e(f"s_load_dwordx2 s[{sT4}:{sT4+1}], s[0:1], 96")
        e(f"s_load_dwordx2 s[{sW1}:{sW1+1}], s[0:1], 48")
        e(f"s_load_dwordx2 s[{sB1}:{sB1+1}], s[0:1], 56")
        e(f"s_load_dwordx2 s[{sW2}:{sW2+1}], s[0:1], 64")
        e(f"s_load_dwordx2 s[{sB2}:{sB2+1}], s[0:1], 72")
        e(f"s_load_dwordx4 s[{sOUT}:{sOUT+3}], s[0:1], 80")
        e(f"v_lshrrev_b32 v{vT0}, 6, v0")
        e(f"v_and_b32 v{vLANE}, 63, v0")
        e(f"v_readfirstlane_b32 s{sWAVE}, v{vT0}")
        if cfg.XMAP:
            e(f"s_and_b32 s{sH}, s2, 7")
            e(f"s_lshl_b32 s{sH}, s{sH}, 2")
            e(f"s_bfe_u32 s{sJ}, s2, 0x20003")
            e(f"s_add_u32 s{sH}, s{sH}, s{sJ}")
            e(f"s_lshr_b32 s{sJ}, s2, 5")
        else:
            e(f"s_lshr_b32 s{sH}, s2, 3")
            e(f"s_and_b32 s{sJ}, s2, 7")
        e(f"s_lshr_b32 s{sB}, s{sJ}, 2")
        e(f"s_and_b32 s{sC}, s{sJ}, 3")
        e(f"s_lshl_b32 s{sBLK}, s{sH}, 3")
        e(f"s_add_u32 s{sBLK}, s{sBLK}, s{sJ}")
        e(f"s_lshl_b32 s{sBLK}, s{sBLK}, 14")
        e(f"s_lshl_b32 s{sBLKW}, s2, 14")
        e(f"s_mov_b32 s{sL}, 0")
        e(f"s_mul_i32 s{sRING}, s{sWAVE}, {cfg.NR*4096}")
        e(f"s_lshl_b32 s{sWB}, s{sWAVE}, 12")
        e(f"s_add_u32 s{sWB}, s{sWB}, {L['W']}")
        e(f"s_mov_b32 s{sM0}, 0x00010001"); e(f"s_mov_b32 s{sM0+1}, 0x00010001")
        e(f"s_mov_b32 s{sLT8}, 0x00ff00ff"); e(f"s_mov_b32 s{sLT8+1}, 0x00ff00ff")
        e(f"s_mov_b32 s{sN2}, 0x00030003"); e(f"s_mov_b32 s{sN2+1}, 0x00030003")
        e(f"s_mov_b32 s{sN3}, 0x00070007"); e(f"s_mov_b32 s{sN3+1}, 0x00070007")
        e(f"s_mov_b32 s{sCS}, {hex(f2u(SCALE))}")
        e(f"s_lshl_b32 s{sT0}, s{sB}, 5")
        e(f"s_add_u32 s{sT0}, s{sT0}, s{sH}")
        e(f"s_lshl_b32 s{sT0}, s{sT0}, 21")
        e(f"s_lshl_b32 s{sT1}, s{sC}, 19")
        e(f"s_add_u32 s{sT0}, s{sT0}, s{sT1}")
        e(f"s_lshl_b32 s{sT1}, s{sWAVE}, 17")
        e(f"s_add_u32 s{sT0}, s{sT0}, s{sT1}")
        e(f"v_lshlrev_b32 v{vVOFF}, 4, v{vLANE}")
        e(f"v_lshrrev_b32 v{vT1}, 4, v{vLANE}")
        e(f"v_lshlrev_b32 v{vT1}, 13, v{vT1}")
        e(f"v_and_b32 v{vT0}, 15, v{vLANE}")
        e(f"v_lshl_add_u32 v{vT1}, v{vT0}, 4, v{vT1}")
        e(f"s_lshl_b32 s{sT2}, s{sWAVE}, 20")
        e(f"s_lshl_b32 s{sT3}, s{sH}, 8")
        e(f"s_add_u32 s{sT2}, s{sT2}, s{sT3}")
        e("s_waitcnt lgkmcnt(0)")
        e(f"s_add_u32 s{sV}, s6, s{sT0}")
        e(f"s_addc_u32 s{sV+1}, s7, 0")
        e(f"s_and_b32 s{sV+1}, s{sV+1}, 0xffff")
        e(f"s_mov_b32 s{sV+2}, 131072")
        e(f"s_mov_b32 s{sV+3}, 0x20000")
        self.srd(sK, 4, 131072, add=sT0)
        self.srd(sWS, sT4, 256 * BLK + (1 << 20))
        self.c("clear own hand-off slots")
        for r in range(4):
            e(f"v_mov_b32 v{vD+r}, -1")
        e(f"s_cmp_eq_u32 s{sWAVE}, 3")
        e(f"s_cselect_b32 s{sT1}, s{sBLKW}, s{sBLK}")
        e(f"s_lshl_b32 s{sT0}, s{sWAVE}, 10")
        e(f"s_add_u32 s{sT1}, s{sT0}, s{sT1}")
        self.vm(f"buffer_store_dwordx4 v[{vD}:{vD+3}], v{vVOFF}, s[{sWS}:{sWS+3}], s{sT1} offen sc1")
        e(f"s_add_u32 s{sT1}, s{sT1}, {LOFF}")
        self.vm(f"buffer_store_dwordx4 v[{vD}:{vD+3}], v{vVOFF}, s[{sWS}:{sWS+3}], s{sT1} offen sc1")
        lnf = self.lab("Lnf")
        e(f"s_cmp_lt_u32 s2, {NF}")
        e(f"s_cbranch_scc0 {lnf}")
        e(f"s_add_u32 s{sT0}, s{sT0}, s{sBLKW}")
        e(f"s_add_u32 s{sT0}, s{sT0}, {FP}")
        e(f"s_add_u32 s{sT1}, s{sT0}, {LOFF}")
        self.vm(f"buffer_store_dwordx4 v[{vD}:{vD+3}], v{vVOFF}, s[{sWS}:{sWS+3}], s{sT0} offen sc1", cond=True)
        self.vm(f"buffer_store_dwordx4 v[{vD}:{vD+3}], v{vVOFF}, s[{sWS}:{sWS+3}], s{sT1} offen sc1", cond=True)
        self.label(lnf)
        self.srd(sW, sX, 2048)
        lnr = self.lab("Lnr")
        e(f"s_cmp_ge_u32 s2, {R0}")
        e(f"s_cbranch_scc0 {lnr}")
        e(f"s_sub_u32 s{sT0}, s2, {R0}")
        e(f"s_lshl_b32 s{sT0}, s{sT0}, 6")
        e(f"v_and_b32 v{vT0}, 7, v{vLANE}")
        e(f"v_lshlrev_b32 v{vT0}, 3, v{vT0}")
        self.vm(f"buffer_load_dwordx2 v[{vO}:{vO+1}], v{vT0}, s[{sW}:{sW+3}], s{sT0} offen", cond=True)
        self.label(lnr)
        e(f"s_lshl_b32 s{sT0}, s{sB}, 10")
        self.vm(f"buffer_load_dwordx4 v[{vS}:{vS+3}], v{vVOFF}, s[{sW}:{sW+3}], s{sT0} offen", tag="xrow")
        self.srd(sW, sWQ, 512 * 4096 * 2)
        self.pending = self.pass1_list()
        self.cap = cfg.CAP0
        self._vo = None
        self.pump(1, limit=32)
        self.consts()
        self.pump(1)
        self.stamp(1)
        e(f"v_and_b32 v{vD}, 31, v{vLANE}")
        e(f"v_lshlrev_b32 v{vD}, 3, v{vD}")
        e(f"v_add_u32 v{vD}, {L['XQ']+512}, v{vD}")
        e(f"v_mov_b32 v{vD+2}, 0x3f803f80"); e(f"v_mov_b32 v{vD+3}, 0x3f803f80")
        self.ds(f"ds_write_b64 v{vD}, v[{vD+2}:{vD+3}]")
        self.vm_wait("xrow")
        self.stamp(3)
        x = vD
        for r in range(4):
            e(f"v_lshlrev_b32 v{x+2*r}, 16, v{vS+r}")
            e(f"v_and_b32 v{x+2*r+1}, 0xffff0000, v{vS+r}")
        e(f"v_add_f32 v{vMR}, v{x}, v{x+1}")
        e(f"v_mul_f32 v{vLR}, v{x}, v{x}")
        e(f"v_fmac_f32 v{vLR}, v{x+1}, v{x+1}")
        for r in range(2, 8):
            e(f"v_add_f32 v{vMR}, v{vMR}, v{x+r}")
            e(f"v_fmac_f32 v{vLR}, v{x+r}, v{x+r}")
        lnr2 = self.lab("Lnr2")
        e(f"s_cmp_ge_u32 s2, {R0}")
        e(f"s_cbranch_scc0 {lnr2}")
        e(f"v_lshlrev_b32 v{vO+4}, 16, v{vO}")
        e(f"v_and_b32 v{vO+5}, 0xffff0000, v{vO}")
        e(f"v_lshlrev_b32 v{vO+6}, 16, v{vO+1}")
        e(f"v_and_b32 v{vO+7}, 0xffff0000, v{vO+1}")
        e(f"v_and_b32 v{vT0}, 7, v{vLANE}")
        e(f"v_lshlrev_b32 v{vT0}, 4, v{vT0}")
        e(f"v_add_u32 v{vT0}, {L['XRES']}, v{vT0}")
        e(f"ds_write_b128 v{vT0}, v[{vO+4}:{vO+7}]")
        self.label(lnr2)
        self.bfly_row("v_add_f32", [vMR, vLR])
        self.swap_reduce("v_add_f32", [vMR, vLR], [vT0, vT1], 16)
        self.swap_reduce("v_add_f32", [vMR, vLR], [vT0, vT1], 32)
        self.mean_rstd(vMR, vLR, None)
        for r in range(8):
            e(f"v_sub_f32 v{x+r}, v{x+r}, v{vMR}")
        for r in range(8):
            e(f"v_mul_f32 v{x+r}, v{vLR}, v{x+r}")
        for r in range(8):
            e(f"v_cvt_pk_bf16_f32 v{x+r}, v{x+r}, v{x+r}")
        e(f"s_mul_i32 s{sT0}, s{sWAVE}, 1152")
        e(f"s_add_u32 s{sT0}, s{sT0}, {L['PBUF']}")
        e(f"v_and_b32 v{vT0}, 15, v{vLANE}")
        e(f"v_lshlrev_b32 v{vT0}, 2, v{vT0}")
        e(f"v_add_u32 v{vT0}, s{sT0}, v{vT0}")
        e(f"s_lshl_b32 s{sT0}, s{sWAVE}, 4")
        e(f"s_mov_b64 s[{sMK}:{sMK+1}], 0xffff")
        e(f"s_lshl_b64 s[{sMK}:{sMK+1}], s[{sMK}:{sMK+1}], s{sT0}")
        e(f"s_mov_b64 exec, s[{sMK}:{sMK+1}]")
        for r in range(8):
            self.ds(f"ds_write_b32 v{vT0}, v{x+r} offset:{r*144}")
        e("s_mov_b64 exec, -1")
        self.lg_wait_all()
        self.stamp(4)
        self.v_phase("Q", 1, True, list(range(16)), lambda t: False, {15: [("qdone",)]}, {})
        self.cap = cfg.CAP
        self.stamp(2)
        t = vS
        e(f"v_and_b32 v{vT0}, 15, v{vLANE}")
        e(f"v_lshrrev_b32 v{vT1}, 3, v{vT0}")
        e(f"s_lshl_b32 s{sT0}, s{sWAVE}, 1")
        e(f"v_add_u32 v{vT1}, s{sT0}, v{vT1}")
        e(f"v_lshlrev_b32 v{vT1}, 9, v{vT1}")
        e(f"v_and_b32 v{vT0}, 7, v{vT0}")
        e(f"v_lshl_add_u32 v{vT1}, v{vT0}, 2, v{vT1}")
        e(f"v_lshrrev_b32 v{vT0}, 4, v{vLANE}")
        e(f"v_lshl_add_u32 v{vT1}, v{vT0}, 7, v{vT1}")
        e(f"v_add_u32 v{vT1}, {L['RED']}, v{vT1}")
        for r in range(4):
            e(f"v_cndmask_b32 v{t+r}, v{vO+4+r}, v{vO+r}, s[{sLT8}:{sLT8+1}]")
        for r in range(4):
            e(f"ds_write_b32 v{vT1}, v{t+r} offset:{r*32}")
        e(f"s_and_b32 s{sT0}, s{sWAVE}, 1")
        e(f"s_lshl_b32 s{sT0}, s{sT0}, 8")
        e(f"v_lshlrev_b32 v{vT0}, 2, v{vLANE}")
        e(f"v_add_u32 v{vT0}, s{sT0}, v{vT0}")
        e(f"v_lshrrev_b32 v{vT1}, 1, v{vT0}")
        e(f"v_add_u32 v{vT1}, {L['QBUF']}, v{vT1}")
        e(f"v_add_u32 v{vT0}, {L['RED']}, v{vT0}")
        e("s_waitcnt lgkmcnt(0)")
        e("s_barrier")
        t = vD
        for p in range(8):
            e(f"ds_read_b32 v{t+p}, v{vT0} offset:{p*512}")
        la = self.lab("Larr")
        e(f"s_cmp_lg_u32 s{sWAVE}, 0")
        e(f"s_cbranch_scc1 {la}")
        self.srd(sW, sDBG, 256)
        e(f"s_lshl_b32 s{sT1}, s{sH}, 2")
        e(f"v_mov_b32 v{vS}, s{sT1}")
        e(f"v_mov_b32 v{vS+1}, 1")
        e("s_mov_b64 exec, 1")
        self.vm(f"buffer_atomic_add v{vS+1}, v{vS}, s[{sW}:{sW+3}], 0 offen sc1", cond=True)
        e("s_mov_b64 exec, -1")
        self.label(la)
        e("s_waitcnt lgkmcnt(0)")
        for p in range(0, 8, 2):
            e(f"v_add_f32 v{t+p}, v{t+p}, v{t+p+1}")
        e(f"v_add_f32 v{t}, v{t}, v{t+2}")
        e(f"v_add_f32 v{t+4}, v{t+4}, v{t+6}")
        e(f"v_add_f32 v{t}, v{t}, v{t+4}")
        e(f"v_cvt_pk_bf16_f32 v{t}, v{t}, v{t}")
        e(f"ds_write_b16 v{vT1}, v{t}")
        e(f"v_and_b32 v{vT0}, 48, v{vLANE}")
        e(f"v_add_u32 v{vT0}, {L['QBUF']}, v{vT0}")
        e("s_waitcnt lgkmcnt(0)")
        e("s_barrier")
        for s in range(4):
            e(f"ds_read_b128 v[{vQF+4*s}:{vQF+4*s+3}], v{vT0} offset:{s*64}")
        e("s_waitcnt lgkmcnt(0)")
        self.stamp(5)

    def arrival_load(self):
        e = self.e
        l = self.lab("Lal")
        e(f"s_cmp_lg_u32 s{sWAVE}, 0")
        e(f"s_cbranch_scc1 {l}")
        self.srd(sW, sDBG, 256)
        e(f"v_and_b32 v{vS+1}, 31, v{vLANE}")
        e(f"v_lshlrev_b32 v{vS+1}, 2, v{vS+1}")
        self.vm(f"buffer_load_dword v{vS}, v{vS+1}, s[{sW}:{sW+3}], 0 offen sc1", cond=True)
        self.label(l)

    def arrival_check(self):
        e = self.e
        l = self.lab("Lac")
        e(f"s_cmp_lg_u32 s{sWAVE}, 0")
        e(f"s_cbranch_scc1 {l}")
        e("s_waitcnt vmcnt(0)")
        e(f"v_cmp_gt_u32 vcc, 8, v{vS}")
        e(f"s_cbranch_vccz {l}")
        self.srd(sW, sDBG, 256)
        lp = self.poll_begin()
        e(f"buffer_load_dword v{vS}, v{vS+1}, s[{sW}:{sW+3}], 0 offen sc1")
        e("s_waitcnt vmcnt(0)")
        e(f"v_cmp_gt_u32 vcc, 8, v{vS}")
        self.poll_end(lp)
        self.label(l)

    def stats_partial(self, x):
        e = self.e
        e(f"v_add_f32 v{vMR}, v{x}, v{x+1}")
        e(f"v_mul_f32 v{vLR}, v{x}, v{x}")
        e(f"v_add_f32 v{vMR}, v{vMR}, v{x+2}")
        e(f"v_fmac_f32 v{vLR}, v{x+1}, v{x+1}")
        e(f"v_add_f32 v{vMR}, v{vMR}, v{x+3}")
        e(f"v_fmac_f32 v{vLR}, v{x+2}, v{x+2}")
        e(f"v_fmac_f32 v{vLR}, v{x+3}, v{x+3}")
        self.bfly_row("v_add_f32", [vMR, vLR])
        self.swap_reduce("v_add_f32", [vMR, vLR], [vT0, vT1], 16)

    def qe(self):
        cfg, L, e = self.cfg, self.L, self.e
        self.label("L_QE")
        e("s_barrier")
        self.stamp(34)
        e(f"v_and_b32 v{vT0}, 15, v{vLANE}")
        e(f"v_min_u32 v{vT1}, 2, v{vT0}")
        e(f"v_lshlrev_b32 v{vT1}, 8, v{vT1}")
        e(f"v_and_b32 v{vO}, 48, v{vLANE}")
        e(f"v_add_u32 v{vT1}, v{vT1}, v{vO}")
        e(f"v_add_u32 v{vT1}, {L['XQ']}, v{vT1}")
        e(f"v_lshlrev_b32 v{vT0}, 8, v{vT0}")
        e(f"v_add_u32 v{vT0}, v{vT0}, v{vO}")
        for s in range(4):
            e(f"ds_read_b128 v[{vD+4*s}:{vD+4*s+3}], v{vT1} offset:{s*64}")
        e(f"s_lshl_b32 s{sT0}, s{sWAVE}, 6")
        e(f"s_add_u32 s{sT0}, s{sT0}, s{sBLK}")
        e(f"s_add_u32 s{sT0}, s{sT0}, s{sL}")
        e("s_waitcnt lgkmcnt(0)")
        d = vO + 4
        for s in range(4):
            c = "0" if s == 0 else f"v[{d}:{d+3}]"
            e(f"v_mfma_f32_16x16x32_bf16 v[{d}:{d+3}], v[{vKF+4*s}:{vKF+4*s+3}], v[{vD+4*s}:{vD+4*s+3}], {c}")
        e(f"s_mov_b64 exec, s[{sN3}:{sN3+1}]")
        e(f"buffer_store_dwordx4 v[{d}:{d+3}], v{vT0}, s[{sWS}:{sWS+3}], s{sT0} offen offset:{QP} sc1")
        e("s_mov_b64 exec, -1")
        e(f"s_cmp_lg_u32 s{sWAVE}, 0")
        e("s_cbranch_scc1 L_QE_wait")
        e(f"v_lshrrev_b32 v{vT0}, 5, v{vLANE}")
        e(f"v_lshlrev_b32 v{vT0}, 3, v{vT0}")
        e(f"s_add_u32 s{sT0}, s{sBLK}, s{sL}")
        e("s_mov_b32 exec_lo, 1"); e("s_mov_b32 exec_hi, 1")
        e(f"buffer_store_dwordx2 v[{vMR}:{vMR+1}], v{vT0}, s[{sWS}:{sWS+3}], s{sT0} offen offset:{QST} sc1")
        e("s_mov_b64 exec, -1")
        e(f"v_bfe_u32 v{vT0}, v{vLANE}, 4, 1")
        e(f"v_lshrrev_b32 v{vT1}, 5, v{vLANE}")
        e(f"v_lshl_add_u32 v{vT0}, v{vT1}, 1, v{vT0}")
        e(f"v_lshlrev_b32 v{vT0}, 14, v{vT0}")
        e(f"v_and_b32 v{vT1}, 15, v{vLANE}")
        e(f"v_lshl_add_u32 v{vT0}, v{vT1}, 4, v{vT0}")
        e(f"s_lshl_b32 s{sT0}, s{sH}, 17")
        e(f"s_add_u32 s{sT0}, s{sT0}, s{sL}")
        e(f"s_lshl_b32 s{sT1}, s{sB}, 8")
        e(f"s_add_u32 s{sT1}, s{sT1}, s{sT0}")
        e(f"s_add_u32 s{sT2}, s{sT1}, {4*BLK}")
        e(f"v_and_b32 v{vT1}, 3, v{vLANE}")
        e(f"v_lshlrev_b32 v{vT1}, 15, v{vT1}")
        e(f"s_lshl_b32 s{sT3}, s{sB}, 3")
        e(f"s_add_u32 s{sT3}, s{sT3}, s{sT0}")
        e(f"s_add_u32 s{sT4}, s{sT0}, 512")
        e(f"s_add_u32 s{sT5}, s{sT4}, {4*BLK}")
        cs = vD + 12
        lp = self.poll_begin()
        e(f"buffer_load_dwordx4 v[{vD}:{vD+3}], v{vT0}, s[{sWS}:{sWS+3}], s{sT1} offen offset:{QP} sc1")
        e(f"buffer_load_dwordx4 v[{vD+4}:{vD+7}], v{vT0}, s[{sWS}:{sWS+3}], s{sT2} offen offset:{QP} sc1")
        e(f"buffer_load_dwordx2 v[{vD+8}:{vD+9}], v{vT1}, s[{sWS}:{sWS+3}], s{sT3} offen offset:{QST} sc1")
        e(f"buffer_load_dwordx4 v[{cs}:{cs+3}], v{vT0}, s[{sWS}:{sWS+3}], s{sT4} offen offset:{QP} sc1")
        e(f"buffer_load_dwordx4 v[{vKF}:{vKF+3}], v{vT0}, s[{sWS}:{sWS+3}], s{sT5} offen offset:{QP} sc1")
        e("s_waitcnt vmcnt(0)")
        self.poll_check(list(range(vD, vD + 10)) + list(range(cs, cs + 4)) + list(range(vKF, vKF + 4)), vKF + 4)
        self.poll_end(lp)
        self.stamp(36)
        for r in range(4):
            e(f"v_add_f32 v{cs+r}, v{cs+r}, v{vKF+r}")
            e(f"v_add_f32 v{vD+r}, v{vD+r}, v{vD+4+r}")
        self.swap_reduce("v_add_f32", [cs + r for r in range(4)] + [vD + r for r in range(4)],
                         [vKF + r for r in range(4)] + [vD + 4 + r for r in range(4)], 32)
        s1, s2 = vD + 8, vD + 9
        for qp in ("[1,0,3,2]", "[2,3,0,1]"):
            for r in (s1, s2):
                e(f"v_add_f32_dpp v{r}, v{r}, v{r} quad_perm:{qp} row_mask:0xf bank_mask:0xf")
        self.mean_rstd(s1, s2, vD + 10)
        for r in range(4):
            e(f"v_fma_f32 v{vD+r}, -v{s1}, v{cs+r}, v{vD+r}")
        for r in range(4):
            e(f"v_mul_f32 v{vD+r}, v{s2}, v{vD+r}")
        e(f"v_cvt_pk_bf16_f32 v{vD+4}, v{vD}, v{vD+1}")
        e(f"v_cvt_pk_bf16_f32 v{vD+5}, v{vD+2}, v{vD+3}")
        e(f"v_and_b32 v{vT0}, 31, v{vLANE}")
        e(f"v_lshlrev_b32 v{vT0}, 3, v{vT0}")
        e(f"v_add_u32 v{vT0}, {L['QBUF']}, v{vT0}")
        e(f"ds_write_b64 v{vT0}, v[{vD+4}:{vD+5}]")
        self.label("L_QE_wait")
        e(f"v_and_b32 v{vT1}, 48, v{vLANE}")
        e(f"v_add_u32 v{vT1}, {L['QBUF']}, v{vT1}")
        e("s_waitcnt lgkmcnt(0)")
        e("s_barrier")
        for s in range(4):
            e(f"ds_read_b128 v[{vQF+4*s}:{vQF+4*s+3}], v{vT1} offset:{s*64}")
        e("s_waitcnt lgkmcnt(0)")
        self.stamp(37)

    def mean_rstd(self, s1, s2, t):
        e = self.e
        e(f"v_mul_f32 v{s1}, {hex(f2u(1/512))}, v{s1}")
        e(f"v_mul_f32 v{s2}, {hex(f2u(1/512))}, v{s2}")
        e(f"v_fma_f32 v{s2}, -v{s1}, v{s1}, v{s2}")
        e(f"v_max_f32 v{s2}, 0, v{s2}")
        e(f"v_add_f32 v{s2}, {hex(f2u(1e-5))}, v{s2}")
        e(f"v_rsq_f32 v{s2}, v{s2}")

    def tail(self):
        cfg, L, e = self.cfg, self.L, self.e
        self.label("L_TAIL")
        self.stamp(9, True)
        t = vD
        e(f"v_and_b32 v{vT0}, 15, v{vLANE}")
        e(f"v_lshrrev_b32 v{vT1}, 3, v{vT0}")
        e(f"s_lshl_b32 s{sT0}, s{sWAVE}, 1")
        e(f"v_add_u32 v{vT1}, s{sT0}, v{vT1}")
        e(f"v_lshlrev_b32 v{vT1}, 9, v{vT1}")
        e(f"v_and_b32 v{vT0}, 7, v{vT0}")
        e(f"v_lshl_add_u32 v{vT1}, v{vT0}, 2, v{vT1}")
        e(f"v_lshrrev_b32 v{vT0}, 4, v{vLANE}")
        e(f"v_lshl_add_u32 v{vT1}, v{vT0}, 7, v{vT1}")
        e(f"v_add_u32 v{vT1}, {L['RED']}, v{vT1}")
        for r in range(4):
            e(f"v_cndmask_b32 v{t+r}, v{vO+4+r}, v{vO+r}, s[{sLT8}:{sLT8+1}]")
        for r in range(4):
            e(f"ds_write_b32 v{vT1}, v{t+r} offset:{r*32}")
        dv = 2
        e(f"s_and_b32 s{sT0}, s{sWAVE}, 1")
        e(f"s_lshl_b32 s{sT0}, s{sT0}, 8")
        e(f"v_lshlrev_b32 v{dv}, 2, v{vLANE}")
        e(f"v_add_u32 v{dv}, s{sT0}, v{dv}")
        e(f"v_add_u32 v{vT0}, {L['RED']}, v{dv}")
        e(f"v_mov_b32 v{vT1}, {L['ML']}")
        e("s_waitcnt lgkmcnt(0)")
        e("s_barrier")
        for p in range(8):
            e(f"ds_read_b32 v{t+p}, v{vT0} offset:{p*512}")
        e(f"ds_read_b128 v[{vS}:{vS+3}], v{vT1}")
        e(f"ds_read_b128 v[{vO}:{vO+3}], v{vT1} offset:16")
        e(f"s_add_u32 s{sT0}, s{sBLK}, s{sL}")
        e("s_waitcnt lgkmcnt(0)")
        m = [vS, vS + 2, vO, vO + 2]; l = [vS + 1, vS + 3, vO + 1, vO + 3]
        M = vO + 4
        e(f"v_max3_f32 v{M}, v{m[0]}, v{m[1]}, v{m[2]}")
        e(f"v_max_f32 v{M}, v{M}, v{m[3]}")
        for w in range(4):
            e(f"v_sub_f32 v{m[w]}, v{m[w]}, v{M}")
        for w in range(4):
            e(f"v_mul_f32 v{m[w]}, s{sCS}, v{m[w]}")
        for w in range(4):
            e(f"v_exp_f32 v{m[w]}, v{m[w]}")
        for w in range(4):
            e(f"v_add_f32 v{t+2*w}, v{t+2*w}, v{t+2*w+1}")
        e(f"v_mul_f32 v{t}, v{m[0]}, v{t}")
        e(f"v_mul_f32 v{M+1}, v{m[0]}, v{l[0]}")
        for w in range(1, 4):
            e(f"v_fmac_f32 v{t}, v{m[w]}, v{t+2*w}")
            e(f"v_fmac_f32 v{M+1}, v{m[w]}, v{l[w]}")
        lsk = self.lab("Lop")
        e(f"s_cmp_ge_u32 s{sWAVE}, 2")
        e(f"s_cbranch_scc1 {lsk}")
        e(f"buffer_store_dword v{t}, v{dv}, s[{sWS}:{sWS+3}], s{sT0} offen offset:{OP} sc1")
        e(f"s_cmp_lg_u32 s{sWAVE}, 0")
        e(f"s_cbranch_scc1 {lsk}")
        e(f"s_mov_b64 s[{sEX}:{sEX+1}], exec")
        e("s_mov_b64 exec, 1")
        e(f"buffer_store_dwordx2 v[{M}:{M+1}], off, s[{sWS}:{sWS+3}], s{sT0} offset:{OP+512} sc1")
        e(f"s_mov_b64 exec, s[{sEX}:{sEX+1}]")
        self.label(lsk)
        self.stamp(10, True)
        e("s_waitcnt vmcnt(0)")
        self.w_frags(vKF, vT0)
        lnf = self.lab("Lnf")
        e(f"s_cmp_lt_u32 s2, {NF}")
        e(f"s_cbranch_scc0 {lnf}")
        e(f"v_mov_b32 v{t}, 0x3f803f80")
        for r in range(1, 4):
            e(f"v_mov_b32 v{t+r}, v{t}")
        e("s_waitcnt lgkmcnt(0)")
        for s in range(4):
            c = "0" if s == 0 else f"v[{vO}:{vO+3}]"
            e(f"v_mfma_f32_16x16x32_bf16 v[{vO}:{vO+3}], v[{vKF+4*s}:{vKF+4*s+3}], v[{t}:{t+3}], {c}")
        e(f"s_lshl_b32 s{sT0}, s{sWAVE}, 6")
        e(f"s_add_u32 s{sT0}, s{sT0}, {L['CS1P']}")
        e(f"v_and_b32 v{vT0}, 48, v{vLANE}")
        e(f"v_add_u32 v{vT0}, s{sT0}, v{vT0}")
        e(f"ds_write_b128 v{vT0}, v[{vO}:{vO+3}]")
        self.label(lnf)
        e("s_waitcnt lgkmcnt(0)")
        self.c("stage A")
        e(f"s_lshr_b32 s{sT0}, s{sWAVE}, 1")
        e(f"s_lshl_b32 s{sT0}, s{sT0}, 2")
        e(f"s_lshl_b32 s{sT1}, s{sH}, 3")
        e(f"s_add_u32 s{sT0}, s{sT0}, s{sT1}")
        e(f"s_lshl_b32 s{sT0}, s{sT0}, 14")
        e(f"s_add_u32 s{sT0}, s{sT0}, s{sL}")
        e(f"s_add_u32 s{sT1}, s{sT0}, {BLK}")
        e(f"s_add_u32 s{sT2}, s{sT0}, {2*BLK}")
        e(f"s_add_u32 s{sT3}, s{sT0}, {3*BLK}")
        so = [sT0, sT1, sT2, sT3]
        lp = self.poll_begin()
        for c in range(4):
            e(f"buffer_load_dword v{t+c}, v{dv}, s[{sWS}:{sWS+3}], s{so[c]} offen offset:{OP} sc1")
        for c in range(4):
            e(f"buffer_load_dwordx2 v[{t+4+2*c}:{t+5+2*c}], off, s[{sWS}:{sWS+3}], s{so[c]} offset:{OP+512} sc1")
        e("s_waitcnt vmcnt(0)")
        self.poll_check(range(t, t + 12), vT0)
        self.poll_end(lp)
        self.stamp(11, True)
        m = [t + 4 + 2 * c for c in range(4)]; l = [t + 5 + 2 * c for c in range(4)]
        M = vO
        e(f"v_max3_f32 v{M}, v{m[0]}, v{m[1]}, v{m[2]}")
        e(f"v_max_f32 v{M}, v{M}, v{m[3]}")
        for c in range(4):
            e(f"v_sub_f32 v{m[c]}, v{m[c]}, v{M}")
        for c in range(4):
            e(f"v_mul_f32 v{m[c]}, s{sCS}, v{m[c]}")
        for c in range(4):
            e(f"v_exp_f32 v{m[c]}, v{m[c]}")
        e(f"v_lshrrev_b32 v{vT0}, 1, v{dv}")
        e(f"s_lshr_b32 s{sT0}, s{sWAVE}, 1")
        e(f"s_lshl_b32 s{sT0}, s{sT0}, 8")
        e(f"s_add_u32 s{sT0}, s{sT0}, {L['XQ']}")
        e(f"v_add_u32 v{vT0}, s{sT0}, v{vT0}")
        e(f"v_mul_f32 v{M+1}, v{m[0]}, v{l[0]}")
        e(f"v_mul_f32 v{t}, v{m[0]}, v{t}")
        for c in range(1, 4):
            e(f"v_fmac_f32 v{M+1}, v{m[c]}, v{l[c]}")
            e(f"v_fmac_f32 v{t}, v{m[c]}, v{t+c}")
        e(f"v_rcp_f32 v{M+1}, v{M+1}")
        e(f"v_mul_f32 v{t}, v{M+1}, v{t}")
        e(f"v_cvt_pk_bf16_f32 v{t}, v{t}, v{t}")
        e(f"ds_write_b16 v{vT0}, v{t}")
        e(f"v_and_b32 v{vT0}, 15, v{vLANE}")
        e(f"v_min_u32 v{vT1}, 2, v{vT0}")
        e(f"v_lshlrev_b32 v{vT1}, 8, v{vT1}")
        e(f"v_and_b32 v{3}, 48, v{vLANE}")
        e(f"v_add_u32 v{vT1}, v{vT1}, v3")
        e(f"v_add_u32 v{vT1}, {L['XQ']}, v{vT1}")
        e(f"v_lshlrev_b32 v{vT0}, 8, v{vT0}")
        e(f"v_add_u32 v{vT0}, v{vT0}, v3")
        e(f"s_lshl_b32 s{sT0}, s{sWAVE}, 6")
        e(f"s_add_u32 s{sT0}, s{sT0}, s{sBLK}")
        e(f"s_add_u32 s{sT0}, s{sT0}, s{sL}")
        e("s_waitcnt lgkmcnt(0)")
        e("s_barrier")
        for s in range(4):
            e(f"ds_read_b128 v[{t+4*s}:{t+4*s+3}], v{vT1} offset:{s*64}")
        e("s_waitcnt lgkmcnt(0)")
        d = vO + 4
        for s in range(4):
            c = "0" if s == 0 else f"v[{d}:{d+3}]"
            e(f"v_mfma_f32_16x16x32_bf16 v[{d}:{d+3}], v[{vQF+4*s}:{vQF+4*s+3}], v[{t+4*s}:{t+4*s+3}], {c}")
        e(f"s_mov_b64 s[{sEX}:{sEX+1}], exec")
        e(f"s_mov_b64 exec, s[{sN2}:{sN2+1}]")
        e(f"buffer_store_dwordx4 v[{d}:{d+3}], v{vT0}, s[{sWS}:{sWS+3}], s{sT0} offen offset:{YP} sc1")
        e(f"s_mov_b64 exec, s[{sEX}:{sEX+1}]")
        self.stamp(12, True)
        e(f"s_cmp_lt_u32 s2, {NF}")
        e("s_cbranch_scc1 L_FFN")
        e(f"s_cmp_ge_u32 s2, {R0}")
        e("s_cbranch_scc1 L_RED")
        e(f"s_cmp_lg_u32 s{sL}, 0")
        e("s_cbranch_scc1 L_end")
        if cfg.PF:
            self.l2_prefetch(cfg.PF, True)
        e("s_branch L_G2")
        self.ffn()
        self.reducer()
        self.g2()

    def l2_prefetch(self, ntiles, partner):
        cfg, L, e = self.cfg, self.L, self.e
        e(f"s_mul_i32 s{sT0}, s{sWAVE}, 1152")
        e(f"s_add_u32 m0, s{sT0}, {L['PBUF']}")
        n = [0]

        def run(srd):
            for i in range(4 * ntiles):
                if i == 0:
                    e(f"s_mov_b32 s{sKO}, {8*4096}")
                else:
                    e(f"s_add_u32 s{sKO}, s{sKO}, 1024")
                if n[0] >= cfg.PFD:
                    e(f"s_waitcnt vmcnt({cfg.PFD-1})")
                e(f"buffer_load_dwordx4 v{vVOFF}, s[{srd}:{srd+3}], s{sKO} offen {cfg.PFPOL} lds")
                n[0] += 1
        run(sK)
        if partner:
            l = self.lab("Lpf")
            e("s_cmp_ge_u32 s2, 192")
            e(f"s_cbranch_scc0 {l}")
            e(f"s_add_u32 s{sW}, s{sK}, 0x80000")
            e(f"s_addc_u32 s{sW+1}, s{sK+1}, 0")
            e(f"s_mov_b32 s{sW+2}, 131072")
            e(f"s_mov_b32 s{sW+3}, 0x20000")
            run(sW)
            self.label(l)

    def red_reduce(self, x):
        L, e = self.L, self.e
        regs = [x + r for r in range(4)]
        self.bfly_row("v_add_f32", regs, steps=(8,))
        tm = [x + 4 + r for r in range(4)]
        self.swap_reduce("v_add_f32", regs, tm, 16)
        self.swap_reduce("v_add_f32", regs, tm, 32)
        e(f"s_lshl_b32 s{sT0}, s{sWAVE}, 7")
        e(f"s_add_u32 s{sT0}, s{sT0}, {L['PART']}")
        e(f"v_and_b32 v{vT0}, 7, v{vLANE}")
        e(f"v_lshlrev_b32 v{vT0}, 4, v{vT0}")
        e(f"v_add_u32 v{vT1}, s{sT0}, v{vT0}")
        e(f"ds_write_b128 v{vT1}, v[{x}:{x+3}]")
        e("s_waitcnt lgkmcnt(0)")
        e("s_barrier")

    def reducer(self):
        cfg, L, e = self.cfg, self.L, self.e
        self.label("L_RED")
        x = vD
        sR, sRB, sCB = sT4, sT5, 49
        e(f"s_sub_u32 s{sR}, s2, {R0}")
        e(f"s_lshr_b32 s{sRB}, s{sR}, 4")
        e(f"s_and_b32 s{sCB}, s{sR}, 15")
        self.srd(sW, sB2, 1024)
        e(f"v_and_b32 v2, 7, v{vLANE}")
        e(f"v_lshlrev_b32 v3, 3, v2")
        e(f"s_lshl_b32 s{sT0}, s{sCB}, 6")
        e(f"buffer_load_dwordx2 v[4:5], v3, s[{sW}:{sW+3}], s{sT0} offen")
        e(f"v_lshrrev_b32 v6, 3, v{vLANE}")
        e(f"v_lshlrev_b32 v7, 17, v6")
        e(f"v_lshl_add_u32 v7, v2, 4, v7")
        e(f"s_lshl_b32 s{sT0}, s{sWAVE}, 6")
        e(f"s_lshr_b32 s{sT1}, s{sCB}, 1")
        e(f"s_add_u32 s{sT0}, s{sT0}, s{sT1}")
        e(f"s_lshl_b32 s{sT0}, s{sT0}, 14")
        e(f"s_add_u32 s{sT0}, s{sT0}, s{sL}")
        e(f"s_lshl_b32 s{sT1}, s{sRB}, 8")
        e(f"s_add_u32 s{sT0}, s{sT0}, s{sT1}")
        e(f"s_and_b32 s{sT1}, s{sCB}, 1")
        e(f"s_lshl_b32 s{sT1}, s{sT1}, 7")
        e(f"s_add_u32 s{sT0}, s{sT0}, s{sT1}")
        lp = self.poll_begin()
        e(f"buffer_load_dwordx4 v[{x}:{x+3}], v7, s[{sWS}:{sWS+3}], s{sT0} offen offset:{YP} sc1")
        e("s_waitcnt vmcnt(0)")
        self.poll_check(range(x, x + 4), vT0)
        self.poll_end(lp)
        self.stamp(17, True)
        self.red_reduce(x)
        lw = self.lab("Lr1")
        e(f"s_cmp_lg_u32 s{sWAVE}, 0")
        e(f"s_cbranch_scc1 {lw}")

        def final_sum():
            e(f"v_add_u32 v{vT1}, {L['PART']}, v{vT0}")
            for w in range(4):
                e(f"ds_read_b128 v[{x+4*w}:{x+4*w+3}], v{vT1} offset:{w*128}")
            e(f"v_add_u32 v{vT0}, {L['XRES']}, v{vT0}")
            e(f"ds_read_b128 v[{vO+4}:{vO+7}], v{vT0}")
            e("s_waitcnt lgkmcnt(0)")
            for r in range(4):
                e(f"v_add_f32 v{x+r}, v{x+r}, v{x+4+r}")
                e(f"v_add_f32 v{x+8+r}, v{x+8+r}, v{x+12+r}")
            for r in range(4):
                e(f"v_add_f32 v{x+r}, v{x+r}, v{x+8+r}")
            for r in range(4):
                e(f"v_add_f32 v{x+r}, v{x+r}, v{vO+4+r}")
        final_sum()
        e(f"ds_write_b128 v{vT0}, v[{x}:{x+3}]")
        e(f"s_add_u32 s{sT0}, s{sBLKW}, s{sL}")
        e(f"v_lshlrev_b32 v3, 4, v2")
        e(f"s_mov_b64 s[{sEX}:{sEX+1}], exec")
        e("s_mov_b64 exec, 0xff")
        e(f"buffer_store_dwordx4 v[{x}:{x+3}], v3, s[{sWS}:{sWS+3}], s{sT0} offen offset:{X1} sc1")
        e(f"s_mov_b64 exec, s[{sEX}:{sEX+1}]")
        self.label(lw)
        self.stamp(18, True)
        e("s_waitcnt lgkmcnt(0)")
        e("s_barrier")
        e(f"v_lshlrev_b32 v7, 14, v6")
        e(f"v_lshl_add_u32 v7, v2, 4, v7")
        e(f"s_lshl_b32 s{sT0}, s{sWAVE}, 17")
        e(f"s_add_u32 s{sT0}, s{sT0}, s{sL}")
        e(f"s_lshl_b32 s{sT1}, s{sRB}, 11")
        e(f"s_add_u32 s{sT0}, s{sT0}, s{sT1}")
        e(f"s_lshl_b32 s{sT1}, s{sCB}, 7")
        e(f"s_add_u32 s{sT0}, s{sT0}, s{sT1}")
        e(f"s_add_u32 s{sT0}, s{sT0}, {FP}")
        e(f"s_add_u32 s{sT1}, s{sT0}, {32*BLK}")
        e(f"s_add_u32 s{sT2}, s{sT0}, {64*BLK}")
        e(f"s_add_u32 s{sT3}, s{sT0}, {96*BLK}")
        for r in range(4):
            e(f"v_mov_b32 v{x+12+r}, 0")
        lp = self.poll_begin()
        l3 = self.lab("Lr3")
        for k, so in enumerate((sT0, sT1, sT2)):
            e(f"buffer_load_dwordx4 v[{x+4*k}:{x+4*k+3}], v7, s[{sWS}:{sWS+3}], s{so} offen sc1")
        e(f"s_cmp_ge_u32 s{sWAVE}, 2")
        e(f"s_cbranch_scc1 {l3}")
        e(f"buffer_load_dwordx4 v[{x+12}:{x+15}], v7, s[{sWS}:{sWS+3}], s{sT3} offen sc1")
        self.label(l3)
        e("s_waitcnt vmcnt(0)")
        self.poll_check(range(x, x + 16), vT0)
        self.poll_end(lp)
        self.stamp(19, True)
        for r in range(4):
            e(f"v_add_f32 v{x+r}, v{x+r}, v{x+4+r}")
            e(f"v_add_f32 v{x+8+r}, v{x+8+r}, v{x+12+r}")
        for r in range(4):
            e(f"v_add_f32 v{x+r}, v{x+r}, v{x+8+r}")
        self.red_reduce(x)
        lw = self.lab("Lr4")
        e(f"s_cmp_lg_u32 s{sWAVE}, 0")
        e(f"s_cbranch_scc1 {lw}")
        final_sum()
        e(f"v_lshlrev_b32 v{x+4}, 16, v4")
        e(f"v_and_b32 v{x+5}, 0xffff0000, v4")
        e(f"v_lshlrev_b32 v{x+6}, 16, v5")
        e(f"v_and_b32 v{x+7}, 0xffff0000, v5")
        for r in range(4):
            e(f"v_add_f32 v{x+r}, v{x+r}, v{x+4+r}")
        lo = self.lab("Lout")
        e(f"s_mov_b64 s[{sEX}:{sEX+1}], exec")
        e(f"s_cmp_lg_u32 s{sL}, 0")
        e(f"s_cbranch_scc1 {lo}")
        e(f"ds_write_b128 v{vT0}, v[{x}:{x+3}]")
        e(f"s_add_u32 s{sT0}, s{sBLKW}, s{sL}")
        e(f"v_lshlrev_b32 v3, 4, v2")
        e("s_mov_b64 exec, 0xff")
        e(f"buffer_store_dwordx4 v[{x}:{x+3}], v3, s[{sWS}:{sWS+3}], s{sT0} offen offset:{X2} sc1")
        e(f"s_mov_b64 exec, s[{sEX}:{sEX+1}]")
        e("s_waitcnt lgkmcnt(0)")
        e("s_branch L_G2")
        self.label(lo)
        self.srd(sW, sOUT, 2048)
        e(f"v_cvt_pk_bf16_f32 v{x+4}, v{x}, v{x+1}")
        e(f"v_cvt_pk_bf16_f32 v{x+5}, v{x+2}, v{x+3}")
        e(f"s_lshl_b32 s{sT0}, s{sR}, 6")
        e(f"v_lshlrev_b32 v3, 3, v2")
        e("s_mov_b64 exec, 0xff")
        e(f"buffer_store_dwordx2 v[{x+4}:{x+5}], v3, s[{sW}:{sW+3}], s{sT0} offen")
        e("s_waitcnt vmcnt(0)")
        e("s_branch L_end")
        self.label(lw)
        e(f"s_cmp_lg_u32 s{sL}, 0")
        e("s_cbranch_scc1 L_end")
        e("s_branch L_G2")

    def ffn(self):
        cfg, L, e = self.cfg, self.L, self.e
        self.label("L_FFN")
        t = vD
        self.srd(sW, sW2, 1792 * 512 * 2)
        e(f"v_lshrrev_b32 v2, 4, v{vLANE}")
        e(f"v_lshlrev_b32 v2, 10, v2")
        e(f"v_and_b32 v3, 15, v{vLANE}")
        e(f"v_lshl_add_u32 v2, v3, 4, v2")
        e(f"s_lshl_b32 s{sT0}, s2, 14")
        e(f"s_lshl_b32 s{sT1}, s{sWAVE}, 8")
        e(f"s_add_u32 s{sT0}, s{sT0}, s{sT1}")
        for i in range(4):
            e(f"s_add_u32 m0, s{sWB}, {i*1024}")
            if i > 0:
                e(f"s_add_u32 s{sT0}, s{sT0}, 4096")
            e(f"buffer_load_dwordx4 v2, s[{sW}:{sW+3}], s{sT0} offen lds")
        self.srd(sW, sB1, 1792 * 2)
        e(f"v_lshrrev_b32 v3, 4, v{vLANE}")
        e(f"v_lshlrev_b32 v3, 3, v3")
        e(f"s_lshl_b32 s{sT0}, s2, 5")
        e(f"buffer_load_dwordx2 v[4:5], v3, s[{sW}:{sW+3}], s{sT0} offen")
        e(f"v_lshrrev_b32 v2, 4, v{vLANE}")
        e(f"v_lshlrev_b32 v2, 2, v2")
        e(f"v_bfe_u32 v3, v{vLANE}, 2, 2")
        e(f"v_add_u32 v2, v2, v3")
        e(f"v_lshlrev_b32 v2, 8, v2")
        e(f"v_and_b32 v3, 3, v{vLANE}")
        e(f"v_lshl_add_u32 v2, v3, 3, v2")
        e(f"v_add_u32 v2, s{sWB}, v2")
        e("s_waitcnt vmcnt(0)")
        for tt in range(8):
            e(f"ds_read_b64_tr_b16 v[{vQF+2*tt}:{vQF+2*tt+1}], v2 offset:{tt*32}")
        e(f"v_lshlrev_b32 v2, 16, v4")
        e(f"v_and_b32 v3, 0xffff0000, v4")
        e(f"v_lshlrev_b32 v4, 16, v5")
        e(f"v_and_b32 v5, 0xffff0000, v5")
        e(f"v_lshrrev_b32 v10, 3, v{vLANE}")
        e(f"v_lshlrev_b32 v10, 14, v10")
        e(f"v_and_b32 v11, 7, v{vLANE}")
        e(f"v_lshl_add_u32 v10, v11, 4, v10")
        e(f"s_lshl_b32 s{sT0}, s{sWAVE}, 3")
        e(f"s_add_u32 s{sT0}, s{sT0}, {R0}")
        e(f"s_lshl_b32 s{sT0}, s{sT0}, 14")
        e(f"s_add_u32 s{sT0}, s{sT0}, s{sL}")
        e(f"s_lshl_b32 s{sT1}, s{sWAVE}, 9")
        e(f"s_add_u32 s{sT1}, s{sT1}, {L['XBUF']}")
        e(f"v_lshlrev_b32 v11, 3, v{vLANE}")
        e(f"v_add_u32 v11, s{sT1}, v11")
        e(f"v_and_b32 v12, 1, v{vLANE}")
        e(f"v_lshlrev_b32 v13, 10, v12")
        e(f"v_and_b32 v14, 48, v{vLANE}")
        e(f"v_add_u32 v13, v13, v14")
        e(f"s_lshl_b32 s{sT1}, s{sWAVE}, 8")
        e(f"s_add_u32 s{sT1}, s{sT1}, {L['XBUF']}")
        e(f"v_add_u32 v13, s{sT1}, v13")
        e(f"v_lshlrev_b32 v14, 1, v14")
        e(f"v_lshl_add_u32 v14, v12, 4, v14")
        e(f"v_add_u32 v14, {L['PART']}, v14")
        e(f"s_lshl_b32 s{sT1}, s{sWAVE}, 7")
        e(f"v_add_u32 v15, s{sT1}, v14")
        e("s_waitcnt lgkmcnt(0)")
        self.stamp(13, True)
        lp = self.poll_begin()
        e(f"buffer_load_dwordx4 v[{t}:{t+3}], v10, s[{sWS}:{sWS+3}], s{sT0} offen offset:{X1} sc1")
        e("s_waitcnt vmcnt(0)")
        self.poll_check(range(t, t + 4), vT0)
        self.poll_end(lp)
        self.stamp(14, True)
        e(f"v_cvt_pk_bf16_f32 v{t+4}, v{t}, v{t+1}")
        e(f"v_cvt_pk_bf16_f32 v{t+5}, v{t+2}, v{t+3}")
        e(f"ds_write_b64 v11, v[{t+4}:{t+5}]")
        e(f"v_lshlrev_b32 v{t}, 16, v{t+4}")
        e(f"v_and_b32 v{t+1}, 0xffff0000, v{t+4}")
        e(f"v_lshlrev_b32 v{t+2}, 16, v{t+5}")
        e(f"v_and_b32 v{t+3}, 0xffff0000, v{t+5}")
        e(f"v_add_f32 v{vMR}, v{t}, v{t+1}")
        e(f"v_mul_f32 v{vLR}, v{t}, v{t}")
        e(f"v_add_f32 v{vMR}, v{vMR}, v{t+2}")
        e(f"v_fmac_f32 v{vLR}, v{t+1}, v{t+1}")
        e(f"v_add_f32 v{vMR}, v{vMR}, v{t+3}")
        e(f"v_fmac_f32 v{vLR}, v{t+2}, v{t+2}")
        e(f"v_fmac_f32 v{vLR}, v{t+3}, v{t+3}")
        e("s_waitcnt lgkmcnt(0)")
        e("s_barrier")
        for s in range(4):
            e(f"ds_read_b128 v[{t+4*s}:{t+4*s+3}], v13 offset:{s*64}")
        e(f"v_and_b32 v10, 48, v{vLANE}")
        e(f"v_add_u32 v10, {L['CS1P']}, v10")
        e(f"ds_read_b128 v[6:9], v10")
        self.bfly_row("v_add_f32", [vMR, vLR])
        self.swap_reduce("v_add_f32", [vMR, vLR], [vT0, vT1], 16)
        self.swap_reduce("v_add_f32", [vMR, vLR], [vT0, vT1], 32)
        e("s_waitcnt lgkmcnt(0)")
        d = vO + 4
        for s in range(4):
            c = "0" if s == 0 else f"v[{d}:{d+3}]"
            e(f"v_mfma_f32_16x16x32_bf16 v[{d}:{d+3}], v[{vKF+4*s}:{vKF+4*s+3}], v[{t+4*s}:{t+4*s+3}], {c}")
        e(f"s_lshl_b32 s{sT1}, s{sWAVE}, 3")
        e(f"s_add_u32 s{sT1}, s{sT1}, {L['ST']}")
        e(f"v_mov_b32 v{vT0}, s{sT1}")
        e(f"ds_write_b64 v{vT0}, v[{vMR}:{vMR+1}]")
        for w in range(1, 4):
            e(f"ds_read_b128 v[{t+4*w}:{t+4*w+3}], v10 offset:{w*64}")
        e(f"ds_write_b128 v15, v[{d}:{d+3}]")
        e("s_waitcnt lgkmcnt(0)")
        for w in range(1, 4):
            for r in range(4):
                e(f"v_add_f32 v{6+r}, v{6+r}, v{t+4*w+r}")
        e("s_barrier")
        for w in range(4):
            e(f"ds_read_b128 v[{t+4*w}:{t+4*w+3}], v14 offset:{w*128}")
        e(f"v_lshlrev_b32 v{vT0}, 4, v12")
        e(f"v_add_u32 v{vT0}, {L['ST']}, v{vT0}")
        e(f"ds_read_b128 v[{d}:{d+3}], v{vT0}")
        e("s_waitcnt lgkmcnt(0)")
        e(f"v_add_f32 v{vMR}, v{d}, v{d+2}")
        e(f"v_add_f32 v{vLR}, v{d+1}, v{d+3}")
        self.mean_rstd(vMR, vLR, None)
        for r in range(4):
            e(f"v_add_f32 v{t+r}, v{t+r}, v{t+4+r}")
            e(f"v_add_f32 v{t+8+r}, v{t+8+r}, v{t+12+r}")
        for r in range(4):
            e(f"v_add_f32 v{t+r}, v{t+r}, v{t+8+r}")
        for r in range(4):
            e(f"v_fma_f32 v{t+r}, -v{vMR}, v{6+r}, v{t+r}")
        for r in range(4):
            e(f"v_fma_f32 v{t+r}, v{vLR}, v{t+r}, v{2+r}")
        k0 = -2.0 * 0.7978845608028654 * 1.4426950408889634
        e(f"s_mov_b32 s{sT1}, {hex(f2u(0.044715))}")
        e(f"s_mov_b32 s{sT2}, {hex(f2u(k0))}")
        for r in range(4):
            e(f"v_mul_f32 v{t+4+r}, v{t+r}, v{t+r}")
        for r in range(4):
            e(f"v_fma_f32 v{t+4+r}, v{t+4+r}, s{sT1}, 1.0")
        for r in range(4):
            e(f"v_mul_f32 v{t+4+r}, v{t+4+r}, v{t+r}")
        for r in range(4):
            e(f"v_mul_f32 v{t+4+r}, s{sT2}, v{t+4+r}")
        for r in range(4):
            e(f"v_exp_f32 v{t+4+r}, v{t+4+r}")
        for r in range(4):
            e(f"v_add_f32 v{t+4+r}, 1.0, v{t+4+r}")
        for r in range(4):
            e(f"v_rcp_f32 v{t+4+r}, v{t+4+r}")
        for r in range(4):
            e(f"v_mul_f32 v{t+r}, v{t+r}, v{t+4+r}")
        e(f"v_cvt_pk_bf16_f32 v{t+8}, v{t}, v{t+1}")
        e(f"v_cvt_pk_bf16_f32 v{t+9}, v{t+2}, v{t+3}")
        e(f"v_lshlrev_b32 v10, 11, v12")
        e(f"v_bfe_u32 v11, v{vLANE}, 1, 3")
        e(f"v_lshl_add_u32 v10, v11, 6, v10")
        e(f"v_and_b32 v11, 48, v{vLANE}")
        e(f"v_add_u32 v10, v10, v11")
        e(f"s_lshl_b32 s{sT0}, s{sWAVE}, 9")
        e(f"s_add_u32 s{sT0}, s{sT0}, s{sBLKW}")
        e(f"s_add_u32 s{sT0}, s{sT0}, s{sL}")
        e(f"s_add_u32 s{sT0}, s{sT0}, {FP}")
        bb = [t + 10, t + 12]
        def mk(tt):
            b = bb[tt & 1]
            e(f"s_lshl_b64 s[{sMK}:{sMK+1}], s[{sN2}:{sN2+1}], {2*tt}")
            e(f"v_cndmask_b32 v{b}, 0, v{t+8}, s[{sMK}:{sMK+1}]")
            e(f"v_cndmask_b32 v{b+1}, 0, v{t+9}, s[{sMK}:{sMK+1}]")
        mk(0)
        for tt in range(8):
            if tt + 1 < 8:
                mk(tt + 1)
            b = bb[tt & 1]
            c = "0" if tt == 0 else f"v[{d}:{d+3}]"
            e(f"v_mfma_f32_16x16x16_bf16 v[{d}:{d+3}], v[{vQF+2*tt}:{vQF+2*tt+1}], v[{b}:{b+1}], {c}")
        e(f"buffer_store_dwordx4 v[{d}:{d+3}], v10, s[{sWS}:{sWS+3}], s{sT0} offen sc1")
        self.stamp(15, True)
        e(f"s_cmp_lg_u32 s{sL}, 0")
        e("s_cbranch_scc1 L_end")
        self.set_wq()
        self.w_dma(vT0, cond=True)
        if cfg.PFF:
            self.l2_prefetch(cfg.PFF, False)
            e(f"s_waitcnt vmcnt({min(cfg.PFD, 4*cfg.PFF)})")
        else:
            e("s_waitcnt vmcnt(0)")
        self.w_frags(vKF, vT0)
        e("s_waitcnt lgkmcnt(0)")
        e("s_branch L_G2")

    def g2(self):
        cfg, L, e = self.cfg, self.L, self.e
        self.label("L_G2")
        self.stamp(21)
        self.consts()
        lw = self.lab("Lg2")
        e(f"s_cmp_lg_u32 s{sWAVE}, 0")
        e(f"s_cbranch_scc1 {lw}")
        t = vD
        e(f"v_lshrrev_b32 v{vT0}, 5, v{vLANE}")
        e(f"v_lshlrev_b32 v{vT0}, 4, v{vT0}")
        e(f"v_bfe_u32 v{vT1}, v{vLANE}, 3, 2")
        e(f"v_add_u32 v{vT0}, v{vT0}, v{vT1}")
        e(f"v_lshlrev_b32 v{vT0}, 14, v{vT0}")
        e(f"v_and_b32 v{vT1}, 7, v{vLANE}")
        e(f"v_lshl_add_u32 v{vT0}, v{vT1}, 4, v{vT0}")
        e(f"s_lshr_b32 s{sT0}, s{sJ}, 1")
        e(f"s_lshl_b32 s{sT0}, s{sT0}, 2")
        e(f"s_add_u32 s{sT0}, s{sT0}, {R0}")
        e(f"s_lshl_b32 s{sT0}, s{sT0}, 14")
        e(f"v_lshrrev_b32 v{t+8}, 5, v{vLANE}")
        e(f"v_lshlrev_b32 v{t+8}, 8, v{t+8}")
        e(f"v_and_b32 v{t+9}, 31, v{vLANE}")
        e(f"v_lshl_add_u32 v{t+8}, v{t+9}, 3, v{t+8}")
        e(f"v_add_u32 v{t+8}, {L['XQ']}, v{t+8}")
        lp = self.poll_begin()
        e(f"buffer_load_dwordx4 v[{t}:{t+3}], v{vT0}, s[{sWS}:{sWS+3}], s{sT0} offen offset:{X2} sc1")
        e("s_waitcnt vmcnt(0)")
        self.poll_check(range(t, t + 4), vT1)
        self.poll_end(lp)
        self.stamp(22)
        e(f"v_cvt_pk_bf16_f32 v{t+4}, v{t}, v{t+1}")
        e(f"v_cvt_pk_bf16_f32 v{t+5}, v{t+2}, v{t+3}")
        e(f"ds_write_b64 v{t+8}, v[{t+4}:{t+5}]")
        e(f"v_lshlrev_b32 v{t}, 16, v{t+4}")
        e(f"v_and_b32 v{t+1}, 0xffff0000, v{t+4}")
        e(f"v_lshlrev_b32 v{t+2}, 16, v{t+5}")
        e(f"v_and_b32 v{t+3}, 0xffff0000, v{t+5}")
        self.stats_partial(t)
        self.label(lw)
        e(f"s_mov_b32 s{sL}, {LOFF}")
        e("s_waitcnt lgkmcnt(0)")
        e("s_branch L_QE")

    def build(self):
        cfg, e = self.cfg, self.e
        self.prologue()
        self.pass1()
        e("s_branch L_TAIL")
        self.qe()
        self.vm_n += 5000; self.vm_done = self.vm_n; self.vm_tags = {}
        self.pass2()
        self.tail()
        self.label("L_end")
        self.stamp(63, last=True)
        self.label("L_exit")
        e("s_endpgm")

    def text(self):
        cfg = self.cfg
        body, nn = hazard_pass(self.lines)
        hdr = []
        ref = open("interleave_layers__mha_block_cached__dense_activation_gelu__decode.s.ref").read().split("\n")
        for l in ref:
            if l.startswith("; @launch"):
                hdr.append("; @launch grid=(256,1,1) block=(256,1,1) lds=163840")
                break
            if l.startswith(";"):
                hdr.append(l)
        hdr += ['.amdgcn_target "amdgcn-amd-amdhsa--gfx950"', ".text", f".globl {KNAME}", ".p2align 8",
                f".type {KNAME},@function", f"{KNAME}:"]
        ftr = ['.section .rodata,"a"', ".p2align 6", f".amdhsa_kernel {KNAME}",
               "  .amdhsa_next_free_vgpr 512", "  .amdhsa_next_free_sgpr 102", "  .amdhsa_accum_offset 256",
               "  .amdhsa_group_segment_fixed_size 0", "  .amdhsa_kernarg_size 104", "  .amdhsa_user_sgpr_count 2",
               "  .amdhsa_user_sgpr_kernarg_segment_ptr 1", "  .amdhsa_system_sgpr_workgroup_id_x 1",
               ".end_amdhsa_kernel", ""]
        return "\n".join(hdr + body + ftr), nn


def generate(path, **kw):
    cfg = Cfg()
    for k, v in kw.items():
        setattr(cfg, k, v)
    g = Gen(cfg)
    g.build()
    txt, nn = g.text()
    open(path, "w").write(txt)
    return len(txt), nn, len(g.lines)


if __name__ == "__main__":
    out = sys.argv[1] if len(sys.argv) > 1 else "interleave_layers__mha_block_cached__dense_activation_gelu__decode.s"
    kw = {}
    for a in sys.argv[2:]:
        k, v = a.split("=")
        kw[k] = v if k.endswith("POL") else int(v)
    print(generate(out, **kw))
```

```python
import sys, struct, os
sys.path.insert(0, os.path.dirname(os.path.abspath(__file__)))
from asmlib import Asm, hazard_pass

KNAME = "interleave_layers__mha_block_cached__dense_activation_gelu__decode_kernel"


def f2u(x):
    return struct.unpack("<I", struct.pack("<f", x))[0]


class Cfg:
    NR = 8
    NWORK = 72
    CAP = 16
    INIT_V = 24
    CAP0 = 44
    XMAP = 1
    PF = 0
    PFF = 0
    PFD = 8
    PFPOL = ""
    CAPEND = 0
    KRET = 0
    KRETB = 0
    VRET = 0
    RETPOL = ""
    P2POL = "nt"
    P2VPOL = "nt"
    SPIN = 200000
    KPOL = "nt"
    VPOL = "nt"
    PROF = False
    POLL_SLEEP = 0


RING = 0
def lds_map(cfg):
    m = {}
    m["W"] = cfg.NR * 4096 * 4
    misc = m["W"] + 16384
    m["PBUF"] = misc
    m["RED"] = misc + 4608
    m["ML"] = misc + 8704
    m["XQ"] = misc + 8768
    m["QBUF"] = misc + 9536
    m["CSB"] = misc + 9792
    m["XRES"] = misc + 10304
    m["XBUF"] = misc + 10432
    m["PART"] = misc + 12480
    m["ST"] = misc + 12992
    m["CS1P"] = misc + 13056
    m["END"] = misc + 13312
    return m

BLK = 16384
LOFF = 8192
QP, QST, OP, YP, X1, X2, FP = 0, 768, 1024, 2048, 3072, 3200, 4096
PROF_OFF = 256 * BLK
NF = 112
R0 = 224

sK, sV, sWS, sW = 4, 8, 12, 16
sWQ, sWO, sW1, sW2, sB1, sB2, sOUT, sDBG, sX = 20, 22, 24, 26, 28, 30, 32, 34, 36
sWAVE, sH, sJ, sB, sC = 38, 39, 40, 41, 42
sRING, sWB, sL, sROLE, sSPIN = 43, 44, 46, 47, 48
sEX = 50
sMK = 52
sT0, sT1, sT2, sT3, sT4, sT5 = 54, 55, 56, 57, 64, 65
sM0 = 58
sCS = 60
sBLK = 61
sLT8 = 62
sKO, sVO = 66, 67
sN2 = 68
sN3 = 70
sBLKW = 72
sP0 = 74

vLANE, vVOFF = 0, 1
vKD = 2
vKR = 6
vM = 10
vPW, vPR = 14, 15
vQF = 16
vKF = 32
vB0, vB1, vP0, vP1 = 32, 36, 40, 44
vD = 48
vS = 56
vO = 60
vMR, vLR = 68, 69
vT0, vT1 = 70, 71

SCALE = 128 ** -0.5 * 1.4426950408889634


class Gen(Asm):
    def __init__(self, cfg):
        super().__init__()
        self.cfg = cfg
        self.L = lds_map(cfg)
        assert self.L["END"] <= 163840
        self.nstamp = 0
        self.pending = []
        self.ready = set()
        self.cap = cfg.CAP

    def stamp(self, sid, shared=False, last=False):
        if not self.cfg.PROF:
            return
        e = self.e
        vST = self.cfg.NWORK - 1
        if sid == 0:
            e(f"v_mov_b32 v{vST}, 0")
            e(f"s_getreg_b32 s{sP0}, hwreg(HW_REG_XCC_ID)")
            e(f"s_or_b32 s{sP0}, s{sP0}, 0x10000")
            e(f"v_writelane_b32 v{vST}, s{sP0}, 62")
            e(f"s_getreg_b32 s{sP0}, hwreg(HW_REG_HW_ID)")
            e(f"v_writelane_b32 v{vST}, s{sP0}, 61")
            e(f"s_memrealtime s[{sP0}:{sP0+1}]")
            e(f"s_mov_b32 s{sP0+2}, 0")
            return
        e("s_waitcnt lgkmcnt(0)")
        e(f"s_mov_b32 m0, s{sP0+2}")
        e("s_nop 0")
        e(f"v_writelane_b32 v{vST}, s{sP0}, m0")
        if shared:
            e(f"s_lshr_b32 s{sP0+2}, s{sL}, 8")
            e(f"s_add_u32 s{sP0+2}, s{sP0+2}, {sid}")
        else:
            e(f"s_mov_b32 s{sP0+2}, {sid}")
        e(f"s_memrealtime s[{sP0}:{sP0+1}]")
        if last:
            e("s_waitcnt lgkmcnt(0)")
            e(f"s_mov_b32 m0, s{sP0+2}")
            e("s_nop 0")
            e(f"v_writelane_b32 v{vST}, s{sP0}, m0")
            e(f"s_lshl_b32 s{sT0}, s2, 2")
            e(f"s_add_u32 s{sT0}, s{sT0}, s{sWAVE}")
            e(f"s_lshl_b32 s{sT0}, s{sT0}, 8")
            e(f"s_add_u32 s{sT0}, s{sT0}, {PROF_OFF}")
            e(f"s_mov_b64 exec, -1")
            e(f"v_lshlrev_b32 v1, 2, v0")
            e(f"buffer_store_dword v{vST}, v1, s[{sWS}:{sWS+3}], s{sT0} offen")
            e("s_waitcnt vmcnt(0)")

    def srd(self, d, ptr, nbytes, add=None):
        if add is None:
            self.e(f"s_mov_b32 s{d}, s{ptr}")
            self.e(f"s_and_b32 s{d+1}, s{ptr+1}, 0xffff")
        else:
            self.e(f"s_add_u32 s{d}, s{ptr}, s{add}")
            self.e(f"s_addc_u32 s{d+1}, s{ptr+1}, 0")
            self.e(f"s_and_b32 s{d+1}, s{d+1}, 0xffff")
        self.e(f"s_mov_b32 s{d+2}, {nbytes}")
        self.e(f"s_mov_b32 s{d+3}, 0x20000")

    def bfly_row(self, op, regs, steps=(8, 4, 2, 1)):
        for st in steps:
            for r in regs:
                self.e(f"{op}_dpp v{r}, v{r}, v{r} row_ror:{st} row_mask:0xf bank_mask:0xf")

    def swap_reduce(self, op, regs, tmps, which):
        for r, t in zip(regs, tmps):
            self.e(f"v_mov_b32 v{t}, v{r}")
        for r, t in zip(regs, tmps):
            self.e(f"v_permlane{which}_swap_b32 v{t}, v{r}")
        for r, t in zip(regs, tmps):
            self.e(f"{op} v{r}, v{t}, v{r}")

    def poll_begin(self):
        l = self.lab("Lpoll")
        self.e(f"s_mov_b32 s{sSPIN}, {self.cfg.SPIN}")
        self.label(l)
        return l

    def poll_check(self, regs, tmp):
        regs = list(regs)
        if len(regs) == 1:
            self.e(f"v_cmp_eq_u32 vcc, -1, v{regs[0]}")
            return
        if len(regs) == 2:
            self.e(f"v_max_u32 v{tmp}, v{regs[0]}, v{regs[1]}")
            rest = []
        else:
            self.e(f"v_max3_u32 v{tmp}, v{regs[0]}, v{regs[1]}, v{regs[2]}")
            rest = regs[3:]
        while len(rest) >= 2:
            self.e(f"v_max3_u32 v{tmp}, v{tmp}, v{rest[0]}, v{rest[1]}")
            rest = rest[2:]
        if rest:
            self.e(f"v_max_u32 v{tmp}, v{tmp}, v{rest[0]}")
        self.e(f"v_cmp_eq_u32 vcc, -1, v{tmp}")

    def poll_end(self, l):
        ok = self.lab("Lok")
        self.e(f"s_cbranch_vccz {ok}")
        if self.cfg.POLL_SLEEP:
            self.e(f"s_sleep {self.cfg.POLL_SLEEP}")
        self.e(f"s_sub_u32 s{sSPIN}, s{sSPIN}, 1")
        self.e(f"s_cmp_lg_u32 s{sSPIN}, 0")
        self.e(f"s_cbranch_scc1 {l}")
        self.label(ok)

    def consts(self):
        L = self.L
        e = self.e
        self.c("per-lane stream constants")
        e(f"v_lshlrev_b32 v{vVOFF}, 4, v{vLANE}")
        e(f"v_and_b32 v{vT0}, 15, v{vLANE}")
        e(f"v_lshrrev_b32 v{vT1}, 4, v{vLANE}")
        for t in range(4):
            e(f"v_add_u32 v{vD}, {4*t}, v{vT1}")
            e(f"v_xor_b32 v{vD}, v{vD}, v{vT0}")
            e(f"v_lshlrev_b32 v{vD}, 4, v{vD}")
            e(f"v_lshl_add_u32 v{vKD+t}, v{vT1}, 8, v{vD}")
        for s in range(4):
            e(f"v_add_u32 v{vD}, {4*s}, v{vT1}")
            e(f"v_xor_b32 v{vD}, v{vD}, v{vT0}")
            e(f"v_lshlrev_b32 v{vD}, 4, v{vD}")
            e(f"v_lshl_add_u32 v{vD}, v{vT0}, 8, v{vD}")
            e(f"v_add_u32 v{vKR+s}, s{sRING}, v{vD}")
        e(f"v_and_b32 v{vD}, 7, v{vT0}")
        e(f"v_mov_b32 v{vD+1}, 0xffff")
        e(f"v_mov_b32 v{vD+2}, 0xffff0000")
        for jj in range(4):
            e(f"v_mov_b32 v{vM+jj}, 0")
            e(f"v_cmp_eq_u32 vcc, {2*jj}, v{vD}")
            e(f"v_cndmask_b32 v{vM+jj}, v{vM+jj}, v{vD+1}, vcc")
            e(f"v_cmp_eq_u32 vcc, {2*jj+1}, v{vD}")
            e(f"v_cndmask_b32 v{vM+jj}, v{vM+jj}, v{vD+2}, vcc")
        e(f"s_mul_i32 s{sT0}, s{sWAVE}, 1152")
        e(f"s_add_u32 s{sT0}, s{sT0}, {L['PBUF']}")
        e(f"v_and_b32 v{vD}, 1, v{vT1}")
        e(f"v_mul_u32_u24 v{vD}, 576, v{vD}")
        e(f"v_lshrrev_b32 v{vD+1}, 1, v{vT1}")
        e(f"v_lshl_add_u32 v{vD+1}, v{vT0}, 1, v{vD+1}")
        e(f"v_lshl_add_u32 v{vD}, v{vD+1}, 2, v{vD}")
        e(f"v_add_u32 v{vPW}, s{sT0}, v{vD}")
        e(f"v_lshrrev_b32 v{vD}, 3, v{vT0}")
        e(f"v_lshl_add_u32 v{vD}, v{vD}, 2, v{vT1}")
        e(f"v_mul_u32_u24 v{vD}, 144, v{vD}")
        e(f"v_add_u32 v{vPR}, s{sT0}, v{vD}")

    def vreg_of(self, blk, t, pas):
        nret = (256 - self.cfg.NWORK) // 4
        if blk in ("A", "Q"):
            return f"a[{4*t}:{4*t+3}]"
        if t < nret:
            r = self.cfg.NWORK + 4 * t
            return f"v[{r}:{r+3}]"
        r = 4 * (t - nret)
        return f"a[{r}:{r+3}]"

    def k_desc(self, blk, n, slot):
        return dict(kind="K", blk=blk, n=n, slot=slot, tag=("K", blk, n), need=("slot", slot, blk, n), cnt=4)

    def v_desc(self, blk, t, need=None):
        return dict(kind="V", blk=blk, t=t, tag=("V", blk, t), need=need, cnt=1)

    def issue_desc(self, d, pas):
        cfg = self.cfg
        if d["kind"] == "K":
            tile = d["n"] + (0 if d["blk"] == "A" else 16)
            self.e(f"s_add_u32 m0, s{sRING}, {d['slot']*4096}")
            self.e(f"s_mov_b32 s{sKO}, {tile*4096}")
            pol = cfg.KPOL
            if d["blk"] == "A" and 8 <= d["n"] < 8 + cfg.KRET and pas == 1:
                pol = cfg.RETPOL
            if d["blk"] == "B" and d["n"] < cfg.KRETB and pas == 1:
                pol = cfg.RETPOL
            if pas == 2:
                pol = cfg.P2POL
            for t in range(4):
                self.vm(f"buffer_load_dwordx4 v{vKD+t}, s[{sK}:{sK+3}], s{sKO} offen offset:{t*1024} {pol} lds",
                        tag=d["tag"] if t == 3 else None)
        elif d["kind"] == "V":
            gt = d["t"] + (0 if d["blk"] == "A" else 64)
            base = (gt >> 2) * 4096
            if getattr(self, "_vo", None) != base:
                self.e(f"s_mov_b32 s{sVO}, {base}")
                self._vo = base
            pol = cfg.VPOL
            nret = (256 - cfg.NWORK) // 4
            if d["blk"] == "B" and d["t"] >= nret and d["t"] >= 64 - cfg.VRET and pas == 1:
                pol = cfg.RETPOL
            if pas == 2:
                pol = cfg.P2VPOL
            self.vm(f"buffer_load_dwordx4 {self.vreg_of(d['blk'], d['t'], pas)}, v{vVOFF}, s[{sV}:{sV+3}], s{sVO} offen offset:{(gt&3)*1024} {pol}",
                    tag=d["tag"])
        elif d["kind"] == "Q":
            t = d["t"]
            if t > 0:
                self.e(f"s_add_u32 s{sT2}, s{sT2}, 32768")
            self.vm(f"buffer_load_dwordx4 {self.vreg_of('Q', t, pas)}, v{vT1}, s[{sW}:{sW+3}], s{sT2} offen", tag=d["tag"])
        elif d["kind"] == "F":
            d["fn"]()

    def pump(self, pas, limit=None):
        n = 0
        while self.pending:
            d = self.pending[0]
            if d["need"] is not None and d["need"] not in self.ready:
                break
            if self.vm_outstanding() + d["cnt"] > self.cap:
                break
            if limit is not None and n + d["cnt"] > limit:
                break
            self.pending.pop(0)
            self.issue_desc(d, pas)
            n += d["cnt"]

    def force_issued(self, tag, pas):
        while tag not in self.vm_tags or self.vm_tags[tag] < 0:
            d = self.pending[0]
            assert d["need"] is None or d["need"] in self.ready, ("not ready", d, tag)
            if self.vm_outstanding() + d["cnt"] > self.cap:
                target = self.vm_n + d["cnt"] - self.cap
                self.e(f"s_waitcnt vmcnt({self.vm_n - target})")
                self.vm_done = max(self.vm_done, target)
            self.pending.pop(0)
            self.issue_desc(d, pas)

    def k_phase(self, tiles, pas):
        e = self.e

        def reads(i):
            blk, n, slot, resident, frees = tiles[i]
            if not resident:
                self.force_issued(("K", blk, n), pas)
                self.vm_wait(("K", blk, n))
            for s in range(4):
                self.ds(f"ds_read_b128 v[{vKF+4*s}:{vKF+4*s+3}], v{vKR+s} offset:{slot*4096}")

        def select(i):
            blk, n, slot, resident, frees = tiles[i]
            d = vD + 4 * (i & 1)
            e(f"s_lshl_b64 s[{sMK}:{sMK+1}], s[{sM0}:{sM0+1}], {n}")
            for r in range(4):
                e(f"v_cndmask_b32 v{vS+r}, v{vS+r}, v{d+r}, s[{sMK}:{sMK+1}]")

        reads(0)
        for i in range(len(tiles)):
            blk, n, slot, resident, frees = tiles[i]
            self.lg_wait_all()
            for tok in frees:
                self.ready.add(tok)
            d = vD + 4 * (i & 1)
            for s in range(4):
                c = "0" if s == 0 else f"v[{d}:{d+3}]"
                e(f"v_mfma_f32_16x16x32_bf16 v[{d}:{d+3}], v[{vKF+4*s}:{vKF+4*s+3}], v[{vQF+4*s}:{vQF+4*s+3}], {c}")
            self.pump(pas)
            if i + 1 < len(tiles):
                reads(i + 1)
            if i > 0:
                select(i - 1)
        select(len(tiles) - 1)

    def softmax(self, first):
        e = self.e
        a, b = vT0, vT1
        e(f"v_max3_f32 v{a}, v{vS}, v{vS+1}, v{vS+2}")
        e(f"v_max_f32 v{a}, v{a}, v{vS+3}")
        self.bfly_row("v_max_f32", [a])
        self.swap_reduce("v_max_f32", [a], [b], 16)
        self.swap_reduce("v_max_f32", [a], [b], 32)
        if first:
            e(f"v_mov_b32 v{vMR}, v{a}")
        else:
            e(f"v_max_f32 v{a}, v{a}, v{vMR}")
            e(f"v_sub_f32 v{b}, v{vMR}, v{a}")
            e(f"v_mul_f32 v{b}, s{sCS}, v{b}")
            e(f"v_exp_f32 v{b}, v{b}")
            e(f"v_mov_b32 v{vMR}, v{a}")
            for r in range(8):
                e(f"v_mul_f32 v{vO+r}, v{b}, v{vO+r}")
            e(f"v_mul_f32 v{vLR}, v{b}, v{vLR}")
        e(f"v_mul_f32 v{a}, s{sCS}, v{vMR}")
        for r in range(4):
            e(f"v_fma_f32 v{vS+r}, v{vS+r}, s{sCS}, -v{a}")
        for r in range(4):
            e(f"v_exp_f32 v{vS+r}, v{vS+r}")
        for r in range(4):
            e(f"v_cvt_pk_bf16_f32 v{vD+r}, v{vS+r}, v{vS+r}")
        for r in range(4):
            self.ds(f"ds_write_b32 v{vPW}, v{vD+r} offset:{r*144}")
        e(f"v_add_f32 v{vS}, v{vS}, v{vS+1}")
        e(f"v_add_f32 v{vS+2}, v{vS+2}, v{vS+3}")
        e(f"v_add_f32 v{vS}, v{vS}, v{vS+2}")
        if first:
            e(f"v_mov_b32 v{vLR}, v{vS}")
        else:
            e(f"v_add_f32 v{vLR}, v{vLR}, v{vS}")
        self.lg_wait_all()

    def v_phase(self, blk, pas, first, order, resident, frees, hooks):
        e = self.e
        groups = [order[i:i + 4] for i in range(0, len(order), 4)]
        for g in groups:
            assert g == list(range(g[0], g[0] + 4)) and g[0] % 4 == 0

        def pread(gi):
            p = vP0 if (gi & 1) == 0 else vP1
            self.ds(f"ds_read_b128 v[{p}:{p+3}], v{vPR} offset:{groups[gi][0]*4}", tag=("P", gi))

        def bbuild(pos, half):
            gi, k = pos // 4, pos % 4
            p = (vP0 if (gi & 1) == 0 else vP1) + k
            b = vB0 if (pos & 1) == 0 else vB1
            for jj in (2 * half, 2 * half + 1):
                e(f"v_and_b32 v{b+jj}, v{p}, v{vM+jj}")

        pread(0)
        self.lg_wait(("P", 0))
        if len(groups) > 1:
            pread(1)
        bbuild(0, 0); bbuild(0, 1)
        for pos, u in enumerate(order):
            if pos in hooks:
                hooks[pos]()
            b = vB0 if (pos & 1) == 0 else vB1
            nxt = pos + 1 < len(order)
            if nxt and (pos + 1) % 4 == 0:
                self.lg_wait(("P", (pos + 1) // 4))
            for half in range(2):
                t = 2 * u + half
                if not resident(t):
                    self.force_issued(("V", blk, t), pas)
                    self.vm_wait(("V", blk, t))
                if nxt:
                    bbuild(pos + 1, half)
                o = vO + 4 * half
                c = "0" if (first and pos == 0) else f"v[{o}:{o+3}]"
                e(f"v_mfma_f32_16x16x32_bf16 v[{o}:{o+3}], {self.vreg_of(blk, t, pas)}, v[{b}:{b+3}], {c}")
            if nxt and (pos + 1) % 4 == 0 and (pos + 1) // 4 + 1 < len(groups):
                pread((pos + 1) // 4 + 1)
            for tok in frees.get(u, []):
                self.ready.add(tok)
            self.pump(pas)

    def w_dma(self, vtmp, cond=False, tag=None):
        e = self.e
        e(f"v_lshrrev_b32 v{vtmp}, 1, v{vLANE}")
        e(f"v_mul_lo_u32 v{vtmp}, v{vtmp}, s{sT1}")
        e(f"v_and_b32 v{vtmp+1}, 1, v{vLANE}")
        e(f"v_lshl_add_u32 v{vtmp}, v{vtmp+1}, 4, v{vtmp}")
        e(f"s_lshl_b32 s{sT3}, s{sT1}, 5")
        for i in range(4):
            e(f"s_add_u32 m0, s{sWB}, {i*1024}")
            if i > 0:
                e(f"s_add_u32 s{sT2}, s{sT2}, s{sT3}")
            self.vm(f"buffer_load_dwordx4 v{vtmp}, s[{sW}:{sW+3}], s{sT2} offen lds", tag=tag if i == 3 else None, cond=cond)

    def w_frags(self, dst, vtmp):
        e = self.e
        e(f"v_lshrrev_b32 v{vtmp}, 4, v{vLANE}")
        e(f"v_lshlrev_b32 v{vtmp}, 3, v{vtmp}")
        e(f"v_bfe_u32 v{vtmp+1}, v{vLANE}, 2, 2")
        e(f"v_add_u32 v{vtmp}, v{vtmp}, v{vtmp+1}")
        e(f"v_lshlrev_b32 v{vtmp}, 5, v{vtmp}")
        e(f"v_and_b32 v{vtmp+1}, 3, v{vLANE}")
        e(f"v_lshl_add_u32 v{vtmp}, v{vtmp+1}, 3, v{vtmp}")
        e(f"v_add_u32 v{vtmp}, s{sWB}, v{vtmp}")
        for s in range(4):
            self.ds(f"ds_read_b64_tr_b16 v[{dst+4*s}:{dst+4*s+1}], v{vtmp} offset:{s*1024}")
            self.ds(f"ds_read_b64_tr_b16 v[{dst+4*s+2}:{dst+4*s+3}], v{vtmp} offset:{s*1024+128}")

    def set_wo(self):
        e = self.e
        self.srd(sW, sWO, 4096 * 512 * 2)
        e(f"s_mov_b32 s{sT1}, 1024")
        e(f"s_lshl_b32 s{sT2}, s{sH}, 17")
        e(f"s_lshl_b32 s{sT3}, s{sJ}, 7")
        e(f"s_add_u32 s{sT2}, s{sT2}, s{sT3}")
        e(f"s_lshl_b32 s{sT3}, s{sWAVE}, 5")
        e(f"s_add_u32 s{sT2}, s{sT2}, s{sT3}")

    def set_wq(self):
        e = self.e
        self.srd(sW, sWQ, 512 * 4096 * 2)
        e(f"s_mov_b32 s{sT1}, 8192")
        e(f"s_lshr_b32 s{sT2}, s{sJ}, 1")
        e(f"s_lshl_b32 s{sT2}, s{sT2}, 20")
        e(f"s_lshl_b32 s{sT3}, s{sH}, 8")
        e(f"s_add_u32 s{sT2}, s{sT2}, s{sT3}")
        e(f"s_and_b32 s{sT3}, s{sJ}, 1")
        e(f"s_lshl_b32 s{sT3}, s{sT3}, 7")
        e(f"s_add_u32 s{sT2}, s{sT2}, s{sT3}")
        e(f"s_lshl_b32 s{sT3}, s{sWAVE}, 5")
        e(f"s_add_u32 s{sT2}, s{sT2}, s{sT3}")

    def set_w1(self):
        e = self.e
        self.srd(sW, sW1, 512 * 1792 * 2)
        e(f"s_mov_b32 s{sT1}, 3584")
        e(f"s_mul_i32 s{sT2}, s{sWAVE}, {128*3584}")
        e(f"s_lshl_b32 s{sT3}, s2, 5")
        e(f"s_add_u32 s{sT2}, s{sT2}, s{sT3}")

    def stage1_dma(self):
        self.set_wo()
        self.w_dma(vT0, tag="wo")

    def stage2_dma(self):
        lf, lj = self.lab("Ls2"), self.lab("Ls2j")
        self.e(f"s_cmp_lt_u32 s2, {NF}")
        self.e(f"s_cbranch_scc1 {lf}")
        self.set_wq()
        self.e(f"s_branch {lj}")
        self.label(lf)
        self.set_w1()
        self.label(lj)
        self.w_dma(vT0, tag="w2nd")

    def last_block_hooks(self, pas):
        def h0():
            if pas == 1:
                self.arrival_load()
            L = self.L
            self.vm_wait("wo")
            self.w_frags(vQF, vT0)
            self.bfly_row("v_add_f32", [vLR])
            self.swap_reduce("v_add_f32", [vLR], [vT0], 16)
            self.swap_reduce("v_add_f32", [vLR], [vT0], 32)
            self.e(f"s_lshl_b32 s{sT0}, s{sWAVE}, 3")
            self.e(f"s_add_u32 s{sT0}, s{sT0}, {L['ML']}")
            self.e(f"v_mov_b32 v{vT0}, s{sT0}")
            self.ds(f"ds_write_b64 v{vT0}, v[{vMR}:{vMR+1}]")
            self.lg_wait_all()
            self.stage2_dma()
        return h0

    def pass1(self):
        cfg = self.cfg
        NR = cfg.NR
        assert NR == 8
        pas = 1
        self._vo = None
        kB = [("B", n, n % NR, False, [("slot", n % NR, "B", n + 8)] if n < 8 else [("slot", n % NR, "A", n)]) for n in range(16)]
        self.k_phase(kB, pas)
        self.stamp(6)
        self.softmax(first=True)
        self.v_phase("B", pas, True, list(range(32)), lambda t: False,
                     {31: [("tmpfree",)]}, {})
        self.stamp(7)
        kA = [("A", n, n % NR, False, [("slot", n % NR, "A", n - 8)]) for n in range(8, 16)] + \
             [("A", n, n, False, []) for n in range(8)]
        self.k_phase(kA, pas)
        self.stamp(8)
        self.softmax(first=False)
        if cfg.CAPEND: self.cap = cfg.CAPEND
        self.v_phase("A", pas, False, list(range(32)), lambda t: False, {}, {0: self.last_block_hooks(1)})
        self.cap = cfg.CAP
        assert not self.pending, self.pending
        self.arrival_check()

    def pass1_list(self):
        cfg = self.cfg
        nret = (256 - cfg.NWORK) // 4
        ls = [dict(kind="Q", t=t, tag=("V", "Q", t), need=None, cnt=1) for t in range(32)]
        k0 = [self.k_desc("B", n, n) for n in range(8)]
        for d in k0:
            d["need"] = None
        ls += k0
        vb = lambda t: self.v_desc("B", t, need=("qdone",) if t >= nret else None)
        ls += [vb(t) for t in range(cfg.INIT_V)]
        ls += [self.k_desc("B", n, n % 8) for n in range(8, 16)]
        ls += [vb(t) for t in range(cfg.INIT_V, 64)]
        ls += [self.k_desc("A", n, n % 8) for n in range(8, 16)]
        ls += [self.k_desc("A", n, n % 8) for n in range(0, 8)]
        ls += [dict(kind="F", fn=self.stage1_dma, need=None, cnt=4, tag="wo")]
        ntmp = 64 - nret
        ls += [self.v_desc("A", t, need=("tmpfree",) if t < ntmp else None) for t in range(64)]
        return ls

    def pass2(self):
        cfg = self.cfg
        pas = 2
        nret = (256 - cfg.NWORK) // 4
        self._vo = None
        for k in list(self.vm_tags):
            if isinstance(k, tuple) and k[0] in ("K", "V"):
                del self.vm_tags[k]
        self.vm_tags.pop("wo", None); self.vm_tags.pop("w2nd", None)
        self.ready = set()
        ls = []
        ls += [self.k_desc("A", n, n % 8) for n in range(8, 16)]
        ls += [self.k_desc("B", n, n % 8) for n in range(0, 16)]
        ls += [dict(kind="F", fn=self.stage1_dma, need=None, cnt=4, tag="wo")]
        ls += [self.v_desc("B", t, need=("afree",)) for t in range(nret, 64)]
        self.pending = ls
        kA = [("A", n, n, True, [("slot", n, "A", n + 8)]) for n in range(8)] + \
             [("A", n, n % 8, False, [("slot", n % 8, "B", n - 8)]) for n in range(8, 16)]
        self.k_phase(kA, pas)
        self.stamp(38)
        self.softmax(first=True)
        self.v_phase("A", pas, True, list(range(32)), lambda t: True, {31: [("afree",)]}, {})
        self.stamp(39)
        kB = [("B", n, n % 8, False, [("slot", n % 8, "B", n + 8)] if n < 8 else []) for n in range(16)]
        if cfg.CAPEND: self.cap = cfg.CAPEND
        self.k_phase(kB, pas)
        self.stamp(40)
        self.softmax(first=False)
        self.v_phase("B", pas, False, list(range(32)), lambda t: t < nret, {}, {0: self.last_block_hooks(2)})
        assert not self.pending, self.pending

    def prologue(self):
        cfg, L, e = self.cfg, self.L, self.e
        e("s_cmp_ge_u32 s2, 256")
        e("s_cbranch_scc1 L_exit")
        self.stamp(0)
        e("s_load_dwordx4 s[4:7], s[0:1], 8")
        e(f"s_load_dwordx2 s[{sX}:{sX+1}], s[0:1], 0")
        e(f"s_load_dwordx4 s[{sWQ}:{sWQ+3}], s[0:1], 24")
        e(f"s_load_dwordx2 s[{sT4}:{sT4+1}], s[0:1], 96")
        e(f"s_load_dwordx2 s[{sW1}:{sW1+1}], s[0:1], 48")
        e(f"s_load_dwordx2 s[{sB1}:{sB1+1}], s[0:1], 56")
        e(f"s_load_dwordx2 s[{sW2}:{sW2+1}], s[0:1], 64")
        e(f"s_load_dwordx2 s[{sB2}:{sB2+1}], s[0:1], 72")
        e(f"s_load_dwordx4 s[{sOUT}:{sOUT+3}], s[0:1], 80")
        e(f"v_lshrrev_b32 v{vT0}, 6, v0")
        e(f"v_and_b32 v{vLANE}, 63, v0")
        e(f"v_readfirstlane_b32 s{sWAVE}, v{vT0}")
        if cfg.XMAP:
            e(f"s_and_b32 s{sH}, s2, 7")
            e(f"s_lshl_b32 s{sH}, s{sH}, 2")
            e(f"s_bfe_u32 s{sJ}, s2, 0x20003")
            e(f"s_add_u32 s{sH}, s{sH}, s{sJ}")
            e(f"s_lshr_b32 s{sJ}, s2, 5")
        else:
            e(f"s_lshr_b32 s{sH}, s2, 3")
            e(f"s_and_b32 s{sJ}, s2, 7")
        e(f"s_lshr_b32 s{sB}, s{sJ}, 2")
        e(f"s_and_b32 s{sC}, s{sJ}, 3")
        e(f"s_lshl_b32 s{sBLK}, s{sH}, 3")
        e(f"s_add_u32 s{sBLK}, s{sBLK}, s{sJ}")
        e(f"s_lshl_b32 s{sBLK}, s{sBLK}, 14")
        e(f"s_lshl_b32 s{sBLKW}, s2, 14")
        e(f"s_mov_b32 s{sL}, 0")
        e(f"s_mul_i32 s{sRING}, s{sWAVE}, {cfg.NR*4096}")
        e(f"s_lshl_b32 s{sWB}, s{sWAVE}, 12")
        e(f"s_add_u32 s{sWB}, s{sWB}, {L['W']}")
        e(f"s_mov_b32 s{sM0}, 0x00010001"); e(f"s_mov_b32 s{sM0+1}, 0x00010001")
        e(f"s_mov_b32 s{sLT8}, 0x00ff00ff"); e(f"s_mov_b32 s{sLT8+1}, 0x00ff00ff")
        e(f"s_mov_b32 s{sN2}, 0x00030003"); e(f"s_mov_b32 s{sN2+1}, 0x00030003")
        e(f"s_mov_b32 s{sN3}, 0x00070007"); e(f"s_mov_b32 s{sN3+1}, 0x00070007")
        e(f"s_mov_b32 s{sCS}, {hex(f2u(SCALE))}")
        e(f"s_lshl_b32 s{sT0}, s{sB}, 5")
        e(f"s_add_u32 s{sT0}, s{sT0}, s{sH}")
        e(f"s_lshl_b32 s{sT0}, s{sT0}, 21")
        e(f"s_lshl_b32 s{sT1}, s{sC}, 19")
        e(f"s_add_u32 s{sT0}, s{sT0}, s{sT1}")
        e(f"s_lshl_b32 s{sT1}, s{sWAVE}, 17")
        e(f"s_add_u32 s{sT0}, s{sT0}, s{sT1}")
        e(f"v_lshlrev_b32 v{vVOFF}, 4, v{vLANE}")
        e(f"v_lshrrev_b32 v{vT1}, 4, v{vLANE}")
        e(f"v_lshlrev_b32 v{vT1}, 13, v{vT1}")
        e(f"v_and_b32 v{vT0}, 15, v{vLANE}")
        e(f"v_lshl_add_u32 v{vT1}, v{vT0}, 4, v{vT1}")
        e(f"s_lshl_b32 s{sT2}, s{sWAVE}, 20")
        e(f"s_lshl_b32 s{sT3}, s{sH}, 8")
        e(f"s_add_u32 s{sT2}, s{sT2}, s{sT3}")
        e("s_waitcnt lgkmcnt(0)")
        e(f"s_add_u32 s{sV}, s6, s{sT0}")
        e(f"s_addc_u32 s{sV+1}, s7, 0")
        e(f"s_and_b32 s{sV+1}, s{sV+1}, 0xffff")
        e(f"s_mov_b32 s{sV+2}, 131072")
        e(f"s_mov_b32 s{sV+3}, 0x20000")
        self.srd(sK, 4, 131072, add=sT0)
        self.srd(sWS, sT4, 256 * BLK + (1 << 20))
        self.c("clear own hand-off slots")
        for r in range(4):
            e(f"v_mov_b32 v{vD+r}, -1")
        e(f"s_cmp_eq_u32 s{sWAVE}, 3")
        e(f"s_cselect_b32 s{sT1}, s{sBLKW}, s{sBLK}")
        e(f"s_lshl_b32 s{sT0}, s{sWAVE}, 10")
        e(f"s_add_u32 s{sT1}, s{sT0}, s{sT1}")
        self.vm(f"buffer_store_dwordx4 v[{vD}:{vD+3}], v{vVOFF}, s[{sWS}:{sWS+3}], s{sT1} offen sc1")
        e(f"s_add_u32 s{sT1}, s{sT1}, {LOFF}")
        self.vm(f"buffer_store_dwordx4 v[{vD}:{vD+3}], v{vVOFF}, s[{sWS}:{sWS+3}], s{sT1} offen sc1")
        lnf = self.lab("Lnf")
        e(f"s_cmp_lt_u32 s2, {NF}")
        e(f"s_cbranch_scc0 {lnf}")
        e(f"s_add_u32 s{sT0}, s{sT0}, s{sBLKW}")
        e(f"s_add_u32 s{sT0}, s{sT0}, {FP}")
        e(f"s_add_u32 s{sT1}, s{sT0}, {LOFF}")
        self.vm(f"buffer_store_dwordx4 v[{vD}:{vD+3}], v{vVOFF}, s[{sWS}:{sWS+3}], s{sT0} offen sc1", cond=True)
        self.vm(f"buffer_store_dwordx4 v[{vD}:{vD+3}], v{vVOFF}, s[{sWS}:{sWS+3}], s{sT1} offen sc1", cond=True)
        self.label(lnf)
        self.srd(sW, sX, 2048)
        lnr = self.lab("Lnr")
        e(f"s_cmp_ge_u32 s2, {R0}")
        e(f"s_cbranch_scc0 {lnr}")
        e(f"s_sub_u32 s{sT0}, s2, {R0}")
        e(f"s_lshl_b32 s{sT0}, s{sT0}, 6")
        e(f"v_and_b32 v{vT0}, 7, v{vLANE}")
        e(f"v_lshlrev_b32 v{vT0}, 3, v{vT0}")
        self.vm(f"buffer_load_dwordx2 v[{vO}:{vO+1}], v{vT0}, s[{sW}:{sW+3}], s{sT0} offen", cond=True)
        self.label(lnr)
        e(f"s_lshl_b32 s{sT0}, s{sB}, 10")
        self.vm(f"buffer_load_dwordx4 v[{vS}:{vS+3}], v{vVOFF}, s[{sW}:{sW+3}], s{sT0} offen", tag="xrow")
        self.srd(sW, sWQ, 512 * 4096 * 2)
        self.pending = self.pass1_list()
        self.cap = cfg.CAP0
        self._vo = None
        self.pump(1, limit=32)
        self.consts()
        self.pump(1)
        self.stamp(1)
        e(f"v_and_b32 v{vD}, 31, v{vLANE}")
        e(f"v_lshlrev_b32 v{vD}, 3, v{vD}")
        e(f"v_add_u32 v{vD}, {L['XQ']+512}, v{vD}")
        e(f"v_mov_b32 v{vD+2}, 0x3f803f80"); e(f"v_mov_b32 v{vD+3}, 0x3f803f80")
        self.ds(f"ds_write_b64 v{vD}, v[{vD+2}:{vD+3}]")
        self.vm_wait("xrow")
        self.stamp(3)
        x = vD
        for r in range(4):
            e(f"v_lshlrev_b32 v{x+2*r}, 16, v{vS+r}")
            e(f"v_and_b32 v{x+2*r+1}, 0xffff0000, v{vS+r}")
        e(f"v_add_f32 v{vMR}, v{x}, v{x+1}")
        e(f"v_mul_f32 v{vLR}, v{x}, v{x}")
        e(f"v_fmac_f32 v{vLR}, v{x+1}, v{x+1}")
        for r in range(2, 8):
            e(f"v_add_f32 v{vMR}, v{vMR}, v{x+r}")
            e(f"v_fmac_f32 v{vLR}, v{x+r}, v{x+r}")
        lnr2 = self.lab("Lnr2")
        e(f"s_cmp_ge_u32 s2, {R0}")
        e(f"s_cbranch_scc0 {lnr2}")
        e(f"v_lshlrev_b32 v{vO+4}, 16, v{vO}")
        e(f"v_and_b32 v{vO+5}, 0xffff0000, v{vO}")
        e(f"v_lshlrev_b32 v{vO+6}, 16, v{vO+1}")
        e(f"v_and_b32 v{vO+7}, 0xffff0000, v{vO+1}")
        e(f"v_and_b32 v{vT0}, 7, v{vLANE}")
        e(f"v_lshlrev_b32 v{vT0}, 4, v{vT0}")
        e(f"v_add_u32 v{vT0}, {L['XRES']}, v{vT0}")
        e(f"ds_write_b128 v{vT0}, v[{vO+4}:{vO+7}]")
        self.label(lnr2)
        self.bfly_row("v_add_f32", [vMR, vLR])
        self.swap_reduce("v_add_f32", [vMR, vLR], [vT0, vT1], 16)
        self.swap_reduce("v_add_f32", [vMR, vLR], [vT0, vT1], 32)
        self.mean_rstd(vMR, vLR, None)
        for r in range(8):
            e(f"v_sub_f32 v{x+r}, v{x+r}, v{vMR}")
        for r in range(8):
            e(f"v_mul_f32 v{x+r}, v{vLR}, v{x+r}")
        for r in range(8):
            e(f"v_cvt_pk_bf16_f32 v{x+r}, v{x+r}, v{x+r}")
        e(f"s_mul_i32 s{sT0}, s{sWAVE}, 1152")
        e(f"s_add_u32 s{sT0}, s{sT0}, {L['PBUF']}")
        e(f"v_and_b32 v{vT0}, 15, v{vLANE}")
        e(f"v_lshlrev_b32 v{vT0}, 2, v{vT0}")
        e(f"v_add_u32 v{vT0}, s{sT0}, v{vT0}")
        e(f"s_lshl_b32 s{sT0}, s{sWAVE}, 4")
        e(f"s_mov_b64 s[{sMK}:{sMK+1}], 0xffff")
        e(f"s_lshl_b64 s[{sMK}:{sMK+1}], s[{sMK}:{sMK+1}], s{sT0}")
        e(f"s_mov_b64 exec, s[{sMK}:{sMK+1}]")
        for r in range(8):
            self.ds(f"ds_write_b32 v{vT0}, v{x+r} offset:{r*144}")
        e("s_mov_b64 exec, -1")
        self.lg_wait_all()
        self.stamp(4)
        self.v_phase("Q", 1, True, list(range(16)), lambda t: False, {15: [("qdone",)]}, {})
        self.cap = cfg.CAP
        self.stamp(2)
        t = vS
        e(f"v_and_b32 v{vT0}, 15, v{vLANE}")
        e(f"v_lshrrev_b32 v{vT1}, 3, v{vT0}")
        e(f"s_lshl_b32 s{sT0}, s{sWAVE}, 1")
        e(f"v_add_u32 v{vT1}, s{sT0}, v{vT1}")
        e(f"v_lshlrev_b32 v{vT1}, 9, v{vT1}")
        e(f"v_and_b32 v{vT0}, 7, v{vT0}")
        e(f"v_lshl_add_u32 v{vT1}, v{vT0}, 2, v{vT1}")
        e(f"v_lshrrev_b32 v{vT0}, 4, v{vLANE}")
        e(f"v_lshl_add_u32 v{vT1}, v{vT0}, 7, v{vT1}")
        e(f"v_add_u32 v{vT1}, {L['RED']}, v{vT1}")
        for r in range(4):
            e(f"v_cndmask_b32 v{t+r}, v{vO+4+r}, v{vO+r}, s[{sLT8}:{sLT8+1}]")
        for r in range(4):
            e(f"ds_write_b32 v{vT1}, v{t+r} offset:{r*32}")
        e(f"s_and_b32 s{sT0}, s{sWAVE}, 1")
        e(f"s_lshl_b32 s{sT0}, s{sT0}, 8")
        e(f"v_lshlrev_b32 v{vT0}, 2, v{vLANE}")
        e(f"v_add_u32 v{vT0}, s{sT0}, v{vT0}")
        e(f"v_lshrrev_b32 v{vT1}, 1, v{vT0}")
        e(f"v_add_u32 v{vT1}, {L['QBUF']}, v{vT1}")
        e(f"v_add_u32 v{vT0}, {L['RED']}, v{vT0}")
        e("s_waitcnt lgkmcnt(0)")
        e("s_barrier")
        t = vD
        for p in range(8):
            e(f"ds_read_b32 v{t+p}, v{vT0} offset:{p*512}")
        la = self.lab("Larr")
        e(f"s_cmp_lg_u32 s{sWAVE}, 0")
        e(f"s_cbranch_scc1 {la}")
        self.srd(sW, sDBG, 256)
        e(f"s_lshl_b32 s{sT1}, s{sH}, 2")
        e(f"v_mov_b32 v{vS}, s{sT1}")
        e(f"v_mov_b32 v{vS+1}, 1")
        e("s_mov_b64 exec, 1")
        self.vm(f"buffer_atomic_add v{vS+1}, v{vS}, s[{sW}:{sW+3}], 0 offen sc1", cond=True)
        e("s_mov_b64 exec, -1")
        self.label(la)
        e("s_waitcnt lgkmcnt(0)")
        for p in range(0, 8, 2):
            e(f"v_add_f32 v{t+p}, v{t+p}, v{t+p+1}")
        e(f"v_add_f32 v{t}, v{t}, v{t+2}")
        e(f"v_add_f32 v{t+4}, v{t+4}, v{t+6}")
        e(f"v_add_f32 v{t}, v{t}, v{t+4}")
        e(f"v_cvt_pk_bf16_f32 v{t}, v{t}, v{t}")
        e(f"ds_write_b16 v{vT1}, v{t}")
        e(f"v_and_b32 v{vT0}, 48, v{vLANE}")
        e(f"v_add_u32 v{vT0}, {L['QBUF']}, v{vT0}")
        e("s_waitcnt lgkmcnt(0)")
        e("s_barrier")
        for s in range(4):
            e(f"ds_read_b128 v[{vQF+4*s}:{vQF+4*s+3}], v{vT0} offset:{s*64}")
        e("s_waitcnt lgkmcnt(0)")
        self.stamp(5)

    def arrival_load(self):
        e = self.e
        l = self.lab("Lal")
        e(f"s_cmp_lg_u32 s{sWAVE}, 0")
        e(f"s_cbranch_scc1 {l}")
        self.srd(sW, sDBG, 256)
        e(f"v_and_b32 v{vS+1}, 31, v{vLANE}")
        e(f"v_lshlrev_b32 v{vS+1}, 2, v{vS+1}")
        self.vm(f"buffer_load_dword v{vS}, v{vS+1}, s[{sW}:{sW+3}], 0 offen sc1", cond=True)
        self.label(l)

    def arrival_check(self):
        e = self.e
        l = self.lab("Lac")
        e(f"s_cmp_lg_u32 s{sWAVE}, 0")
        e(f"s_cbranch_scc1 {l}")
        e("s_waitcnt vmcnt(0)")
        e(f"v_cmp_gt_u32 vcc, 8, v{vS}")
        e(f"s_cbranch_vccz {l}")
        self.srd(sW, sDBG, 256)
        lp = self.poll_begin()
        e(f"buffer_load_dword v{vS}, v{vS+1}, s[{sW}:{sW+3}], 0 offen sc1")
        e("s_waitcnt vmcnt(0)")
        e(f"v_cmp_gt_u32 vcc, 8, v{vS}")
        self.poll_end(lp)
        self.label(l)

    def stats_partial(self, x):
        e = self.e
        e(f"v_add_f32 v{vMR}, v{x}, v{x+1}")
        e(f"v_mul_f32 v{vLR}, v{x}, v{x}")
        e(f"v_add_f32 v{vMR}, v{vMR}, v{x+2}")
        e(f"v_fmac_f32 v{vLR}, v{x+1}, v{x+1}")
        e(f"v_add_f32 v{vMR}, v{vMR}, v{x+3}")
        e(f"v_fmac_f32 v{vLR}, v{x+2}, v{x+2}")
        e(f"v_fmac_f32 v{vLR}, v{x+3}, v{x+3}")
        self.bfly_row("v_add_f32", [vMR, vLR])
        self.swap_reduce("v_add_f32", [vMR, vLR], [vT0, vT1], 16)

    def qe(self):
        cfg, L, e = self.cfg, self.L, self.e
        self.label("L_QE")
        e("s_barrier")
        self.stamp(34)
        e(f"v_and_b32 v{vT0}, 15, v{vLANE}")
        e(f"v_min_u32 v{vT1}, 2, v{vT0}")
        e(f"v_lshlrev_b32 v{vT1}, 8, v{vT1}")
        e(f"v_and_b32 v{vO}, 48, v{vLANE}")
        e(f"v_add_u32 v{vT1}, v{vT1}, v{vO}")
        e(f"v_add_u32 v{vT1}, {L['XQ']}, v{vT1}")
        e(f"v_lshlrev_b32 v{vT0}, 8, v{vT0}")
        e(f"v_add_u32 v{vT0}, v{vT0}, v{vO}")
        for s in range(4):
            e(f"ds_read_b128 v[{vD+4*s}:{vD+4*s+3}], v{vT1} offset:{s*64}")
        e(f"s_lshl_b32 s{sT0}, s{sWAVE}, 6")
        e(f"s_add_u32 s{sT0}, s{sT0}, s{sBLK}")
        e(f"s_add_u32 s{sT0}, s{sT0}, s{sL}")
        e("s_waitcnt lgkmcnt(0)")
        d = vO + 4
        for s in range(4):
            c = "0" if s == 0 else f"v[{d}:{d+3}]"
            e(f"v_mfma_f32_16x16x32_bf16 v[{d}:{d+3}], v[{vKF+4*s}:{vKF+4*s+3}], v[{vD+4*s}:{vD+4*s+3}], {c}")
        e(f"s_mov_b64 exec, s[{sN3}:{sN3+1}]")
        e(f"buffer_store_dwordx4 v[{d}:{d+3}], v{vT0}, s[{sWS}:{sWS+3}], s{sT0} offen offset:{QP} sc1")
        e("s_mov_b64 exec, -1")
        e(f"s_cmp_lg_u32 s{sWAVE}, 0")
        e("s_cbranch_scc1 L_QE_wait")
        e(f"v_lshrrev_b32 v{vT0}, 5, v{vLANE}")
        e(f"v_lshlrev_b32 v{vT0}, 3, v{vT0}")
        e(f"s_add_u32 s{sT0}, s{sBLK}, s{sL}")
        e("s_mov_b32 exec_lo, 1"); e("s_mov_b32 exec_hi, 1")
        e(f"buffer_store_dwordx2 v[{vMR}:{vMR+1}], v{vT0}, s[{sWS}:{sWS+3}], s{sT0} offen offset:{QST} sc1")
        e("s_mov_b64 exec, -1")
        e(f"v_bfe_u32 v{vT0}, v{vLANE}, 4, 1")
        e(f"v_lshrrev_b32 v{vT1}, 5, v{vLANE}")
        e(f"v_lshl_add_u32 v{vT0}, v{vT1}, 1, v{vT0}")
        e(f"v_lshlrev_b32 v{vT0}, 14, v{vT0}")
        e(f"v_and_b32 v{vT1}, 15, v{vLANE}")
        e(f"v_lshl_add_u32 v{vT0}, v{vT1}, 4, v{vT0}")
        e(f"s_lshl_b32 s{sT0}, s{sH}, 17")
        e(f"s_add_u32 s{sT0}, s{sT0}, s{sL}")
        e(f"s_lshl_b32 s{sT1}, s{sB}, 8")
        e(f"s_add_u32 s{sT1}, s{sT1}, s{sT0}")
        e(f"s_add_u32 s{sT2}, s{sT1}, {4*BLK}")
        e(f"v_and_b32 v{vT1}, 3, v{vLANE}")
        e(f"v_lshlrev_b32 v{vT1}, 15, v{vT1}")
        e(f"s_lshl_b32 s{sT3}, s{sB}, 3")
        e(f"s_add_u32 s{sT3}, s{sT3}, s{sT0}")
        e(f"s_add_u32 s{sT4}, s{sT0}, 512")
        e(f"s_add_u32 s{sT5}, s{sT4}, {4*BLK}")
        cs = vD + 12
        lp = self.poll_begin()
        e(f"buffer_load_dwordx4 v[{vD}:{vD+3}], v{vT0}, s[{sWS}:{sWS+3}], s{sT1} offen offset:{QP} sc1")
        e(f"buffer_load_dwordx4 v[{vD+4}:{vD+7}], v{vT0}, s[{sWS}:{sWS+3}], s{sT2} offen offset:{QP} sc1")
        e(f"buffer_load_dwordx2 v[{vD+8}:{vD+9}], v{vT1}, s[{sWS}:{sWS+3}], s{sT3} offen offset:{QST} sc1")
        e(f"buffer_load_dwordx4 v[{cs}:{cs+3}], v{vT0}, s[{sWS}:{sWS+3}], s{sT4} offen offset:{QP} sc1")
        e(f"buffer_load_dwordx4 v[{vKF}:{vKF+3}], v{vT0}, s[{sWS}:{sWS+3}], s{sT5} offen offset:{QP} sc1")
        e("s_waitcnt vmcnt(0)")
        self.poll_check(list(range(vD, vD + 10)) + list(range(cs, cs + 4)) + list(range(vKF, vKF + 4)), vKF + 4)
        self.poll_end(lp)
        self.stamp(36)
        for r in range(4):
            e(f"v_add_f32 v{cs+r}, v{cs+r}, v{vKF+r}")
            e(f"v_add_f32 v{vD+r}, v{vD+r}, v{vD+4+r}")
        self.swap_reduce("v_add_f32", [cs + r for r in range(4)] + [vD + r for r in range(4)],
                         [vKF + r for r in range(4)] + [vD + 4 + r for r in range(4)], 32)
        s1, s2 = vD + 8, vD + 9
        for qp in ("[1,0,3,2]", "[2,3,0,1]"):
            for r in (s1, s2):
                e(f"v_add_f32_dpp v{r}, v{r}, v{r} quad_perm:{qp} row_mask:0xf bank_mask:0xf")
        self.mean_rstd(s1, s2, vD + 10)
        for r in range(4):
            e(f"v_fma_f32 v{vD+r}, -v{s1}, v{cs+r}, v{vD+r}")
        for r in range(4):
            e(f"v_mul_f32 v{vD+r}, v{s2}, v{vD+r}")
        e(f"v_cvt_pk_bf16_f32 v{vD+4}, v{vD}, v{vD+1}")
        e(f"v_cvt_pk_bf16_f32 v{vD+5}, v{vD+2}, v{vD+3}")
        e(f"v_and_b32 v{vT0}, 31, v{vLANE}")
        e(f"v_lshlrev_b32 v{vT0}, 3, v{vT0}")
        e(f"v_add_u32 v{vT0}, {L['QBUF']}, v{vT0}")
        e(f"ds_write_b64 v{vT0}, v[{vD+4}:{vD+5}]")
        self.label("L_QE_wait")
        e(f"v_and_b32 v{vT1}, 48, v{vLANE}")
        e(f"v_add_u32 v{vT1}, {L['QBUF']}, v{vT1}")
        e("s_waitcnt lgkmcnt(0)")
        e("s_barrier")
        for s in range(4):
            e(f"ds_read_b128 v[{vQF+4*s}:{vQF+4*s+3}], v{vT1} offset:{s*64}")
        e("s_waitcnt lgkmcnt(0)")
        self.stamp(37)

    def mean_rstd(self, s1, s2, t):
        e = self.e
        e(f"v_mul_f32 v{s1}, {hex(f2u(1/512))}, v{s1}")
        e(f"v_mul_f32 v{s2}, {hex(f2u(1/512))}, v{s2}")
        e(f"v_fma_f32 v{s2}, -v{s1}, v{s1}, v{s2}")
        e(f"v_max_f32 v{s2}, 0, v{s2}")
        e(f"v_add_f32 v{s2}, {hex(f2u(1e-5))}, v{s2}")
        e(f"v_rsq_f32 v{s2}, v{s2}")

    def tail(self):
        cfg, L, e = self.cfg, self.L, self.e
        self.label("L_TAIL")
        self.stamp(9, True)
        t = vD
        e(f"v_and_b32 v{vT0}, 15, v{vLANE}")
        e(f"v_lshrrev_b32 v{vT1}, 3, v{vT0}")
        e(f"s_lshl_b32 s{sT0}, s{sWAVE}, 1")
        e(f"v_add_u32 v{vT1}, s{sT0}, v{vT1}")
        e(f"v_lshlrev_b32 v{vT1}, 9, v{vT1}")
        e(f"v_and_b32 v{vT0}, 7, v{vT0}")
        e(f"v_lshl_add_u32 v{vT1}, v{vT0}, 2, v{vT1}")
        e(f"v_lshrrev_b32 v{vT0}, 4, v{vLANE}")
        e(f"v_lshl_add_u32 v{vT1}, v{vT0}, 7, v{vT1}")
        e(f"v_add_u32 v{vT1}, {L['RED']}, v{vT1}")
        for r in range(4):
            e(f"v_cndmask_b32 v{t+r}, v{vO+4+r}, v{vO+r}, s[{sLT8}:{sLT8+1}]")
        for r in range(4):
            e(f"ds_write_b32 v{vT1}, v{t+r} offset:{r*32}")
        dv = 2
        e(f"s_and_b32 s{sT0}, s{sWAVE}, 1")
        e(f"s_lshl_b32 s{sT0}, s{sT0}, 8")
        e(f"v_lshlrev_b32 v{dv}, 2, v{vLANE}")
        e(f"v_add_u32 v{dv}, s{sT0}, v{dv}")
        e(f"v_add_u32 v{vT0}, {L['RED']}, v{dv}")
        e(f"v_mov_b32 v{vT1}, {L['ML']}")
        e("s_waitcnt lgkmcnt(0)")
        e("s_barrier")
        for p in range(8):
            e(f"ds_read_b32 v{t+p}, v{vT0} offset:{p*512}")
        e(f"ds_read_b128 v[{vS}:{vS+3}], v{vT1}")
        e(f"ds_read_b128 v[{vO}:{vO+3}], v{vT1} offset:16")
        e(f"s_add_u32 s{sT0}, s{sBLK}, s{sL}")
        e("s_waitcnt lgkmcnt(0)")
        m = [vS, vS + 2, vO, vO + 2]; l = [vS + 1, vS + 3, vO + 1, vO + 3]
        M = vO + 4
        e(f"v_max3_f32 v{M}, v{m[0]}, v{m[1]}, v{m[2]}")
        e(f"v_max_f32 v{M}, v{M}, v{m[3]}")
        for w in range(4):
            e(f"v_sub_f32 v{m[w]}, v{m[w]}, v{M}")
        for w in range(4):
            e(f"v_mul_f32 v{m[w]}, s{sCS}, v{m[w]}")
        for w in range(4):
            e(f"v_exp_f32 v{m[w]}, v{m[w]}")
        for w in range(4):
            e(f"v_add_f32 v{t+2*w}, v{t+2*w}, v{t+2*w+1}")
        e(f"v_mul_f32 v{t}, v{m[0]}, v{t}")
        e(f"v_mul_f32 v{M+1}, v{m[0]}, v{l[0]}")
        for w in range(1, 4):
            e(f"v_fmac_f32 v{t}, v{m[w]}, v{t+2*w}")
            e(f"v_fmac_f32 v{M+1}, v{m[w]}, v{l[w]}")
        lsk = self.lab("Lop")
        e(f"s_cmp_ge_u32 s{sWAVE}, 2")
        e(f"s_cbranch_scc1 {lsk}")
        e(f"buffer_store_dword v{t}, v{dv}, s[{sWS}:{sWS+3}], s{sT0} offen offset:{OP} sc1")
        e(f"s_cmp_lg_u32 s{sWAVE}, 0")
        e(f"s_cbranch_scc1 {lsk}")
        e(f"s_mov_b64 s[{sEX}:{sEX+1}], exec")
        e("s_mov_b64 exec, 1")
        e(f"buffer_store_dwordx2 v[{M}:{M+1}], off, s[{sWS}:{sWS+3}], s{sT0} offset:{OP+512} sc1")
        e(f"s_mov_b64 exec, s[{sEX}:{sEX+1}]")
        self.label(lsk)
        self.stamp(10, True)
        e("s_waitcnt vmcnt(0)")
        self.w_frags(vKF, vT0)
        lnf = self.lab("Lnf")
        e(f"s_cmp_lt_u32 s2, {NF}")
        e(f"s_cbranch_scc0 {lnf}")
        e(f"v_mov_b32 v{t}, 0x3f803f80")
        for r in range(1, 4):
            e(f"v_mov_b32 v{t+r}, v{t}")
        e("s_waitcnt lgkmcnt(0)")
        for s in range(4):
            c = "0" if s == 0 else f"v[{vO}:{vO+3}]"
            e(f"v_mfma_f32_16x16x32_bf16 v[{vO}:{vO+3}], v[{vKF+4*s}:{vKF+4*s+3}], v[{t}:{t+3}], {c}")
        e(f"s_lshl_b32 s{sT0}, s{sWAVE}, 6")
        e(f"s_add_u32 s{sT0}, s{sT0}, {L['CS1P']}")
        e(f"v_and_b32 v{vT0}, 48, v{vLANE}")
        e(f"v_add_u32 v{vT0}, s{sT0}, v{vT0}")
        e(f"ds_write_b128 v{vT0}, v[{vO}:{vO+3}]")
        self.label(lnf)
        e("s_waitcnt lgkmcnt(0)")
        self.c("stage A")
        e(f"s_lshr_b32 s{sT0}, s{sWAVE}, 1")
        e(f"s_lshl_b32 s{sT0}, s{sT0}, 2")
        e(f"s_lshl_b32 s{sT1}, s{sH}, 3")
        e(f"s_add_u32 s{sT0}, s{sT0}, s{sT1}")
        e(f"s_lshl_b32 s{sT0}, s{sT0}, 14")
        e(f"s_add_u32 s{sT0}, s{sT0}, s{sL}")
        e(f"s_add_u32 s{sT1}, s{sT0}, {BLK}")
        e(f"s_add_u32 s{sT2}, s{sT0}, {2*BLK}")
        e(f"s_add_u32 s{sT3}, s{sT0}, {3*BLK}")
        so = [sT0, sT1, sT2, sT3]
        lp = self.poll_begin()
        for c in range(4):
            e(f"buffer_load_dword v{t+c}, v{dv}, s[{sWS}:{sWS+3}], s{so[c]} offen offset:{OP} sc1")
        for c in range(4):
            e(f"buffer_load_dwordx2 v[{t+4+2*c}:{t+5+2*c}], off, s[{sWS}:{sWS+3}], s{so[c]} offset:{OP+512} sc1")
        e("s_waitcnt vmcnt(0)")
        self.poll_check(range(t, t + 12), vT0)
        self.poll_end(lp)
        self.stamp(11, True)
        m = [t + 4 + 2 * c for c in range(4)]; l = [t + 5 + 2 * c for c in range(4)]
        M = vO
        e(f"v_max3_f32 v{M}, v{m[0]}, v{m[1]}, v{m[2]}")
        e(f"v_max_f32 v{M}, v{M}, v{m[3]}")
        for c in range(4):
            e(f"v_sub_f32 v{m[c]}, v{m[c]}, v{M}")
        for c in range(4):
            e(f"v_mul_f32 v{m[c]}, s{sCS}, v{m[c]}")
        for c in range(4):
            e(f"v_exp_f32 v{m[c]}, v{m[c]}")
        e(f"v_lshrrev_b32 v{vT0}, 1, v{dv}")
        e(f"s_lshr_b32 s{sT0}, s{sWAVE}, 1")
        e(f"s_lshl_b32 s{sT0}, s{sT0}, 8")
        e(f"s_add_u32 s{sT0}, s{sT0}, {L['XQ']}")
        e(f"v_add_u32 v{vT0}, s{sT0}, v{vT0}")
        e(f"v_mul_f32 v{M+1}, v{m[0]}, v{l[0]}")
        e(f"v_mul_f32 v{t}, v{m[0]}, v{t}")
        for c in range(1, 4):
            e(f"v_fmac_f32 v{M+1}, v{m[c]}, v{l[c]}")
            e(f"v_fmac_f32 v{t}, v{m[c]}, v{t+c}")
        e(f"v_rcp_f32 v{M+1}, v{M+1}")
        e(f"v_mul_f32 v{t}, v{M+1}, v{t}")
        e(f"v_cvt_pk_bf16_f32 v{t}, v{t}, v{t}")
        e(f"ds_write_b16 v{vT0}, v{t}")
        e(f"v_and_b32 v{vT0}, 15, v{vLANE}")
        e(f"v_min_u32 v{vT1}, 2, v{vT0}")
        e(f"v_lshlrev_b32 v{vT1}, 8, v{vT1}")
        e(f"v_and_b32 v{3}, 48, v{vLANE}")
        e(f"v_add_u32 v{vT1}, v{vT1}, v3")
        e(f"v_add_u32 v{vT1}, {L['XQ']}, v{vT1}")
        e(f"v_lshlrev_b32 v{vT0}, 8, v{vT0}")
        e(f"v_add_u32 v{vT0}, v{vT0}, v3")
        e(f"s_lshl_b32 s{sT0}, s{sWAVE}, 6")
        e(f"s_add_u32 s{sT0}, s{sT0}, s{sBLK}")
        e(f"s_add_u32 s{sT0}, s{sT0}, s{sL}")
        e("s_waitcnt lgkmcnt(0)")
        e("s_barrier")
        for s in range(4):
            e(f"ds_read_b128 v[{t+4*s}:{t+4*s+3}], v{vT1} offset:{s*64}")
        e("s_waitcnt lgkmcnt(0)")
        d = vO + 4
        for s in range(4):
            c = "0" if s == 0 else f"v[{d}:{d+3}]"
            e(f"v_mfma_f32_16x16x32_bf16 v[{d}:{d+3}], v[{vQF+4*s}:{vQF+4*s+3}], v[{t+4*s}:{t+4*s+3}], {c}")
        e(f"s_mov_b64 s[{sEX}:{sEX+1}], exec")
        e(f"s_mov_b64 exec, s[{sN2}:{sN2+1}]")
        e(f"buffer_store_dwordx4 v[{d}:{d+3}], v{vT0}, s[{sWS}:{sWS+3}], s{sT0} offen offset:{YP} sc1")
        e(f"s_mov_b64 exec, s[{sEX}:{sEX+1}]")
        self.stamp(12, True)
        e(f"s_cmp_lt_u32 s2, {NF}")
        e("s_cbranch_scc1 L_FFN")
        e(f"s_cmp_ge_u32 s2, {R0}")
        e("s_cbranch_scc1 L_RED")
        e(f"s_cmp_lg_u32 s{sL}, 0")
        e("s_cbranch_scc1 L_end")
        if cfg.PF:
            self.l2_prefetch(cfg.PF, True)
        e("s_branch L_G2")
        self.ffn()
        self.reducer()
        self.g2()

    def l2_prefetch(self, ntiles, partner):
        cfg, L, e = self.cfg, self.L, self.e
        e(f"s_mul_i32 s{sT0}, s{sWAVE}, 1152")
        e(f"s_add_u32 m0, s{sT0}, {L['PBUF']}")
        n = [0]

        def run(srd):
            for i in range(4 * ntiles):
                if i == 0:
                    e(f"s_mov_b32 s{sKO}, {8*4096}")
                else:
                    e(f"s_add_u32 s{sKO}, s{sKO}, 1024")
                if n[0] >= cfg.PFD:
                    e(f"s_waitcnt vmcnt({cfg.PFD-1})")
                e(f"buffer_load_dwordx4 v{vVOFF}, s[{srd}:{srd+3}], s{sKO} offen {cfg.PFPOL} lds")
                n[0] += 1
        run(sK)
        if partner:
            l = self.lab("Lpf")
            e("s_cmp_ge_u32 s2, 192")
            e(f"s_cbranch_scc0 {l}")
            e(f"s_add_u32 s{sW}, s{sK}, 0x80000")
            e(f"s_addc_u32 s{sW+1}, s{sK+1}, 0")
            e(f"s_mov_b32 s{sW+2}, 131072")
            e(f"s_mov_b32 s{sW+3}, 0x20000")
            run(sW)
            self.label(l)

    def red_reduce(self, x):
        L, e = self.L, self.e
        regs = [x + r for r in range(4)]
        self.bfly_row("v_add_f32", regs, steps=(8,))
        tm = [x + 4 + r for r in range(4)]
        self.swap_reduce("v_add_f32", regs, tm, 16)
        self.swap_reduce("v_add_f32", regs, tm, 32)
        e(f"s_lshl_b32 s{sT0}, s{sWAVE}, 7")
        e(f"s_add_u32 s{sT0}, s{sT0}, {L['PART']}")
        e(f"v_and_b32 v{vT0}, 7, v{vLANE}")
        e(f"v_lshlrev_b32 v{vT0}, 4, v{vT0}")
        e(f"v_add_u32 v{vT1}, s{sT0}, v{vT0}")
        e(f"ds_write_b128 v{vT1}, v[{x}:{x+3}]")
        e("s_waitcnt lgkmcnt(0)")
        e("s_barrier")

    def reducer(self):
        cfg, L, e = self.cfg, self.L, self.e
        self.label("L_RED")
        x = vD
        sR, sRB, sCB = sT4, sT5, 49
        e(f"s_sub_u32 s{sR}, s2, {R0}")
        e(f"s_lshr_b32 s{sRB}, s{sR}, 4")
        e(f"s_and_b32 s{sCB}, s{sR}, 15")
        self.srd(sW, sB2, 1024)
        e(f"v_and_b32 v2, 7, v{vLANE}")
        e(f"v_lshlrev_b32 v3, 3, v2")
        e(f"s_lshl_b32 s{sT0}, s{sCB}, 6")
        e(f"buffer_load_dwordx2 v[4:5], v3, s[{sW}:{sW+3}], s{sT0} offen")
        e(f"v_lshrrev_b32 v6, 3, v{vLANE}")
        e(f"v_lshlrev_b32 v7, 17, v6")
        e(f"v_lshl_add_u32 v7, v2, 4, v7")
        e(f"s_lshl_b32 s{sT0}, s{sWAVE}, 6")
        e(f"s_lshr_b32 s{sT1}, s{sCB}, 1")
        e(f"s_add_u32 s{sT0}, s{sT0}, s{sT1}")
        e(f"s_lshl_b32 s{sT0}, s{sT0}, 14")
        e(f"s_add_u32 s{sT0}, s{sT0}, s{sL}")
        e(f"s_lshl_b32 s{sT1}, s{sRB}, 8")
        e(f"s_add_u32 s{sT0}, s{sT0}, s{sT1}")
        e(f"s_and_b32 s{sT1}, s{sCB}, 1")
        e(f"s_lshl_b32 s{sT1}, s{sT1}, 7")
        e(f"s_add_u32 s{sT0}, s{sT0}, s{sT1}")
        lp = self.poll_begin()
        e(f"buffer_load_dwordx4 v[{x}:{x+3}], v7, s[{sWS}:{sWS+3}], s{sT0} offen offset:{YP} sc1")
        e("s_waitcnt vmcnt(0)")
        self.poll_check(range(x, x + 4), vT0)
        self.poll_end(lp)
        self.stamp(17, True)
        self.red_reduce(x)
        lw = self.lab("Lr1")
        e(f"s_cmp_lg_u32 s{sWAVE}, 0")
        e(f"s_cbranch_scc1 {lw}")

        def final_sum():
            e(f"v_add_u32 v{vT1}, {L['PART']}, v{vT0}")
            for w in range(4):
                e(f"ds_read_b128 v[{x+4*w}:{x+4*w+3}], v{vT1} offset:{w*128}")
            e(f"v_add_u32 v{vT0}, {L['XRES']}, v{vT0}")
            e(f"ds_read_b128 v[{vO+4}:{vO+7}], v{vT0}")
            e("s_waitcnt lgkmcnt(0)")
            for r in range(4):
                e(f"v_add_f32 v{x+r}, v{x+r}, v{x+4+r}")
                e(f"v_add_f32 v{x+8+r}, v{x+8+r}, v{x+12+r}")
            for r in range(4):
                e(f"v_add_f32 v{x+r}, v{x+r}, v{x+8+r}")
            for r in range(4):
                e(f"v_add_f32 v{x+r}, v{x+r}, v{vO+4+r}")
        final_sum()
        e(f"ds_write_b128 v{vT0}, v[{x}:{x+3}]")
        e(f"s_add_u32 s{sT0}, s{sBLKW}, s{sL}")
        e(f"v_lshlrev_b32 v3, 4, v2")
        e(f"s_mov_b64 s[{sEX}:{sEX+1}], exec")
        e("s_mov_b64 exec, 0xff")
        e(f"buffer_store_dwordx4 v[{x}:{x+3}], v3, s[{sWS}:{sWS+3}], s{sT0} offen offset:{X1} sc1")
        e(f"s_mov_b64 exec, s[{sEX}:{sEX+1}]")
        self.label(lw)
        self.stamp(18, True)
        e("s_waitcnt lgkmcnt(0)")
        e("s_barrier")
        e(f"v_lshlrev_b32 v7, 14, v6")
        e(f"v_lshl_add_u32 v7, v2, 4, v7")
        e(f"s_lshl_b32 s{sT0}, s{sWAVE}, 17")
        e(f"s_add_u32 s{sT0}, s{sT0}, s{sL}")
        e(f"s_lshl_b32 s{sT1}, s{sRB}, 11")
        e(f"s_add_u32 s{sT0}, s{sT0}, s{sT1}")
        e(f"s_lshl_b32 s{sT1}, s{sCB}, 7")
        e(f"s_add_u32 s{sT0}, s{sT0}, s{sT1}")
        e(f"s_add_u32 s{sT0}, s{sT0}, {FP}")
        e(f"s_add_u32 s{sT1}, s{sT0}, {32*BLK}")
        e(f"s_add_u32 s{sT2}, s{sT0}, {64*BLK}")
        e(f"s_add_u32 s{sT3}, s{sT0}, {96*BLK}")
        for r in range(4):
            e(f"v_mov_b32 v{x+12+r}, 0")
        lp = self.poll_begin()
        l3 = self.lab("Lr3")
        for k, so in enumerate((sT0, sT1, sT2)):
            e(f"buffer_load_dwordx4 v[{x+4*k}:{x+4*k+3}], v7, s[{sWS}:{sWS+3}], s{so} offen sc1")
        e(f"s_cmp_ge_u32 s{sWAVE}, 2")
        e(f"s_cbranch_scc1 {l3}")
        e(f"buffer_load_dwordx4 v[{x+12}:{x+15}], v7, s[{sWS}:{sWS+3}], s{sT3} offen sc1")
        self.label(l3)
        e("s_waitcnt vmcnt(0)")
        self.poll_check(range(x, x + 16), vT0)
        self.poll_end(lp)
        self.stamp(19, True)
        for r in range(4):
            e(f"v_add_f32 v{x+r}, v{x+r}, v{x+4+r}")
            e(f"v_add_f32 v{x+8+r}, v{x+8+r}, v{x+12+r}")
        for r in range(4):
            e(f"v_add_f32 v{x+r}, v{x+r}, v{x+8+r}")
        self.red_reduce(x)
        lw = self.lab("Lr4")
        e(f"s_cmp_lg_u32 s{sWAVE}, 0")
        e(f"s_cbranch_scc1 {lw}")
        final_sum()
        e(f"v_lshlrev_b32 v{x+4}, 16, v4")
        e(f"v_and_b32 v{x+5}, 0xffff0000, v4")
        e(f"v_lshlrev_b32 v{x+6}, 16, v5")
        e(f"v_and_b32 v{x+7}, 0xffff0000, v5")
        for r in range(4):
            e(f"v_add_f32 v{x+r}, v{x+r}, v{x+4+r}")
        lo = self.lab("Lout")
        e(f"s_mov_b64 s[{sEX}:{sEX+1}], exec")
        e(f"s_cmp_lg_u32 s{sL}, 0")
        e(f"s_cbranch_scc1 {lo}")
        e(f"ds_write_b128 v{vT0}, v[{x}:{x+3}]")
        e(f"s_add_u32 s{sT0}, s{sBLKW}, s{sL}")
        e(f"v_lshlrev_b32 v3, 4, v2")
        e("s_mov_b64 exec, 0xff")
        e(f"buffer_store_dwordx4 v[{x}:{x+3}], v3, s[{sWS}:{sWS+3}], s{sT0} offen offset:{X2} sc1")
        e(f"s_mov_b64 exec, s[{sEX}:{sEX+1}]")
        e("s_waitcnt lgkmcnt(0)")
        e("s_branch L_G2")
        self.label(lo)
        self.srd(sW, sOUT, 2048)
        e(f"v_cvt_pk_bf16_f32 v{x+4}, v{x}, v{x+1}")
        e(f"v_cvt_pk_bf16_f32 v{x+5}, v{x+2}, v{x+3}")
        e(f"s_lshl_b32 s{sT0}, s{sR}, 6")
        e(f"v_lshlrev_b32 v3, 3, v2")
        e("s_mov_b64 exec, 0xff")
        e(f"buffer_store_dwordx2 v[{x+4}:{x+5}], v3, s[{sW}:{sW+3}], s{sT0} offen")
        e("s_waitcnt vmcnt(0)")
        e("s_branch L_end")
        self.label(lw)
        e(f"s_cmp_lg_u32 s{sL}, 0")
        e("s_cbranch_scc1 L_end")
        e("s_branch L_G2")

    def ffn(self):
        cfg, L, e = self.cfg, self.L, self.e
        self.label("L_FFN")
        t = vD
        self.srd(sW, sW2, 1792 * 512 * 2)
        e(f"v_lshrrev_b32 v2, 4, v{vLANE}")
        e(f"v_lshlrev_b32 v2, 10, v2")
        e(f"v_and_b32 v3, 15, v{vLANE}")
        e(f"v_lshl_add_u32 v2, v3, 4, v2")
        e(f"s_lshl_b32 s{sT0}, s2, 14")
        e(f"s_lshl_b32 s{sT1}, s{sWAVE}, 8")
        e(f"s_add_u32 s{sT0}, s{sT0}, s{sT1}")
        for i in range(4):
            e(f"s_add_u32 m0, s{sWB}, {i*1024}")
            if i > 0:
                e(f"s_add_u32 s{sT0}, s{sT0}, 4096")
            e(f"buffer_load_dwordx4 v2, s[{sW}:{sW+3}], s{sT0} offen lds")
        self.srd(sW, sB1, 1792 * 2)
        e(f"v_lshrrev_b32 v3, 4, v{vLANE}")
        e(f"v_lshlrev_b32 v3, 3, v3")
        e(f"s_lshl_b32 s{sT0}, s2, 5")
        e(f"buffer_load_dwordx2 v[4:5], v3, s[{sW}:{sW+3}], s{sT0} offen")
        e(f"v_lshrrev_b32 v2, 4, v{vLANE}")
        e(f"v_lshlrev_b32 v2, 2, v2")
        e(f"v_bfe_u32 v3, v{vLANE}, 2, 2")
        e(f"v_add_u32 v2, v2, v3")
        e(f"v_lshlrev_b32 v2, 8, v2")
        e(f"v_and_b32 v3, 3, v{vLANE}")
        e(f"v_lshl_add_u32 v2, v3, 3, v2")
        e(f"v_add_u32 v2, s{sWB}, v2")
        e("s_waitcnt vmcnt(0)")
        for tt in range(8):
            e(f"ds_read_b64_tr_b16 v[{vQF+2*tt}:{vQF+2*tt+1}], v2 offset:{tt*32}")
        e(f"v_lshlrev_b32 v2, 16, v4")
        e(f"v_and_b32 v3, 0xffff0000, v4")
        e(f"v_lshlrev_b32 v4, 16, v5")
        e(f"v_and_b32 v5, 0xffff0000, v5")
        e(f"v_lshrrev_b32 v10, 3, v{vLANE}")
        e(f"v_lshlrev_b32 v10, 14, v10")
        e(f"v_and_b32 v11, 7, v{vLANE}")
        e(f"v_lshl_add_u32 v10, v11, 4, v10")
        e(f"s_lshl_b32 s{sT0}, s{sWAVE}, 3")
        e(f"s_add_u32 s{sT0}, s{sT0}, {R0}")
        e(f"s_lshl_b32 s{sT0}, s{sT0}, 14")
        e(f"s_add_u32 s{sT0}, s{sT0}, s{sL}")
        e(f"s_lshl_b32 s{sT1}, s{sWAVE}, 9")
        e(f"s_add_u32 s{sT1}, s{sT1}, {L['XBUF']}")
        e(f"v_lshlrev_b32 v11, 3, v{vLANE}")
        e(f"v_add_u32 v11, s{sT1}, v11")
        e(f"v_and_b32 v12, 1, v{vLANE}")
        e(f"v_lshlrev_b32 v13, 10, v12")
        e(f"v_and_b32 v14, 48, v{vLANE}")
        e(f"v_add_u32 v13, v13, v14")
        e(f"s_lshl_b32 s{sT1}, s{sWAVE}, 8")
        e(f"s_add_u32 s{sT1}, s{sT1}, {L['XBUF']}")
        e(f"v_add_u32 v13, s{sT1}, v13")
        e(f"v_lshlrev_b32 v14, 1, v14")
        e(f"v_lshl_add_u32 v14, v12, 4, v14")
        e(f"v_add_u32 v14, {L['PART']}, v14")
        e(f"s_lshl_b32 s{sT1}, s{sWAVE}, 7")
        e(f"v_add_u32 v15, s{sT1}, v14")
        e("s_waitcnt lgkmcnt(0)")
        self.stamp(13, True)
        lp = self.poll_begin()
        e(f"buffer_load_dwordx4 v[{t}:{t+3}], v10, s[{sWS}:{sWS+3}], s{sT0} offen offset:{X1} sc1")
        e("s_waitcnt vmcnt(0)")
        self.poll_check(range(t, t + 4), vT0)
        self.poll_end(lp)
        self.stamp(14, True)
        e(f"v_cvt_pk_bf16_f32 v{t+4}, v{t}, v{t+1}")
        e(f"v_cvt_pk_bf16_f32 v{t+5}, v{t+2}, v{t+3}")
        e(f"ds_write_b64 v11, v[{t+4}:{t+5}]")
        e(f"v_lshlrev_b32 v{t}, 16, v{t+4}")
        e(f"v_and_b32 v{t+1}, 0xffff0000, v{t+4}")
        e(f"v_lshlrev_b32 v{t+2}, 16, v{t+5}")
        e(f"v_and_b32 v{t+3}, 0xffff0000, v{t+5}")
        e(f"v_add_f32 v{vMR}, v{t}, v{t+1}")
        e(f"v_mul_f32 v{vLR}, v{t}, v{t}")
        e(f"v_add_f32 v{vMR}, v{vMR}, v{t+2}")
        e(f"v_fmac_f32 v{vLR}, v{t+1}, v{t+1}")
        e(f"v_add_f32 v{vMR}, v{vMR}, v{t+3}")
        e(f"v_fmac_f32 v{vLR}, v{t+2}, v{t+2}")
        e(f"v_fmac_f32 v{vLR}, v{t+3}, v{t+3}")
        e("s_waitcnt lgkmcnt(0)")
        e("s_barrier")
        for s in range(4):
            e(f"ds_read_b128 v[{t+4*s}:{t+4*s+3}], v13 offset:{s*64}")
        e(f"v_and_b32 v10, 48, v{vLANE}")
        e(f"v_add_u32 v10, {L['CS1P']}, v10")
        e(f"ds_read_b128 v[6:9], v10")
        self.bfly_row("v_add_f32", [vMR, vLR])
        self.swap_reduce("v_add_f32", [vMR, vLR], [vT0, vT1], 16)
        self.swap_reduce("v_add_f32", [vMR, vLR], [vT0, vT1], 32)
        e("s_waitcnt lgkmcnt(0)")
        d = vO + 4
        for s in range(4):
            c = "0" if s == 0 else f"v[{d}:{d+3}]"
            e(f"v_mfma_f32_16x16x32_bf16 v[{d}:{d+3}], v[{vKF+4*s}:{vKF+4*s+3}], v[{t+4*s}:{t+4*s+3}], {c}")
        e(f"s_lshl_b32 s{sT1}, s{sWAVE}, 3")
        e(f"s_add_u32 s{sT1}, s{sT1}, {L['ST']}")
        e(f"v_mov_b32 v{vT0}, s{sT1}")
        e(f"ds_write_b64 v{vT0}, v[{vMR}:{vMR+1}]")
        for w in range(1, 4):
            e(f"ds_read_b128 v[{t+4*w}:{t+4*w+3}], v10 offset:{w*64}")
        e(f"ds_write_b128 v15, v[{d}:{d+3}]")
        e("s_waitcnt lgkmcnt(0)")
        for w in range(1, 4):
            for r in range(4):
                e(f"v_add_f32 v{6+r}, v{6+r}, v{t+4*w+r}")
        e("s_barrier")
        for w in range(4):
            e(f"ds_read_b128 v[{t+4*w}:{t+4*w+3}], v14 offset:{w*128}")
        e(f"v_lshlrev_b32 v{vT0}, 4, v12")
        e(f"v_add_u32 v{vT0}, {L['ST']}, v{vT0}")
        e(f"ds_read_b128 v[{d}:{d+3}], v{vT0}")
        e("s_waitcnt lgkmcnt(0)")
        e(f"v_add_f32 v{vMR}, v{d}, v{d+2}")
        e(f"v_add_f32 v{vLR}, v{d+1}, v{d+3}")
        self.mean_rstd(vMR, vLR, None)
        for r in range(4):
            e(f"v_add_f32 v{t+r}, v{t+r}, v{t+4+r}")
            e(f"v_add_f32 v{t+8+r}, v{t+8+r}, v{t+12+r}")
        for r in range(4):
            e(f"v_add_f32 v{t+r}, v{t+r}, v{t+8+r}")
        for r in range(4):
            e(f"v_fma_f32 v{t+r}, -v{vMR}, v{6+r}, v{t+r}")
        for r in range(4):
            e(f"v_fma_f32 v{t+r}, v{vLR}, v{t+r}, v{2+r}")
        k0 = -2.0 * 0.7978845608028654 * 1.4426950408889634
        e(f"s_mov_b32 s{sT1}, {hex(f2u(0.044715))}")
        e(f"s_mov_b32 s{sT2}, {hex(f2u(k0))}")
        for r in range(4):
            e(f"v_mul_f32 v{t+4+r}, v{t+r}, v{t+r}")
        for r in range(4):
            e(f"v_fma_f32 v{t+4+r}, v{t+4+r}, s{sT1}, 1.0")
        for r in range(4):
            e(f"v_mul_f32 v{t+4+r}, v{t+4+r}, v{t+r}")
        for r in range(4):
            e(f"v_mul_f32 v{t+4+r}, s{sT2}, v{t+4+r}")
        for r in range(4):
            e(f"v_exp_f32 v{t+4+r}, v{t+4+r}")
        for r in range(4):
            e(f"v_add_f32 v{t+4+r}, 1.0, v{t+4+r}")
        for r in range(4):
            e(f"v_rcp_f32 v{t+4+r}, v{t+4+r}")
        for r in range(4):
            e(f"v_mul_f32 v{t+r}, v{t+r}, v{t+4+r}")
        e(f"v_cvt_pk_bf16_f32 v{t+8}, v{t}, v{t+1}")
        e(f"v_cvt_pk_bf16_f32 v{t+9}, v{t+2}, v{t+3}")
        e(f"v_lshlrev_b32 v10, 11, v12")
        e(f"v_bfe_u32 v11, v{vLANE}, 1, 3")
        e(f"v_lshl_add_u32 v10, v11, 6, v10")
        e(f"v_and_b32 v11, 48, v{vLANE}")
        e(f"v_add_u32 v10, v10, v11")
        e(f"s_lshl_b32 s{sT0}, s{sWAVE}, 9")
        e(f"s_add_u32 s{sT0}, s{sT0}, s{sBLKW}")
        e(f"s_add_u32 s{sT0}, s{sT0}, s{sL}")
        e(f"s_add_u32 s{sT0}, s{sT0}, {FP}")
        bb = [t + 10, t + 12]
        def mk(tt):
            b = bb[tt & 1]
            e(f"s_lshl_b64 s[{sMK}:{sMK+1}], s[{sN2}:{sN2+1}], {2*tt}")
            e(f"v_cndmask_b32 v{b}, 0, v{t+8}, s[{sMK}:{sMK+1}]")
            e(f"v_cndmask_b32 v{b+1}, 0, v{t+9}, s[{sMK}:{sMK+1}]")
        mk(0)
        for tt in range(8):
            if tt + 1 < 8:
                mk(tt + 1)
            b = bb[tt & 1]
            c = "0" if tt == 0 else f"v[{d}:{d+3}]"
            e(f"v_mfma_f32_16x16x16_bf16 v[{d}:{d+3}], v[{vQF+2*tt}:{vQF+2*tt+1}], v[{b}:{b+1}], {c}")
        e(f"buffer_store_dwordx4 v[{d}:{d+3}], v10, s[{sWS}:{sWS+3}], s{sT0} offen sc1")
        self.stamp(15, True)
        e(f"s_cmp_lg_u32 s{sL}, 0")
        e("s_cbranch_scc1 L_end")
        self.set_wq()
        self.w_dma(vT0, cond=True)
        if cfg.PFF:
            self.l2_prefetch(cfg.PFF, False)
            e(f"s_waitcnt vmcnt({min(cfg.PFD, 4*cfg.PFF)})")
        else:
            e("s_waitcnt vmcnt(0)")
        self.w_frags(vKF, vT0)
        e("s_waitcnt lgkmcnt(0)")
        e("s_branch L_G2")

    def g2(self):
        cfg, L, e = self.cfg, self.L, self.e
        self.label("L_G2")
        self.stamp(21)
        self.consts()
        lw = self.lab("Lg2")
        e(f"s_cmp_lg_u32 s{sWAVE}, 0")
        e(f"s_cbranch_scc1 {lw}")
        t = vD
        e(f"v_lshrrev_b32 v{vT0}, 5, v{vLANE}")
        e(f"v_lshlrev_b32 v{vT0}, 4, v{vT0}")
        e(f"v_bfe_u32 v{vT1}, v{vLANE}, 3, 2")
        e(f"v_add_u32 v{vT0}, v{vT0}, v{vT1}")
        e(f"v_lshlrev_b32 v{vT0}, 14, v{vT0}")
        e(f"v_and_b32 v{vT1}, 7, v{vLANE}")
        e(f"v_lshl_add_u32 v{vT0}, v{vT1}, 4, v{vT0}")
        e(f"s_lshr_b32 s{sT0}, s{sJ}, 1")
        e(f"s_lshl_b32 s{sT0}, s{sT0}, 2")
        e(f"s_add_u32 s{sT0}, s{sT0}, {R0}")
        e(f"s_lshl_b32 s{sT0}, s{sT0}, 14")
        e(f"v_lshrrev_b32 v{t+8}, 5, v{vLANE}")
        e(f"v_lshlrev_b32 v{t+8}, 8, v{t+8}")
        e(f"v_and_b32 v{t+9}, 31, v{vLANE}")
        e(f"v_lshl_add_u32 v{t+8}, v{t+9}, 3, v{t+8}")
        e(f"v_add_u32 v{t+8}, {L['XQ']}, v{t+8}")
        lp = self.poll_begin()
        e(f"buffer_load_dwordx4 v[{t}:{t+3}], v{vT0}, s[{sWS}:{sWS+3}], s{sT0} offen offset:{X2} sc1")
        e("s_waitcnt vmcnt(0)")
        self.poll_check(range(t, t + 4), vT1)
        self.poll_end(lp)
        self.stamp(22)
        e(f"v_cvt_pk_bf16_f32 v{t+4}, v{t}, v{t+1}")
        e(f"v_cvt_pk_bf16_f32 v{t+5}, v{t+2}, v{t+3}")
        e(f"ds_write_b64 v{t+8}, v[{t+4}:{t+5}]")
        e(f"v_lshlrev_b32 v{t}, 16, v{t+4}")
        e(f"v_and_b32 v{t+1}, 0xffff0000, v{t+4}")
        e(f"v_lshlrev_b32 v{t+2}, 16, v{t+5}")
        e(f"v_and_b32 v{t+3}, 0xffff0000, v{t+5}")
        self.stats_partial(t)
        self.label(lw)
        e(f"s_mov_b32 s{sL}, {LOFF}")
        e("s_waitcnt lgkmcnt(0)")
        e("s_branch L_QE")

    def build(self):
        cfg, e = self.cfg, self.e
        self.prologue()
        self.pass1()
        e("s_branch L_TAIL")
        self.qe()
        self.vm_n += 5000; self.vm_done = self.vm_n; self.vm_tags = {}
        self.pass2()
        self.tail()
        self.label("L_end")
        self.stamp(63, last=True)
        self.label("L_exit")
        e("s_endpgm")

    def text(self):
        cfg = self.cfg
        body, nn = hazard_pass(self.lines)
        hdr = []
        ref = open("interleave_layers__mha_block_cached__dense_activation_gelu__decode.s.ref").read().split("\n")
        for l in ref:
            if l.startswith("; @launch"):
                hdr.append("; @launch grid=(256,1,1) block=(256,1,1) lds=163840")
                break
            if l.startswith(";"):
                hdr.append(l)
        hdr += ['.amdgcn_target "amdgcn-amd-amdhsa--gfx950"', ".text", f".globl {KNAME}", ".p2align 8",
                f".type {KNAME},@function", f"{KNAME}:"]
        ftr = ['.section .rodata,"a"', ".p2align 6", f".amdhsa_kernel {KNAME}",
               "  .amdhsa_next_free_vgpr 512", "  .amdhsa_next_free_sgpr 102", "  .amdhsa_accum_offset 256",
               "  .amdhsa_group_segment_fixed_size 0", "  .amdhsa_kernarg_size 104", "  .amdhsa_user_sgpr_count 2",
               "  .amdhsa_user_sgpr_kernarg_segment_ptr 1", "  .amdhsa_system_sgpr_workgroup_id_x 1",
               ".end_amdhsa_kernel", ""]
        return "\n".join(hdr + body + ftr), nn


def generate(path, **kw):
    cfg = Cfg()
    for k, v in kw.items():
        setattr(cfg, k, v)
    g = Gen(cfg)
    g.build()
    txt, nn = g.text()
    open(path, "w").write(txt)
    return len(txt), nn, len(g.lines)


if __name__ == "__main__":
    out = sys.argv[1] if len(sys.argv) > 1 else "interleave_layers__mha_block_cached__dense_activation_gelu__decode.s"
    kw = {}
    for a in sys.argv[2:]:
        k, v = a.split("=")
        kw[k] = v if k.endswith("POL") else int(v)
    print(generate(out, **kw))
```

```python
import sys, struct, os
sys.path.insert(0, os.path.dirname(os.path.abspath(__file__)))
from asmlib import Asm, hazard_pass

KNAME = "interleave_layers__mha_block_cached__dense_activation_gelu__decode_kernel"


def f2u(x):
    return struct.unpack("<I", struct.pack("<f", x))[0]


class Cfg:
    NR = 8
    NWORK = 72
    CAP = 16
    INIT_V = 24
    CAP0 = 44
    XMAP = 1
    PF = 0
    PFF = 0
    PFD = 8
    PFPOL = ""
    THR = 0
    T1 = 128
    T2 = 0
    CAPT1 = 6
    CAPT2 = 4
    CK1 = "KB7:12,VB0:10,VB20:30,KA3:8,KA11:15,VA4:14,VA18:26"
    CK2 = "KA11:15,KB2:6,KB8:12"
    PART1 = "KB,VB,KA,VA"
    PART2 = "KA,KB"
    NOARR = 0
    KSPLIT = 0
    CAPEND = 0
    CAPO = 0
    CAP2 = 0
    CAPO2 = 0
    CAPENDO = 0
    KRET = 8
    KRETB = 0
    VRET = 0
    RETPOL = ""
    P2POL = "nt"
    P2VPOL = "nt"
    SPIN = 200000
    KPOL = "nt"
    VPOL = "nt"
    PROF = False
    POLL_SLEEP = 0


RING = 0
def lds_map(cfg):
    m = {}
    m["W"] = cfg.NR * 4096 * 4
    misc = m["W"] + 16384
    m["PBUF"] = misc
    m["RED"] = misc + 4608
    m["ML"] = misc + 8704
    m["XQ"] = misc + 8768
    m["QBUF"] = misc + 9536
    m["CSB"] = misc + 9792
    m["XRES"] = misc + 10304
    m["XBUF"] = misc + 10432
    m["PART"] = misc + 12480
    m["ST"] = misc + 12992
    m["CS1P"] = misc + 13056
    m["LVL"] = misc + 13312
    m["END"] = misc + 13328
    return m

BLK = 16384
LOFF = 8192
QP, QST, OP, YP, X1, X2, FP = 0, 768, 1024, 2048, 3072, 3200, 4096
PROF_OFF = 256 * BLK
NF = 112
R0 = 224

sK, sV, sWS, sW = 4, 8, 12, 16
sWQ, sWO, sW1, sW2, sB1, sB2, sOUT, sDBG, sX = 20, 22, 24, 26, 28, 30, 32, 34, 36
sWAVE, sH, sJ, sB, sC = 38, 39, 40, 41, 42
sRING, sWB, sL, sROLE, sSPIN = 43, 44, 46, 47, 48
sEX = 50
sMK = 52
sT0, sT1, sT2, sT3, sT4, sT5 = 54, 55, 56, 57, 64, 65
sM0 = 58
sCS = 60
sBLK = 61
sLT8 = 62
sKO, sVO = 66, 67
sN2 = 68
sN3 = 70
sBLKW = 72
sPAR = 73
sLVL, sRK = 77, 78
sCK = 80
sP0 = 74

vLANE, vVOFF = 0, 1
vKD = 2
vKR = 6
vM = 10
vPW, vPR = 14, 15
vQF = 16
vKF = 32
vB0, vB1, vP0, vP1 = 32, 36, 40, 44
vD = 48
vS = 56
vO = 60
vMR, vLR = 68, 69
vT0, vT1 = 70, 71
vCK = 72

SCALE = 128 ** -0.5 * 1.4426950408889634


class Gen(Asm):
    def __init__(self, cfg):
        super().__init__()
        self.cfg = cfg
        self.L = lds_map(cfg)
        assert self.L["END"] <= 163840
        self.nstamp = 0
        self.pending = []
        self.ready = set()
        self.cap = cfg.CAP
        self.thr_on = False
        self.nck = 0
        self.ck_at = {}
        self.lvl_pending = None

    def stamp(self, sid, shared=False, last=False):
        if not self.cfg.PROF:
            return
        e = self.e
        vST = self.cfg.NWORK - 1
        if sid == 0:
            e(f"v_mov_b32 v{vST}, 0")
            e(f"s_getreg_b32 s{sP0}, hwreg(HW_REG_XCC_ID)")
            e(f"s_or_b32 s{sP0}, s{sP0}, 0x10000")
            e(f"v_writelane_b32 v{vST}, s{sP0}, 62")
            e(f"s_getreg_b32 s{sP0}, hwreg(HW_REG_HW_ID)")
            e(f"v_writelane_b32 v{vST}, s{sP0}, 61")
            e(f"s_memrealtime s[{sP0}:{sP0+1}]")
            e(f"s_mov_b32 s{sP0+2}, 0")
            return
        e("s_waitcnt lgkmcnt(0)")
        e(f"s_mov_b32 m0, s{sP0+2}")
        e("s_nop 0")
        e(f"v_writelane_b32 v{vST}, s{sP0}, m0")
        if shared:
            e(f"s_lshr_b32 s{sP0+2}, s{sL}, 8")
            e(f"s_add_u32 s{sP0+2}, s{sP0+2}, {sid}")
        else:
            e(f"s_mov_b32 s{sP0+2}, {sid}")
        e(f"s_memrealtime s[{sP0}:{sP0+1}]")
        if last:
            e("s_waitcnt lgkmcnt(0)")
            e(f"s_mov_b32 m0, s{sP0+2}")
            e("s_nop 0")
            e(f"v_writelane_b32 v{vST}, s{sP0}, m0")
            e(f"s_lshl_b32 s{sT0}, s2, 2")
            e(f"s_add_u32 s{sT0}, s{sT0}, s{sWAVE}")
            e(f"s_lshl_b32 s{sT0}, s{sT0}, 8")
            e(f"s_add_u32 s{sT0}, s{sT0}, {PROF_OFF}")
            e(f"s_mov_b64 exec, -1")
            e(f"v_lshlrev_b32 v1, 2, v0")
            e(f"buffer_store_dword v{vST}, v1, s[{sWS}:{sWS+3}], s{sT0} offen")
            e("s_waitcnt vmcnt(0)")

    def srd(self, d, ptr, nbytes, add=None):
        if add is None:
            self.e(f"s_mov_b32 s{d}, s{ptr}")
            self.e(f"s_and_b32 s{d+1}, s{ptr+1}, 0xffff")
        else:
            self.e(f"s_add_u32 s{d}, s{ptr}, s{add}")
            self.e(f"s_addc_u32 s{d+1}, s{ptr+1}, 0")
            self.e(f"s_and_b32 s{d+1}, s{d+1}, 0xffff")
        self.e(f"s_mov_b32 s{d+2}, {nbytes}")
        self.e(f"s_mov_b32 s{d+3}, 0x20000")

    def bfly_row(self, op, regs, steps=(8, 4, 2, 1)):
        for st in steps:
            for r in regs:
                self.e(f"{op}_dpp v{r}, v{r}, v{r} row_ror:{st} row_mask:0xf bank_mask:0xf")

    def swap_reduce(self, op, regs, tmps, which):
        for r, t in zip(regs, tmps):
            self.e(f"v_mov_b32 v{t}, v{r}")
        for r, t in zip(regs, tmps):
            self.e(f"v_permlane{which}_swap_b32 v{t}, v{r}")
        for r, t in zip(regs, tmps):
            self.e(f"{op} v{r}, v{t}, v{r}")

    def poll_begin(self):
        l = self.lab("Lpoll")
        self.e(f"s_mov_b32 s{sSPIN}, {self.cfg.SPIN}")
        self.label(l)
        return l

    def poll_check(self, regs, tmp):
        regs = list(regs)
        if len(regs) == 1:
            self.e(f"v_cmp_eq_u32 vcc, -1, v{regs[0]}")
            return
        if len(regs) == 2:
            self.e(f"v_max_u32 v{tmp}, v{regs[0]}, v{regs[1]}")
            rest = []
        else:
            self.e(f"v_max3_u32 v{tmp}, v{regs[0]}, v{regs[1]}, v{regs[2]}")
            rest = regs[3:]
        while len(rest) >= 2:
            self.e(f"v_max3_u32 v{tmp}, v{tmp}, v{rest[0]}, v{rest[1]}")
            rest = rest[2:]
        if rest:
            self.e(f"v_max_u32 v{tmp}, v{tmp}, v{rest[0]}")
        self.e(f"v_cmp_eq_u32 vcc, -1, v{tmp}")

    def poll_end(self, l):
        ok = self.lab("Lok")
        self.e(f"s_cbranch_vccz {ok}")
        if self.cfg.POLL_SLEEP:
            self.e(f"s_sleep {self.cfg.POLL_SLEEP}")
        self.e(f"s_sub_u32 s{sSPIN}, s{sSPIN}, 1")
        self.e(f"s_cmp_lg_u32 s{sSPIN}, 0")
        self.e(f"s_cbranch_scc1 {l}")
        self.label(ok)

    def consts(self):
        L = self.L
        e = self.e
        self.c("per-lane stream constants")
        e(f"v_lshlrev_b32 v{vVOFF}, 4, v{vLANE}")
        e(f"v_and_b32 v{vT0}, 15, v{vLANE}")
        e(f"v_lshrrev_b32 v{vT1}, 4, v{vLANE}")
        for t in range(4):
            e(f"v_add_u32 v{vD}, {4*t}, v{vT1}")
            e(f"v_xor_b32 v{vD}, v{vD}, v{vT0}")
            e(f"v_lshlrev_b32 v{vD}, 4, v{vD}")
            e(f"v_lshl_add_u32 v{vKD+t}, v{vT1}, 8, v{vD}")
        for s in range(4):
            e(f"v_add_u32 v{vD}, {4*s}, v{vT1}")
            e(f"v_xor_b32 v{vD}, v{vD}, v{vT0}")
            e(f"v_lshlrev_b32 v{vD}, 4, v{vD}")
            e(f"v_lshl_add_u32 v{vD}, v{vT0}, 8, v{vD}")
            e(f"v_add_u32 v{vKR+s}, s{sRING}, v{vD}")
        e(f"v_and_b32 v{vD}, 7, v{vT0}")
        e(f"v_mov_b32 v{vD+1}, 0xffff")
        e(f"v_mov_b32 v{vD+2}, 0xffff0000")
        for jj in range(4):
            e(f"v_mov_b32 v{vM+jj}, 0")
            e(f"v_cmp_eq_u32 vcc, {2*jj}, v{vD}")
            e(f"v_cndmask_b32 v{vM+jj}, v{vM+jj}, v{vD+1}, vcc")
            e(f"v_cmp_eq_u32 vcc, {2*jj+1}, v{vD}")
            e(f"v_cndmask_b32 v{vM+jj}, v{vM+jj}, v{vD+2}, vcc")
        e(f"s_mul_i32 s{sT0}, s{sWAVE}, 1152")
        e(f"s_add_u32 s{sT0}, s{sT0}, {L['PBUF']}")
        e(f"v_and_b32 v{vD}, 1, v{vT1}")
        e(f"v_mul_u32_u24 v{vD}, 576, v{vD}")
        e(f"v_lshrrev_b32 v{vD+1}, 1, v{vT1}")
        e(f"v_lshl_add_u32 v{vD+1}, v{vT0}, 1, v{vD+1}")
        e(f"v_lshl_add_u32 v{vD}, v{vD+1}, 2, v{vD}")
        e(f"v_add_u32 v{vPW}, s{sT0}, v{vD}")
        e(f"v_lshrrev_b32 v{vD}, 3, v{vT0}")
        e(f"v_lshl_add_u32 v{vD}, v{vD}, 2, v{vT1}")
        e(f"v_mul_u32_u24 v{vD}, 144, v{vD}")
        e(f"v_add_u32 v{vPR}, s{sT0}, v{vD}")

    def vreg_of(self, blk, t, pas):
        nret = (256 - self.cfg.NWORK) // 4
        if blk in ("A", "Q"):
            return f"a[{4*t}:{4*t+3}]"
        if t < nret:
            r = self.cfg.NWORK + 4 * t
            return f"v[{r}:{r+3}]"
        r = 4 * (t - nret)
        return f"a[{r}:{r+3}]"

    def k_desc(self, blk, n, slot):
        return dict(kind="K", blk=blk, n=n, slot=slot, tag=("K", blk, n), need=("slot", slot, blk, n), cnt=4, q=None)

    def split_k(self, ls):
        if not self.cfg.KSPLIT:
            return ls
        out = []
        for d in ls:
            if d["kind"] == "K":
                for q in range(4):
                    x = dict(d); x["q"] = q; x["cnt"] = 1
                    x["tag"] = d["tag"] if q == 3 else ("Kq", d["blk"], d["n"], q)
                    out.append(x)
            else:
                out.append(d)
        return out

    def v_desc(self, blk, t, need=None):
        return dict(kind="V", blk=blk, t=t, tag=("V", blk, t), need=need, cnt=1)

    def issue_desc(self, d, pas):
        cfg = self.cfg
        if d["kind"] == "K":
            tile = d["n"] + (0 if d["blk"] == "A" else 16)
            self.e(f"s_add_u32 m0, s{sRING}, {d['slot']*4096}")
            self.e(f"s_mov_b32 s{sKO}, {tile*4096}")
            pol = cfg.KPOL
            if d["blk"] == "A" and 8 <= d["n"] < 8 + cfg.KRET and pas == 1:
                pol = cfg.RETPOL
            if d["blk"] == "B" and d["n"] < cfg.KRETB and pas == 1:
                pol = cfg.RETPOL
            if pas == 2:
                pol = cfg.P2POL
            for t in (range(4) if d["q"] is None else [d["q"]]):
                self.vm(f"buffer_load_dwordx4 v{vKD+t}, s[{sK}:{sK+3}], s{sKO} offen offset:{t*1024} {pol} lds",
                        tag=d["tag"] if t == 3 else None)
        elif d["kind"] == "V":
            gt = d["t"] + (0 if d["blk"] == "A" else 64)
            base = (gt >> 2) * 4096
            if getattr(self, "_vo", None) != base:
                self.e(f"s_mov_b32 s{sVO}, {base}")
                self._vo = base
            pol = cfg.VPOL
            nret = (256 - cfg.NWORK) // 4
            if d["blk"] == "B" and d["t"] >= nret and d["t"] >= 64 - cfg.VRET and pas == 1:
                pol = cfg.RETPOL
            if pas == 2:
                pol = cfg.P2VPOL
            self.vm(f"buffer_load_dwordx4 {self.vreg_of(d['blk'], d['t'], pas)}, v{vVOFF}, s[{sV}:{sV+3}], s{sVO} offen offset:{(gt&3)*1024} {pol}",
                    tag=d["tag"])
        elif d["kind"] == "Q":
            t = d["t"]
            if t > 0:
                self.e(f"s_add_u32 s{sT2}, s{sT2}, 32768")
            self.vm(f"buffer_load_dwordx4 {self.vreg_of('Q', t, pas)}, v{vT1}, s[{sW}:{sW+3}], s{sT2} offen", tag=d["tag"])
        elif d["kind"] == "F":
            d["fn"]()

    def pump(self, pas, limit=None):
        n = 0
        while self.pending:
            d = self.pending[0]
            if d["need"] is not None and d["need"] not in self.ready:
                break
            if self.vm_outstanding() + d["cnt"] > self.cap:
                break
            if limit is not None and n + d["cnt"] > limit:
                break
            self.pending.pop(0)
            self.throttle(d)
            self.issue_desc(d, pas)
            n += d["cnt"]

    def force_issued(self, tag, pas):
        while tag not in self.vm_tags or self.vm_tags[tag] < 0:
            d = self.pending[0]
            assert d["need"] is None or d["need"] in self.ready, ("not ready", d, tag)
            if self.vm_outstanding() + d["cnt"] > self.cap:
                target = self.vm_n + d["cnt"] - self.cap
                self.e(f"s_waitcnt vmcnt({self.vm_n - target})")
                self.vm_done = max(self.vm_done, target)
            self.pending.pop(0)
            self.throttle(d)
            self.issue_desc(d, pas)

    def throttle(self, d):
        cfg = self.cfg
        if not cfg.THR or not self.thr_on or d["kind"] not in ("K", "V"):
            return
        n1 = max(cfg.CAPT1 - d["cnt"], 0)
        if self.vm_outstanding() <= n1 and (not cfg.T2 or self.vm_outstanding() <= max(cfg.CAPT2 - d["cnt"], 0)):
            return
        l = self.lab("Lthr")
        self.e(f"s_cmp_eq_u32 s{sLVL}, 0")
        self.e(f"s_cbranch_scc1 {l}")
        self.e(f"s_waitcnt vmcnt({n1})")
        if cfg.T2:
            n2 = max(cfg.CAPT2 - d["cnt"], 0)
            self.e(f"s_cmp_eq_u32 s{sLVL}, 1")
            self.e(f"s_cbranch_scc1 {l}")
            self.e(f"s_waitcnt vmcnt({n2})")
        self.label(l)

    def ck_plan(self, spec, phase):
        hooks = {}
        if self.cfg.THR == 2:
            self.thr_on = phase in (self.cfg.PART1 if spec is self.cfg.CK1 else self.cfg.PART2).split(",")
        if self.cfg.THR != 1:
            return hooks
        for item in spec.split(","):
            if not item.startswith(phase):
                continue
            a, b = item[2:].split(":")
            cid = self.nck; self.nck += 1
            reg = vT0 if phase[0] == "K" else vD
            hooks.setdefault(int(a), []).append(lambda cid=cid, reg=reg: self.ck_issue(cid, reg))
            hooks.setdefault(int(b), []).insert(0, lambda cid=cid, reg=reg: self.ck_use(cid, reg))
        return {k: (lambda fs=v: [f() for f in fs]) for k, v in hooks.items()}

    def ck_issue(self, cid, reg):
        e = self.e
        assert cid < 32
        l = self.lab("Lck")
        e(f"s_cmp_lg_u32 s{sWAVE}, 0")
        e(f"s_cbranch_scc1 {l}")
        e("s_mov_b64 exec, 1")
        e(f"v_mov_b32 v{vCK}, -1")
        self.vm(f"buffer_load_dword v{vCK}, off, s[{sCK}:{sCK+3}], 0 offset:{128 + 4*cid} sc1", cond=True)
        e(f"v_mov_b32 v{reg+1}, 1")
        self.vm(f"buffer_atomic_add v{reg+1}, off, s[{sCK}:{sCK+3}], 0 offset:{128 + 4*cid} sc1", cond=True)
        e("s_mov_b64 exec, -1")
        self.label(l)
        self.thr_on = True

    def ck_use(self, cid, reg):
        cfg, e = self.cfg, self.e
        l = self.lab("Lcu")
        e(f"s_cmp_lg_u32 s{sWAVE}, 0")
        e(f"s_cbranch_scc1 {l}")
        e(f"v_readfirstlane_b32 s{sRK}, v{vCK}")
        e(f"s_cmp_eq_u32 s{sRK}, -1")
        e(f"s_cbranch_scc1 {l}")
        e(f"s_cmp_lt_u32 s{sRK}, {cfg.T1}")
        e(f"s_cselect_b32 s{sLVL}, 1, 0")
        if cfg.T2:
            e(f"s_cmp_lt_u32 s{sRK}, {cfg.T2}")
            e(f"s_cselect_b32 s{sLVL}, 2, s{sLVL}")
        e(f"v_mov_b32 v{reg}, {self.L['LVL']}")
        e(f"v_mov_b32 v{reg+1}, s{sLVL}")
        e(f"ds_write_b32 v{reg}, v{reg+1}")
        self.label(l)

    def lvl_read(self, reg):
        if self.cfg.THR != 1 or not self.thr_on:
            return
        self.e(f"v_mov_b32 v{reg}, {self.L['LVL']}")
        self.ds(f"ds_read_b32 v{reg}, v{reg}")
        self.lvl_pending = reg

    def lvl_take(self):
        if self.lvl_pending is not None:
            self.e(f"v_readfirstlane_b32 s{sLVL}, v{self.lvl_pending}")
            self.lvl_pending = None

    def k_phase(self, tiles, pas, hooks=None):
        e = self.e

        def reads(i):
            blk, n, slot, resident, frees = tiles[i]
            if not resident:
                self.force_issued(("K", blk, n), pas)
                self.vm_wait(("K", blk, n))
            for s in range(4):
                self.ds(f"ds_read_b128 v[{vKF+4*s}:{vKF+4*s+3}], v{vKR+s} offset:{slot*4096}")

        def select(i):
            blk, n, slot, resident, frees = tiles[i]
            d = vD + 4 * (i & 1)
            e(f"s_lshl_b64 s[{sMK}:{sMK+1}], s[{sM0}:{sM0+1}], {n}")
            for r in range(4):
                e(f"v_cndmask_b32 v{vS+r}, v{vS+r}, v{d+r}, s[{sMK}:{sMK+1}]")

        reads(0)
        for i in range(len(tiles)):
            blk, n, slot, resident, frees = tiles[i]
            self.lg_wait_all()
            self.lvl_take()
            for tok in frees:
                self.ready.add(tok)
            d = vD + 4 * (i & 1)
            for s in range(4):
                c = "0" if s == 0 else f"v[{d}:{d+3}]"
                e(f"v_mfma_f32_16x16x32_bf16 v[{d}:{d+3}], v[{vKF+4*s}:{vKF+4*s+3}], v[{vQF+4*s}:{vQF+4*s+3}], {c}")
            if hooks and i in hooks:
                hooks[i]()
            self.pump(pas)
            if i + 1 < len(tiles):
                if (i & 1) == 0:
                    self.lvl_read(vT1)
                reads(i + 1)
            if i > 0:
                select(i - 1)
        select(len(tiles) - 1)

    def softmax(self, first):
        e = self.e
        a, b = vT0, vT1
        e(f"v_max3_f32 v{a}, v{vS}, v{vS+1}, v{vS+2}")
        e(f"v_max_f32 v{a}, v{a}, v{vS+3}")
        self.bfly_row("v_max_f32", [a])
        self.swap_reduce("v_max_f32", [a], [b], 16)
        self.swap_reduce("v_max_f32", [a], [b], 32)
        if first:
            e(f"v_mov_b32 v{vMR}, v{a}")
        else:
            e(f"v_max_f32 v{a}, v{a}, v{vMR}")
            e(f"v_sub_f32 v{b}, v{vMR}, v{a}")
            e(f"v_mul_f32 v{b}, s{sCS}, v{b}")
            e(f"v_exp_f32 v{b}, v{b}")
            e(f"v_mov_b32 v{vMR}, v{a}")
            for r in range(8):
                e(f"v_mul_f32 v{vO+r}, v{b}, v{vO+r}")
            e(f"v_mul_f32 v{vLR}, v{b}, v{vLR}")
        e(f"v_mul_f32 v{a}, s{sCS}, v{vMR}")
        for r in range(4):
            e(f"v_fma_f32 v{vS+r}, v{vS+r}, s{sCS}, -v{a}")
        for r in range(4):
            e(f"v_exp_f32 v{vS+r}, v{vS+r}")
        for r in range(4):
            e(f"v_cvt_pk_bf16_f32 v{vD+r}, v{vS+r}, v{vS+r}")
        for r in range(4):
            self.ds(f"ds_write_b32 v{vPW}, v{vD+r} offset:{r*144}")
        e(f"v_add_f32 v{vS}, v{vS}, v{vS+1}")
        e(f"v_add_f32 v{vS+2}, v{vS+2}, v{vS+3}")
        e(f"v_add_f32 v{vS}, v{vS}, v{vS+2}")
        if first:
            e(f"v_mov_b32 v{vLR}, v{vS}")
        else:
            e(f"v_add_f32 v{vLR}, v{vLR}, v{vS}")
        self.lg_wait_all()

    def v_phase(self, blk, pas, first, order, resident, frees, hooks):
        e = self.e
        groups = [order[i:i + 4] for i in range(0, len(order), 4)]
        for g in groups:
            assert g == list(range(g[0], g[0] + 4)) and g[0] % 4 == 0

        def pread(gi):
            p = vP0 if (gi & 1) == 0 else vP1
            self.ds(f"ds_read_b128 v[{p}:{p+3}], v{vPR} offset:{groups[gi][0]*4}", tag=("P", gi))

        def bbuild(pos, half):
            gi, k = pos // 4, pos % 4
            p = (vP0 if (gi & 1) == 0 else vP1) + k
            b = vB0 if (pos & 1) == 0 else vB1
            for jj in (2 * half, 2 * half + 1):
                e(f"v_and_b32 v{b+jj}, v{p}, v{vM+jj}")

        pread(0)
        self.lg_wait(("P", 0))
        if len(groups) > 1:
            pread(1)
        bbuild(0, 0); bbuild(0, 1)
        for pos, u in enumerate(order):
            if pos in hooks:
                hooks[pos]()
            b = vB0 if (pos & 1) == 0 else vB1
            nxt = pos + 1 < len(order)
            if nxt and (pos + 1) % 4 == 0:
                self.lg_wait(("P", (pos + 1) // 4))
                self.lvl_take()
            for half in range(2):
                t = 2 * u + half
                if not resident(t):
                    self.force_issued(("V", blk, t), pas)
                    self.vm_wait(("V", blk, t))
                if nxt:
                    bbuild(pos + 1, half)
                o = vO + 4 * half
                c = "0" if (first and pos == 0) else f"v[{o}:{o+3}]"
                e(f"v_mfma_f32_16x16x32_bf16 v[{o}:{o+3}], {self.vreg_of(blk, t, pas)}, v[{b}:{b+3}], {c}")
            if nxt and (pos + 1) % 4 == 0 and (pos + 1) // 4 + 1 < len(groups):
                if blk != "Q":
                    self.lvl_read(vD + 2)
                pread((pos + 1) // 4 + 1)
            for tok in frees.get(u, []):
                self.ready.add(tok)
            self.pump(pas)

    def w_dma(self, vtmp, cond=False, tag=None):
        e = self.e
        e(f"v_lshrrev_b32 v{vtmp}, 1, v{vLANE}")
        e(f"v_mul_lo_u32 v{vtmp}, v{vtmp}, s{sT1}")
        e(f"v_and_b32 v{vtmp+1}, 1, v{vLANE}")
        e(f"v_lshl_add_u32 v{vtmp}, v{vtmp+1}, 4, v{vtmp}")
        e(f"s_lshl_b32 s{sT3}, s{sT1}, 5")
        for i in range(4):
            e(f"s_add_u32 m0, s{sWB}, {i*1024}")
            if i > 0:
                e(f"s_add_u32 s{sT2}, s{sT2}, s{sT3}")
            self.vm(f"buffer_load_dwordx4 v{vtmp}, s[{sW}:{sW+3}], s{sT2} offen lds", tag=tag if i == 3 else None, cond=cond)

    def w_frags(self, dst, vtmp):
        e = self.e
        e(f"v_lshrrev_b32 v{vtmp}, 4, v{vLANE}")
        e(f"v_lshlrev_b32 v{vtmp}, 3, v{vtmp}")
        e(f"v_bfe_u32 v{vtmp+1}, v{vLANE}, 2, 2")
        e(f"v_add_u32 v{vtmp}, v{vtmp}, v{vtmp+1}")
        e(f"v_lshlrev_b32 v{vtmp}, 5, v{vtmp}")
        e(f"v_and_b32 v{vtmp+1}, 3, v{vLANE}")
        e(f"v_lshl_add_u32 v{vtmp}, v{vtmp+1}, 3, v{vtmp}")
        e(f"v_add_u32 v{vtmp}, s{sWB}, v{vtmp}")
        for s in range(4):
            self.ds(f"ds_read_b64_tr_b16 v[{dst+4*s}:{dst+4*s+1}], v{vtmp} offset:{s*1024}")
            self.ds(f"ds_read_b64_tr_b16 v[{dst+4*s+2}:{dst+4*s+3}], v{vtmp} offset:{s*1024+128}")

    def set_wo(self):
        e = self.e
        self.srd(sW, sWO, 4096 * 512 * 2)
        e(f"s_mov_b32 s{sT1}, 1024")
        e(f"s_lshl_b32 s{sT2}, s{sH}, 17")
        e(f"s_lshl_b32 s{sT3}, s{sJ}, 7")
        e(f"s_add_u32 s{sT2}, s{sT2}, s{sT3}")
        e(f"s_lshl_b32 s{sT3}, s{sWAVE}, 5")
        e(f"s_add_u32 s{sT2}, s{sT2}, s{sT3}")

    def set_wq(self):
        e = self.e
        self.srd(sW, sWQ, 512 * 4096 * 2)
        e(f"s_mov_b32 s{sT1}, 8192")
        e(f"s_lshr_b32 s{sT2}, s{sJ}, 1")
        e(f"s_lshl_b32 s{sT2}, s{sT2}, 20")
        e(f"s_lshl_b32 s{sT3}, s{sH}, 8")
        e(f"s_add_u32 s{sT2}, s{sT2}, s{sT3}")
        e(f"s_and_b32 s{sT3}, s{sJ}, 1")
        e(f"s_lshl_b32 s{sT3}, s{sT3}, 7")
        e(f"s_add_u32 s{sT2}, s{sT2}, s{sT3}")
        e(f"s_lshl_b32 s{sT3}, s{sWAVE}, 5")
        e(f"s_add_u32 s{sT2}, s{sT2}, s{sT3}")

    def set_w1(self):
        e = self.e
        self.srd(sW, sW1, 512 * 1792 * 2)
        e(f"s_mov_b32 s{sT1}, 3584")
        e(f"s_mul_i32 s{sT2}, s{sWAVE}, {128*3584}")
        e(f"s_lshl_b32 s{sT3}, s2, 5")
        e(f"s_add_u32 s{sT2}, s{sT2}, s{sT3}")

    def stage1_dma(self):
        self.set_wo()
        self.w_dma(vT0, tag="wo")

    def stage2_dma(self):
        lf, lj = self.lab("Ls2"), self.lab("Ls2j")
        self.e(f"s_cmp_lt_u32 s2, {NF}")
        self.e(f"s_cbranch_scc1 {lf}")
        self.set_wq()
        self.e(f"s_branch {lj}")
        self.label(lf)
        self.set_w1()
        self.label(lj)
        self.w_dma(vT0, tag="w2nd")

    def last_block_hooks(self, pas):
        def h0():
            if pas == 1 and not self.cfg.NOARR:
                self.arrival_load()
            L = self.L
            self.vm_wait("wo")
            self.w_frags(vQF, vT0)
            self.bfly_row("v_add_f32", [vLR])
            self.swap_reduce("v_add_f32", [vLR], [vT0], 16)
            self.swap_reduce("v_add_f32", [vLR], [vT0], 32)
            self.e(f"s_lshl_b32 s{sT0}, s{sWAVE}, 3")
            self.e(f"s_add_u32 s{sT0}, s{sT0}, {L['ML']}")
            self.e(f"v_mov_b32 v{vT0}, s{sT0}")
            self.ds(f"ds_write_b64 v{vT0}, v[{vMR}:{vMR+1}]")
            self.lg_wait_all()
            self.stage2_dma()
        return h0

    def pass1(self):
        cfg = self.cfg
        NR = cfg.NR
        assert NR == 8
        pas = 1
        self._vo = None
        kB = [("B", n, n % NR, False, [("slot", n % NR, "B", n + 8)] if n < 8 else [("slot", n % NR, "A", n)]) for n in range(16)]
        self.k_phase(kB, pas, self.ck_plan(cfg.CK1, "KB"))
        self.stamp(6)
        self.softmax(first=True)
        self.v_phase("B", pas, True, list(range(32)), lambda t: False,
                     {31: [("tmpfree",)]}, self.ck_plan(cfg.CK1, "VB"))
        self.stamp(7)
        kA = [("A", n, n % NR, False, [("slot", n % NR, "A", n - 8)]) for n in range(8, 16)] + \
             [("A", n, n, False, []) for n in range(8)]
        self.k_phase(kA, pas, self.ck_plan(cfg.CK1, "KA"))
        self.stamp(8)
        self.softmax(first=False)
        if self.capend: self.cap = self.capend
        hk = self.ck_plan(cfg.CK1, "VA")
        h0, h1 = self.last_block_hooks(1), hk.get(0)
        hk[0] = (lambda: (h0(), h1())) if h1 else h0
        self.v_phase("A", pas, False, list(range(32)), lambda t: False, {}, hk)
        assert not self.pending, self.pending
        if not cfg.NOARR:
            self.arrival_check()

    def pass1_list(self):
        cfg = self.cfg
        nret = (256 - cfg.NWORK) // 4
        ls = [dict(kind="Q", t=t, tag=("V", "Q", t), need=None, cnt=1) for t in range(32)]
        k0 = [self.k_desc("B", n, n) for n in range(8)]
        for d in k0:
            d["need"] = None
        ls += k0
        vb = lambda t: self.v_desc("B", t, need=("qdone",) if t >= nret else None)
        ls += [vb(t) for t in range(cfg.INIT_V)]
        ls += [self.k_desc("B", n, n % 8) for n in range(8, 16)]
        ls += [vb(t) for t in range(cfg.INIT_V, 64)]
        ls += [self.k_desc("A", n, n % 8) for n in range(8, 16)]
        ls += [self.k_desc("A", n, n % 8) for n in range(0, 8)]
        ls += [dict(kind="F", fn=self.stage1_dma, need=None, cnt=4, tag="wo")]
        ntmp = 64 - nret
        ls += [self.v_desc("A", t, need=("tmpfree",) if t < ntmp else None) for t in range(64)]
        return self.split_k(ls)

    def pass2(self):
        cfg = self.cfg
        pas = 2
        nret = (256 - cfg.NWORK) // 4
        self._vo = None
        for k in list(self.vm_tags):
            if isinstance(k, tuple) and k[0] in ("K", "V"):
                del self.vm_tags[k]
        self.vm_tags.pop("wo", None); self.vm_tags.pop("w2nd", None)
        self.ready = set()
        ls = []
        ls += [self.k_desc("A", n, n % 8) for n in range(8, 16)]
        ls += [self.k_desc("B", n, n % 8) for n in range(0, 16)]
        ls += [dict(kind="F", fn=self.stage1_dma, need=None, cnt=4, tag="wo")]
        ls += [self.v_desc("B", t, need=("afree",)) for t in range(nret, 64)]
        self.pending = self.split_k(ls)
        kA = [("A", n, n, True, [("slot", n, "A", n + 8)]) for n in range(8)] + \
             [("A", n, n % 8, False, [("slot", n % 8, "B", n - 8)]) for n in range(8, 16)]
        self.thr_on = False
        if cfg.THR == 1:
            self.e(f"s_mov_b32 s{sLVL}, 0")
        self.k_phase(kA, pas, self.ck_plan(cfg.CK2, "KA"))
        self.stamp(38)
        self.softmax(first=True)
        self.v_phase("A", pas, True, list(range(32)), lambda t: True, {31: [("afree",)]}, self.ck_plan(cfg.CK2, "VA"))
        self.stamp(39)
        kB = [("B", n, n % 8, False, [("slot", n % 8, "B", n + 8)] if n < 8 else []) for n in range(16)]
        if self.capend: self.cap = self.capend
        self.k_phase(kB, pas, self.ck_plan(cfg.CK2, "KB"))
        self.stamp(40)
        self.softmax(first=False)
        hk = self.ck_plan(cfg.CK2, "VB")
        assert 0 not in hk
        hk[0] = self.last_block_hooks(2)
        self.v_phase("B", pas, False, list(range(32)), lambda t: t < nret, {}, hk)
        assert not self.pending, self.pending

    def prologue(self):
        cfg, L, e = self.cfg, self.L, self.e
        e("s_cmp_ge_u32 s2, 256")
        e("s_cbranch_scc1 L_exit")
        self.stamp(0)
        e("s_load_dwordx4 s[4:7], s[0:1], 8")
        e(f"s_load_dwordx2 s[{sX}:{sX+1}], s[0:1], 0")
        e(f"s_load_dwordx4 s[{sWQ}:{sWQ+3}], s[0:1], 24")
        e(f"s_load_dwordx2 s[{sT4}:{sT4+1}], s[0:1], 96")
        e(f"s_load_dwordx2 s[{sW1}:{sW1+1}], s[0:1], 48")
        e(f"s_load_dwordx2 s[{sB1}:{sB1+1}], s[0:1], 56")
        e(f"s_load_dwordx2 s[{sW2}:{sW2+1}], s[0:1], 64")
        e(f"s_load_dwordx2 s[{sB2}:{sB2+1}], s[0:1], 72")
        e(f"s_load_dwordx4 s[{sOUT}:{sOUT+3}], s[0:1], 80")
        e(f"v_lshrrev_b32 v{vT0}, 6, v0")
        e(f"v_and_b32 v{vLANE}, 63, v0")
        e(f"v_readfirstlane_b32 s{sWAVE}, v{vT0}")
        if cfg.XMAP:
            e(f"s_and_b32 s{sH}, s2, 7")
            e(f"s_lshl_b32 s{sH}, s{sH}, 2")
            e(f"s_bfe_u32 s{sJ}, s2, 0x20003")
            e(f"s_add_u32 s{sH}, s{sH}, s{sJ}")
            e(f"s_lshr_b32 s{sJ}, s2, 5")
        else:
            e(f"s_lshr_b32 s{sH}, s2, 3")
            e(f"s_and_b32 s{sJ}, s2, 7")
        e(f"s_lshr_b32 s{sB}, s{sJ}, 2")
        e(f"s_and_b32 s{sC}, s{sJ}, 3")
        e(f"s_lshl_b32 s{sBLK}, s{sH}, 3")
        e(f"s_add_u32 s{sBLK}, s{sBLK}, s{sJ}")
        e(f"s_lshl_b32 s{sBLK}, s{sBLK}, 14")
        e(f"s_lshl_b32 s{sBLKW}, s2, 14")
        e(f"s_mov_b32 s{sL}, 0")
        if cfg.CAPO:
            e(f"s_getreg_b32 s{sPAR}, hwreg(HW_REG_XCC_ID, 0, 1)")
        e(f"s_mul_i32 s{sRING}, s{sWAVE}, {cfg.NR*4096}")
        e(f"s_lshl_b32 s{sWB}, s{sWAVE}, 12")
        e(f"s_add_u32 s{sWB}, s{sWB}, {L['W']}")
        e(f"s_mov_b32 s{sM0}, 0x00010001"); e(f"s_mov_b32 s{sM0+1}, 0x00010001")
        e(f"s_mov_b32 s{sLT8}, 0x00ff00ff"); e(f"s_mov_b32 s{sLT8+1}, 0x00ff00ff")
        e(f"s_mov_b32 s{sN2}, 0x00030003"); e(f"s_mov_b32 s{sN2+1}, 0x00030003")
        e(f"s_mov_b32 s{sN3}, 0x00070007"); e(f"s_mov_b32 s{sN3+1}, 0x00070007")
        e(f"s_mov_b32 s{sCS}, {hex(f2u(SCALE))}")
        e(f"s_lshl_b32 s{sT0}, s{sB}, 5")
        e(f"s_add_u32 s{sT0}, s{sT0}, s{sH}")
        e(f"s_lshl_b32 s{sT0}, s{sT0}, 21")
        e(f"s_lshl_b32 s{sT1}, s{sC}, 19")
        e(f"s_add_u32 s{sT0}, s{sT0}, s{sT1}")
        e(f"s_lshl_b32 s{sT1}, s{sWAVE}, 17")
        e(f"s_add_u32 s{sT0}, s{sT0}, s{sT1}")
        e(f"v_lshlrev_b32 v{vVOFF}, 4, v{vLANE}")
        e(f"v_lshrrev_b32 v{vT1}, 4, v{vLANE}")
        e(f"v_lshlrev_b32 v{vT1}, 13, v{vT1}")
        e(f"v_and_b32 v{vT0}, 15, v{vLANE}")
        e(f"v_lshl_add_u32 v{vT1}, v{vT0}, 4, v{vT1}")
        e(f"s_lshl_b32 s{sT2}, s{sWAVE}, 20")
        e(f"s_lshl_b32 s{sT3}, s{sH}, 8")
        e(f"s_add_u32 s{sT2}, s{sT2}, s{sT3}")
        e("s_waitcnt lgkmcnt(0)")
        e(f"s_add_u32 s{sV}, s6, s{sT0}")
        e(f"s_addc_u32 s{sV+1}, s7, 0")
        e(f"s_and_b32 s{sV+1}, s{sV+1}, 0xffff")
        e(f"s_mov_b32 s{sV+2}, 131072")
        e(f"s_mov_b32 s{sV+3}, 0x20000")
        self.srd(sK, 4, 131072, add=sT0)
        self.srd(sWS, sT4, 256 * BLK + (1 << 20))
        if cfg.THR == 1:
            self.srd(sCK, sDBG, 256)
            e(f"s_mov_b32 s{sLVL}, 0")
        if cfg.THR == 2:
            e(f"s_getreg_b32 s{sLVL}, hwreg(HW_REG_XCC_ID, 0, 1)")
            e(f"s_xor_b32 s{sLVL}, s{sLVL}, 1")
        self.stamp(28)
        self.c("clear own hand-off slots")
        for r in range(4):
            e(f"v_mov_b32 v{vD+r}, -1")
        e(f"s_cmp_eq_u32 s{sWAVE}, 3")
        e(f"s_cselect_b32 s{sT1}, s{sBLKW}, s{sBLK}")
        e(f"s_lshl_b32 s{sT0}, s{sWAVE}, 10")
        e(f"s_add_u32 s{sT1}, s{sT0}, s{sT1}")
        self.vm(f"buffer_store_dwordx4 v[{vD}:{vD+3}], v{vVOFF}, s[{sWS}:{sWS+3}], s{sT1} offen sc1")
        e(f"s_add_u32 s{sT1}, s{sT1}, {LOFF}")
        self.vm(f"buffer_store_dwordx4 v[{vD}:{vD+3}], v{vVOFF}, s[{sWS}:{sWS+3}], s{sT1} offen sc1")
        lnf = self.lab("Lnf")
        e(f"s_cmp_lt_u32 s2, {NF}")
        e(f"s_cbranch_scc0 {lnf}")
        e(f"s_add_u32 s{sT0}, s{sT0}, s{sBLKW}")
        e(f"s_add_u32 s{sT0}, s{sT0}, {FP}")
        e(f"s_add_u32 s{sT1}, s{sT0}, {LOFF}")
        self.vm(f"buffer_store_dwordx4 v[{vD}:{vD+3}], v{vVOFF}, s[{sWS}:{sWS+3}], s{sT0} offen sc1", cond=True)
        self.vm(f"buffer_store_dwordx4 v[{vD}:{vD+3}], v{vVOFF}, s[{sWS}:{sWS+3}], s{sT1} offen sc1", cond=True)
        self.label(lnf)
        self.srd(sW, sX, 2048)
        lnr = self.lab("Lnr")
        e(f"s_cmp_ge_u32 s2, {R0}")
        e(f"s_cbranch_scc0 {lnr}")
        e(f"s_sub_u32 s{sT0}, s2, {R0}")
        e(f"s_lshl_b32 s{sT0}, s{sT0}, 6")
        e(f"v_and_b32 v{vT0}, 7, v{vLANE}")
        e(f"v_lshlrev_b32 v{vT0}, 3, v{vT0}")
        self.vm(f"buffer_load_dwordx2 v[{vO}:{vO+1}], v{vT0}, s[{sW}:{sW+3}], s{sT0} offen", cond=True)
        self.label(lnr)
        e(f"s_lshl_b32 s{sT0}, s{sB}, 10")
        self.vm(f"buffer_load_dwordx4 v[{vS}:{vS+3}], v{vVOFF}, s[{sW}:{sW+3}], s{sT0} offen", tag="xrow")
        self.srd(sW, sWQ, 512 * 4096 * 2)
        self.pending = self.pass1_list()
        self.cap = cfg.CAP0
        self._vo = None
        self.stamp(29)
        self.pump(1, limit=32)
        self.stamp(30)
        self.consts()
        self.pump(1)
        self.stamp(1)
        e(f"v_and_b32 v{vD}, 31, v{vLANE}")
        e(f"v_lshlrev_b32 v{vD}, 3, v{vD}")
        e(f"v_add_u32 v{vD}, {L['XQ']+512}, v{vD}")
        e(f"v_mov_b32 v{vD+2}, 0x3f803f80"); e(f"v_mov_b32 v{vD+3}, 0x3f803f80")
        self.ds(f"ds_write_b64 v{vD}, v[{vD+2}:{vD+3}]")
        self.vm_wait("xrow")
        self.stamp(3)
        x = vD
        for r in range(4):
            e(f"v_lshlrev_b32 v{x+2*r}, 16, v{vS+r}")
            e(f"v_and_b32 v{x+2*r+1}, 0xffff0000, v{vS+r}")
        e(f"v_add_f32 v{vMR}, v{x}, v{x+1}")
        e(f"v_mul_f32 v{vLR}, v{x}, v{x}")
        e(f"v_fmac_f32 v{vLR}, v{x+1}, v{x+1}")
        for r in range(2, 8):
            e(f"v_add_f32 v{vMR}, v{vMR}, v{x+r}")
            e(f"v_fmac_f32 v{vLR}, v{x+r}, v{x+r}")
        lnr2 = self.lab("Lnr2")
        e(f"s_cmp_ge_u32 s2, {R0}")
        e(f"s_cbranch_scc0 {lnr2}")
        e(f"v_lshlrev_b32 v{vO+4}, 16, v{vO}")
        e(f"v_and_b32 v{vO+5}, 0xffff0000, v{vO}")
        e(f"v_lshlrev_b32 v{vO+6}, 16, v{vO+1}")
        e(f"v_and_b32 v{vO+7}, 0xffff0000, v{vO+1}")
        e(f"v_and_b32 v{vT0}, 7, v{vLANE}")
        e(f"v_lshlrev_b32 v{vT0}, 4, v{vT0}")
        e(f"v_add_u32 v{vT0}, {L['XRES']}, v{vT0}")
        e(f"ds_write_b128 v{vT0}, v[{vO+4}:{vO+7}]")
        self.label(lnr2)
        self.bfly_row("v_add_f32", [vMR, vLR])
        self.swap_reduce("v_add_f32", [vMR, vLR], [vT0, vT1], 16)
        self.swap_reduce("v_add_f32", [vMR, vLR], [vT0, vT1], 32)
        self.mean_rstd(vMR, vLR, None)
        for r in range(8):
            e(f"v_sub_f32 v{x+r}, v{x+r}, v{vMR}")
        for r in range(8):
            e(f"v_mul_f32 v{x+r}, v{vLR}, v{x+r}")
        for r in range(8):
            e(f"v_cvt_pk_bf16_f32 v{x+r}, v{x+r}, v{x+r}")
        e(f"s_mul_i32 s{sT0}, s{sWAVE}, 1152")
        e(f"s_add_u32 s{sT0}, s{sT0}, {L['PBUF']}")
        e(f"v_and_b32 v{vT0}, 15, v{vLANE}")
        e(f"v_lshlrev_b32 v{vT0}, 2, v{vT0}")
        e(f"v_add_u32 v{vT0}, s{sT0}, v{vT0}")
        e(f"s_lshl_b32 s{sT0}, s{sWAVE}, 4")
        e(f"s_mov_b64 s[{sMK}:{sMK+1}], 0xffff")
        e(f"s_lshl_b64 s[{sMK}:{sMK+1}], s[{sMK}:{sMK+1}], s{sT0}")
        e(f"s_mov_b64 exec, s[{sMK}:{sMK+1}]")
        for r in range(8):
            self.ds(f"ds_write_b32 v{vT0}, v{x+r} offset:{r*144}")
        e("s_mov_b64 exec, -1")
        self.lg_wait_all()
        self.stamp(4)
        qh = {1: lambda: self.stamp(24), 4: lambda: self.stamp(25), 8: lambda: self.stamp(26), 12: lambda: self.stamp(27)} if cfg.PROF else {}
        self.v_phase("Q", 1, True, list(range(16)), lambda t: False, {15: [("qdone",)]}, qh)
        self.cap = cfg.CAP
        self.stamp(2)
        t = vS
        e(f"v_and_b32 v{vT0}, 15, v{vLANE}")
        e(f"v_lshrrev_b32 v{vT1}, 3, v{vT0}")
        e(f"s_lshl_b32 s{sT0}, s{sWAVE}, 1")
        e(f"v_add_u32 v{vT1}, s{sT0}, v{vT1}")
        e(f"v_lshlrev_b32 v{vT1}, 9, v{vT1}")
        e(f"v_and_b32 v{vT0}, 7, v{vT0}")
        e(f"v_lshl_add_u32 v{vT1}, v{vT0}, 2, v{vT1}")
        e(f"v_lshrrev_b32 v{vT0}, 4, v{vLANE}")
        e(f"v_lshl_add_u32 v{vT1}, v{vT0}, 7, v{vT1}")
        e(f"v_add_u32 v{vT1}, {L['RED']}, v{vT1}")
        for r in range(4):
            e(f"v_cndmask_b32 v{t+r}, v{vO+4+r}, v{vO+r}, s[{sLT8}:{sLT8+1}]")
        for r in range(4):
            e(f"ds_write_b32 v{vT1}, v{t+r} offset:{r*32}")
        e(f"s_and_b32 s{sT0}, s{sWAVE}, 1")
        e(f"s_lshl_b32 s{sT0}, s{sT0}, 8")
        e(f"v_lshlrev_b32 v{vT0}, 2, v{vLANE}")
        e(f"v_add_u32 v{vT0}, s{sT0}, v{vT0}")
        e(f"v_lshrrev_b32 v{vT1}, 1, v{vT0}")
        e(f"v_add_u32 v{vT1}, {L['QBUF']}, v{vT1}")
        e(f"v_add_u32 v{vT0}, {L['RED']}, v{vT0}")
        e("s_waitcnt lgkmcnt(0)")
        e("s_barrier")
        t = vD
        for p in range(8):
            e(f"ds_read_b32 v{t+p}, v{vT0} offset:{p*512}")
        la = self.lab("Larr")
        e(f"s_cmp_lg_u32 s{sWAVE}, 0")
        e(f"s_cbranch_scc1 {la}")
        if cfg.NOARR:
            e(f"s_branch {la}")
        if cfg.THR == 1:
            e(f"v_mov_b32 v{vS}, {L['LVL']}")
            e(f"v_mov_b32 v{vS+1}, 0")
            e(f"ds_write_b32 v{vS}, v{vS+1}")
        if True:
            self.srd(sW, sDBG, 256)
            e(f"s_lshl_b32 s{sT1}, s{sH}, 2")
            e(f"v_mov_b32 v{vS}, s{sT1}")
            e(f"v_mov_b32 v{vS+1}, 1")
            e("s_mov_b64 exec, 1")
            self.vm(f"buffer_atomic_add v{vS+1}, v{vS}, s[{sW}:{sW+3}], 0 offen sc1", cond=True)
            e("s_mov_b64 exec, -1")
        self.label(la)
        e("s_waitcnt lgkmcnt(0)")
        for p in range(0, 8, 2):
            e(f"v_add_f32 v{t+p}, v{t+p}, v{t+p+1}")
        e(f"v_add_f32 v{t}, v{t}, v{t+2}")
        e(f"v_add_f32 v{t+4}, v{t+4}, v{t+6}")
        e(f"v_add_f32 v{t}, v{t}, v{t+4}")
        e(f"v_cvt_pk_bf16_f32 v{t}, v{t}, v{t}")
        e(f"ds_write_b16 v{vT1}, v{t}")
        e(f"v_and_b32 v{vT0}, 48, v{vLANE}")
        e(f"v_add_u32 v{vT0}, {L['QBUF']}, v{vT0}")
        e("s_waitcnt lgkmcnt(0)")
        e("s_barrier")
        for s in range(4):
            e(f"ds_read_b128 v[{vQF+4*s}:{vQF+4*s+3}], v{vT0} offset:{s*64}")
        e("s_waitcnt lgkmcnt(0)")
        self.stamp(5)

    def arrival_load(self):
        e = self.e
        l = self.lab("Lal")
        e(f"s_cmp_lg_u32 s{sWAVE}, 0")
        e(f"s_cbranch_scc1 {l}")
        self.srd(sW, sDBG, 256)
        if True:
            e(f"v_and_b32 v{vS+1}, 31, v{vLANE}")
            e(f"v_lshlrev_b32 v{vS+1}, 2, v{vS+1}")
        self.vm(f"buffer_load_dword v{vS}, v{vS+1}, s[{sW}:{sW+3}], 0 offen sc1", cond=True)
        self.label(l)

    def arrival_check(self):
        e = self.e
        l = self.lab("Lac")
        e(f"s_cmp_lg_u32 s{sWAVE}, 0")
        e(f"s_cbranch_scc1 {l}")
        e("s_waitcnt vmcnt(0)")

        def missing():
            if False:
                e(f"v_subrev_u32 v{vS+2}, 0x01010101, v{vS}")
                e(f"v_not_b32 v{vS+3}, v{vS}")
                e(f"v_and_b32 v{vS+2}, v{vS+2}, v{vS+3}")
                e(f"v_and_b32 v{vS+2}, 0x80808080, v{vS+2}")
                e(f"v_cmp_ne_u32 vcc, 0, v{vS+2}")
            else:
                e(f"v_cmp_gt_u32 vcc, 8, v{vS}")
        missing()
        e(f"s_cbranch_vccz {l}")
        self.srd(sW, sDBG, 256)
        lp = self.poll_begin()
        e(f"buffer_load_dword v{vS}, v{vS+1}, s[{sW}:{sW+3}], 0 offen sc1")
        e("s_waitcnt vmcnt(0)")
        missing()
        self.poll_end(lp)
        self.label(l)

    def stats_partial(self, x):
        e = self.e
        e(f"v_add_f32 v{vMR}, v{x}, v{x+1}")
        e(f"v_mul_f32 v{vLR}, v{x}, v{x}")
        e(f"v_add_f32 v{vMR}, v{vMR}, v{x+2}")
        e(f"v_fmac_f32 v{vLR}, v{x+1}, v{x+1}")
        e(f"v_add_f32 v{vMR}, v{vMR}, v{x+3}")
        e(f"v_fmac_f32 v{vLR}, v{x+2}, v{x+2}")
        e(f"v_fmac_f32 v{vLR}, v{x+3}, v{x+3}")
        self.bfly_row("v_add_f32", [vMR, vLR])
        self.swap_reduce("v_add_f32", [vMR, vLR], [vT0, vT1], 16)

    def qe(self):
        cfg, L, e = self.cfg, self.L, self.e
        self.label("L_QE")
        e("s_barrier")
        self.stamp(34)
        e(f"v_and_b32 v{vT0}, 15, v{vLANE}")
        e(f"v_min_u32 v{vT1}, 2, v{vT0}")
        e(f"v_lshlrev_b32 v{vT1}, 8, v{vT1}")
        e(f"v_and_b32 v{vO}, 48, v{vLANE}")
        e(f"v_add_u32 v{vT1}, v{vT1}, v{vO}")
        e(f"v_add_u32 v{vT1}, {L['XQ']}, v{vT1}")
        e(f"v_lshlrev_b32 v{vT0}, 8, v{vT0}")
        e(f"v_add_u32 v{vT0}, v{vT0}, v{vO}")
        for s in range(4):
            e(f"ds_read_b128 v[{vD+4*s}:{vD+4*s+3}], v{vT1} offset:{s*64}")
        e(f"s_lshl_b32 s{sT0}, s{sWAVE}, 6")
        e(f"s_add_u32 s{sT0}, s{sT0}, s{sBLK}")
        e(f"s_add_u32 s{sT0}, s{sT0}, s{sL}")
        e("s_waitcnt lgkmcnt(0)")
        d = vO + 4
        for s in range(4):
            c = "0" if s == 0 else f"v[{d}:{d+3}]"
            e(f"v_mfma_f32_16x16x32_bf16 v[{d}:{d+3}], v[{vKF+4*s}:{vKF+4*s+3}], v[{vD+4*s}:{vD+4*s+3}], {c}")
        e(f"s_mov_b64 exec, s[{sN3}:{sN3+1}]")
        e(f"buffer_store_dwordx4 v[{d}:{d+3}], v{vT0}, s[{sWS}:{sWS+3}], s{sT0} offen offset:{QP} sc1")
        e("s_mov_b64 exec, -1")
        e(f"s_cmp_lg_u32 s{sWAVE}, 0")
        e("s_cbranch_scc1 L_QE_wait")
        e(f"v_lshrrev_b32 v{vT0}, 5, v{vLANE}")
        e(f"v_lshlrev_b32 v{vT0}, 3, v{vT0}")
        e(f"s_add_u32 s{sT0}, s{sBLK}, s{sL}")
        e("s_mov_b32 exec_lo, 1"); e("s_mov_b32 exec_hi, 1")
        e(f"buffer_store_dwordx2 v[{vMR}:{vMR+1}], v{vT0}, s[{sWS}:{sWS+3}], s{sT0} offen offset:{QST} sc1")
        e("s_mov_b64 exec, -1")
        e(f"v_bfe_u32 v{vT0}, v{vLANE}, 4, 1")
        e(f"v_lshrrev_b32 v{vT1}, 5, v{vLANE}")
        e(f"v_lshl_add_u32 v{vT0}, v{vT1}, 1, v{vT0}")
        e(f"v_lshlrev_b32 v{vT0}, 14, v{vT0}")
        e(f"v_and_b32 v{vT1}, 15, v{vLANE}")
        e(f"v_lshl_add_u32 v{vT0}, v{vT1}, 4, v{vT0}")
        e(f"s_lshl_b32 s{sT0}, s{sH}, 17")
        e(f"s_add_u32 s{sT0}, s{sT0}, s{sL}")
        e(f"s_lshl_b32 s{sT1}, s{sB}, 8")
        e(f"s_add_u32 s{sT1}, s{sT1}, s{sT0}")
        e(f"s_add_u32 s{sT2}, s{sT1}, {4*BLK}")
        e(f"v_and_b32 v{vT1}, 3, v{vLANE}")
        e(f"v_lshlrev_b32 v{vT1}, 15, v{vT1}")
        e(f"s_lshl_b32 s{sT3}, s{sB}, 3")
        e(f"s_add_u32 s{sT3}, s{sT3}, s{sT0}")
        e(f"s_add_u32 s{sT4}, s{sT0}, 512")
        e(f"s_add_u32 s{sT5}, s{sT4}, {4*BLK}")
        cs = vD + 12
        lp = self.poll_begin()
        e(f"buffer_load_dwordx4 v[{vD}:{vD+3}], v{vT0}, s[{sWS}:{sWS+3}], s{sT1} offen offset:{QP} sc1")
        e(f"buffer_load_dwordx4 v[{vD+4}:{vD+7}], v{vT0}, s[{sWS}:{sWS+3}], s{sT2} offen offset:{QP} sc1")
        e(f"buffer_load_dwordx2 v[{vD+8}:{vD+9}], v{vT1}, s[{sWS}:{sWS+3}], s{sT3} offen offset:{QST} sc1")
        e(f"buffer_load_dwordx4 v[{cs}:{cs+3}], v{vT0}, s[{sWS}:{sWS+3}], s{sT4} offen offset:{QP} sc1")
        e(f"buffer_load_dwordx4 v[{vKF}:{vKF+3}], v{vT0}, s[{sWS}:{sWS+3}], s{sT5} offen offset:{QP} sc1")
        e("s_waitcnt vmcnt(0)")
        self.poll_check(list(range(vD, vD + 10)) + list(range(cs, cs + 4)) + list(range(vKF, vKF + 4)), vKF + 4)
        self.poll_end(lp)
        self.stamp(36)
        for r in range(4):
            e(f"v_add_f32 v{cs+r}, v{cs+r}, v{vKF+r}")
            e(f"v_add_f32 v{vD+r}, v{vD+r}, v{vD+4+r}")
        self.swap_reduce("v_add_f32", [cs + r for r in range(4)] + [vD + r for r in range(4)],
                         [vKF + r for r in range(4)] + [vD + 4 + r for r in range(4)], 32)
        s1, s2 = vD + 8, vD + 9
        for qp in ("[1,0,3,2]", "[2,3,0,1]"):
            for r in (s1, s2):
                e(f"v_add_f32_dpp v{r}, v{r}, v{r} quad_perm:{qp} row_mask:0xf bank_mask:0xf")
        self.mean_rstd(s1, s2, vD + 10)
        for r in range(4):
            e(f"v_fma_f32 v{vD+r}, -v{s1}, v{cs+r}, v{vD+r}")
        for r in range(4):
            e(f"v_mul_f32 v{vD+r}, v{s2}, v{vD+r}")
        e(f"v_cvt_pk_bf16_f32 v{vD+4}, v{vD}, v{vD+1}")
        e(f"v_cvt_pk_bf16_f32 v{vD+5}, v{vD+2}, v{vD+3}")
        e(f"v_and_b32 v{vT0}, 31, v{vLANE}")
        e(f"v_lshlrev_b32 v{vT0}, 3, v{vT0}")
        e(f"v_add_u32 v{vT0}, {L['QBUF']}, v{vT0}")
        e(f"ds_write_b64 v{vT0}, v[{vD+4}:{vD+5}]")
        self.label("L_QE_wait")
        e(f"v_and_b32 v{vT1}, 48, v{vLANE}")
        e(f"v_add_u32 v{vT1}, {L['QBUF']}, v{vT1}")
        e("s_waitcnt lgkmcnt(0)")
        e("s_barrier")
        for s in range(4):
            e(f"ds_read_b128 v[{vQF+4*s}:{vQF+4*s+3}], v{vT1} offset:{s*64}")
        e("s_waitcnt lgkmcnt(0)")
        self.stamp(37)

    def mean_rstd(self, s1, s2, t):
        e = self.e
        e(f"v_mul_f32 v{s1}, {hex(f2u(1/512))}, v{s1}")
        e(f"v_mul_f32 v{s2}, {hex(f2u(1/512))}, v{s2}")
        e(f"v_fma_f32 v{s2}, -v{s1}, v{s1}, v{s2}")
        e(f"v_max_f32 v{s2}, 0, v{s2}")
        e(f"v_add_f32 v{s2}, {hex(f2u(1e-5))}, v{s2}")
        e(f"v_rsq_f32 v{s2}, v{s2}")

    def tail(self):
        cfg, L, e = self.cfg, self.L, self.e
        self.label("L_TAIL")
        self.stamp(9, True)
        t = vD
        e(f"v_and_b32 v{vT0}, 15, v{vLANE}")
        e(f"v_lshrrev_b32 v{vT1}, 3, v{vT0}")
        e(f"s_lshl_b32 s{sT0}, s{sWAVE}, 1")
        e(f"v_add_u32 v{vT1}, s{sT0}, v{vT1}")
        e(f"v_lshlrev_b32 v{vT1}, 9, v{vT1}")
        e(f"v_and_b32 v{vT0}, 7, v{vT0}")
        e(f"v_lshl_add_u32 v{vT1}, v{vT0}, 2, v{vT1}")
        e(f"v_lshrrev_b32 v{vT0}, 4, v{vLANE}")
        e(f"v_lshl_add_u32 v{vT1}, v{vT0}, 7, v{vT1}")
        e(f"v_add_u32 v{vT1}, {L['RED']}, v{vT1}")
        for r in range(4):
            e(f"v_cndmask_b32 v{t+r}, v{vO+4+r}, v{vO+r}, s[{sLT8}:{sLT8+1}]")
        for r in range(4):
            e(f"ds_write_b32 v{vT1}, v{t+r} offset:{r*32}")
        dv = 2
        e(f"s_and_b32 s{sT0}, s{sWAVE}, 1")
        e(f"s_lshl_b32 s{sT0}, s{sT0}, 8")
        e(f"v_lshlrev_b32 v{dv}, 2, v{vLANE}")
        e(f"v_add_u32 v{dv}, s{sT0}, v{dv}")
        e(f"v_add_u32 v{vT0}, {L['RED']}, v{dv}")
        e(f"v_mov_b32 v{vT1}, {L['ML']}")
        e("s_waitcnt lgkmcnt(0)")
        e("s_barrier")
        for p in range(8):
            e(f"ds_read_b32 v{t+p}, v{vT0} offset:{p*512}")
        e(f"ds_read_b128 v[{vS}:{vS+3}], v{vT1}")
        e(f"ds_read_b128 v[{vO}:{vO+3}], v{vT1} offset:16")
        e(f"s_add_u32 s{sT0}, s{sBLK}, s{sL}")
        e("s_waitcnt lgkmcnt(0)")
        m = [vS, vS + 2, vO, vO + 2]; l = [vS + 1, vS + 3, vO + 1, vO + 3]
        M = vO + 4
        e(f"v_max3_f32 v{M}, v{m[0]}, v{m[1]}, v{m[2]}")
        e(f"v_max_f32 v{M}, v{M}, v{m[3]}")
        for w in range(4):
            e(f"v_sub_f32 v{m[w]}, v{m[w]}, v{M}")
        for w in range(4):
            e(f"v_mul_f32 v{m[w]}, s{sCS}, v{m[w]}")
        for w in range(4):
            e(f"v_exp_f32 v{m[w]}, v{m[w]}")
        for w in range(4):
            e(f"v_add_f32 v{t+2*w}, v{t+2*w}, v{t+2*w+1}")
        e(f"v_mul_f32 v{t}, v{m[0]}, v{t}")
        e(f"v_mul_f32 v{M+1}, v{m[0]}, v{l[0]}")
        for w in range(1, 4):
            e(f"v_fmac_f32 v{t}, v{m[w]}, v{t+2*w}")
            e(f"v_fmac_f32 v{M+1}, v{m[w]}, v{l[w]}")
        lsk = self.lab("Lop")
        e(f"s_cmp_ge_u32 s{sWAVE}, 2")
        e(f"s_cbranch_scc1 {lsk}")
        e(f"buffer_store_dword v{t}, v{dv}, s[{sWS}:{sWS+3}], s{sT0} offen offset:{OP} sc1")
        e(f"s_cmp_lg_u32 s{sWAVE}, 0")
        e(f"s_cbranch_scc1 {lsk}")
        e(f"s_mov_b64 s[{sEX}:{sEX+1}], exec")
        e("s_mov_b64 exec, 1")
        e(f"buffer_store_dwordx2 v[{M}:{M+1}], off, s[{sWS}:{sWS+3}], s{sT0} offset:{OP+512} sc1")
        e(f"s_mov_b64 exec, s[{sEX}:{sEX+1}]")
        self.label(lsk)
        self.stamp(10, True)
        e("s_waitcnt vmcnt(0)")
        self.w_frags(vKF, vT0)
        lnf = self.lab("Lnf")
        e(f"s_cmp_lt_u32 s2, {NF}")
        e(f"s_cbranch_scc0 {lnf}")
        e(f"v_mov_b32 v{t}, 0x3f803f80")
        for r in range(1, 4):
            e(f"v_mov_b32 v{t+r}, v{t}")
        e("s_waitcnt lgkmcnt(0)")
        for s in range(4):
            c = "0" if s == 0 else f"v[{vO}:{vO+3}]"
            e(f"v_mfma_f32_16x16x32_bf16 v[{vO}:{vO+3}], v[{vKF+4*s}:{vKF+4*s+3}], v[{t}:{t+3}], {c}")
        e(f"s_lshl_b32 s{sT0}, s{sWAVE}, 6")
        e(f"s_add_u32 s{sT0}, s{sT0}, {L['CS1P']}")
        e(f"v_and_b32 v{vT0}, 48, v{vLANE}")
        e(f"v_add_u32 v{vT0}, s{sT0}, v{vT0}")
        e(f"ds_write_b128 v{vT0}, v[{vO}:{vO+3}]")
        self.label(lnf)
        e("s_waitcnt lgkmcnt(0)")
        self.c("stage A")
        e(f"s_lshr_b32 s{sT0}, s{sWAVE}, 1")
        e(f"s_lshl_b32 s{sT0}, s{sT0}, 2")
        e(f"s_lshl_b32 s{sT1}, s{sH}, 3")
        e(f"s_add_u32 s{sT0}, s{sT0}, s{sT1}")
        e(f"s_lshl_b32 s{sT0}, s{sT0}, 14")
        e(f"s_add_u32 s{sT0}, s{sT0}, s{sL}")
        e(f"s_add_u32 s{sT1}, s{sT0}, {BLK}")
        e(f"s_add_u32 s{sT2}, s{sT0}, {2*BLK}")
        e(f"s_add_u32 s{sT3}, s{sT0}, {3*BLK}")
        so = [sT0, sT1, sT2, sT3]
        lp = self.poll_begin()
        for c in range(4):
            e(f"buffer_load_dword v{t+c}, v{dv}, s[{sWS}:{sWS+3}], s{so[c]} offen offset:{OP} sc1")
        for c in range(4):
            e(f"buffer_load_dwordx2 v[{t+4+2*c}:{t+5+2*c}], off, s[{sWS}:{sWS+3}], s{so[c]} offset:{OP+512} sc1")
        e("s_waitcnt vmcnt(0)")
        self.poll_check(range(t, t + 12), vT0)
        self.poll_end(lp)
        self.stamp(11, True)
        m = [t + 4 + 2 * c for c in range(4)]; l = [t + 5 + 2 * c for c in range(4)]
        M = vO
        e(f"v_max3_f32 v{M}, v{m[0]}, v{m[1]}, v{m[2]}")
        e(f"v_max_f32 v{M}, v{M}, v{m[3]}")
        for c in range(4):
            e(f"v_sub_f32 v{m[c]}, v{m[c]}, v{M}")
        for c in range(4):
            e(f"v_mul_f32 v{m[c]}, s{sCS}, v{m[c]}")
        for c in range(4):
            e(f"v_exp_f32 v{m[c]}, v{m[c]}")
        e(f"v_lshrrev_b32 v{vT0}, 1, v{dv}")
        e(f"s_lshr_b32 s{sT0}, s{sWAVE}, 1")
        e(f"s_lshl_b32 s{sT0}, s{sT0}, 8")
        e(f"s_add_u32 s{sT0}, s{sT0}, {L['XQ']}")
        e(f"v_add_u32 v{vT0}, s{sT0}, v{vT0}")
        e(f"v_mul_f32 v{M+1}, v{m[0]}, v{l[0]}")
        e(f"v_mul_f32 v{t}, v{m[0]}, v{t}")
        for c in range(1, 4):
            e(f"v_fmac_f32 v{M+1}, v{m[c]}, v{l[c]}")
            e(f"v_fmac_f32 v{t}, v{m[c]}, v{t+c}")
        e(f"v_rcp_f32 v{M+1}, v{M+1}")
        e(f"v_mul_f32 v{t}, v{M+1}, v{t}")
        e(f"v_cvt_pk_bf16_f32 v{t}, v{t}, v{t}")
        e(f"ds_write_b16 v{vT0}, v{t}")
        e(f"v_and_b32 v{vT0}, 15, v{vLANE}")
        e(f"v_min_u32 v{vT1}, 2, v{vT0}")
        e(f"v_lshlrev_b32 v{vT1}, 8, v{vT1}")
        e(f"v_and_b32 v{3}, 48, v{vLANE}")
        e(f"v_add_u32 v{vT1}, v{vT1}, v3")
        e(f"v_add_u32 v{vT1}, {L['XQ']}, v{vT1}")
        e(f"v_lshlrev_b32 v{vT0}, 8, v{vT0}")
        e(f"v_add_u32 v{vT0}, v{vT0}, v3")
        e(f"s_lshl_b32 s{sT0}, s{sWAVE}, 6")
        e(f"s_add_u32 s{sT0}, s{sT0}, s{sBLK}")
        e(f"s_add_u32 s{sT0}, s{sT0}, s{sL}")
        e("s_waitcnt lgkmcnt(0)")
        e("s_barrier")
        for s in range(4):
            e(f"ds_read_b128 v[{t+4*s}:{t+4*s+3}], v{vT1} offset:{s*64}")
        e("s_waitcnt lgkmcnt(0)")
        d = vO + 4
        for s in range(4):
            c = "0" if s == 0 else f"v[{d}:{d+3}]"
            e(f"v_mfma_f32_16x16x32_bf16 v[{d}:{d+3}], v[{vQF+4*s}:{vQF+4*s+3}], v[{t+4*s}:{t+4*s+3}], {c}")
        e(f"s_mov_b64 s[{sEX}:{sEX+1}], exec")
        e(f"s_mov_b64 exec, s[{sN2}:{sN2+1}]")
        e(f"buffer_store_dwordx4 v[{d}:{d+3}], v{vT0}, s[{sWS}:{sWS+3}], s{sT0} offen offset:{YP} sc1")
        e(f"s_mov_b64 exec, s[{sEX}:{sEX+1}]")
        self.stamp(12, True)
        e(f"s_cmp_lt_u32 s2, {NF}")
        e("s_cbranch_scc1 L_FFN")
        e(f"s_cmp_ge_u32 s2, {R0}")
        e("s_cbranch_scc1 L_RED")
        e(f"s_cmp_lg_u32 s{sL}, 0")
        e("s_cbranch_scc1 L_end")
        if cfg.PF:
            self.l2_prefetch(cfg.PF, True)
        e("s_branch L_G2")
        self.ffn()
        self.reducer()
        self.g2()

    def l2_prefetch(self, ntiles, partner):
        cfg, L, e = self.cfg, self.L, self.e
        e(f"s_mul_i32 s{sT0}, s{sWAVE}, 1152")
        e(f"s_add_u32 m0, s{sT0}, {L['PBUF']}")
        n = [0]

        def run(srd):
            for i in range(4 * ntiles):
                if i == 0:
                    e(f"s_mov_b32 s{sKO}, {8*4096}")
                else:
                    e(f"s_add_u32 s{sKO}, s{sKO}, 1024")
                if n[0] >= cfg.PFD:
                    e(f"s_waitcnt vmcnt({cfg.PFD-1})")
                e(f"buffer_load_dwordx4 v{vVOFF}, s[{srd}:{srd+3}], s{sKO} offen {cfg.PFPOL} lds")
                n[0] += 1
        run(sK)
        if partner:
            l = self.lab("Lpf")
            e("s_cmp_ge_u32 s2, 192")
            e(f"s_cbranch_scc0 {l}")
            e(f"s_add_u32 s{sW}, s{sK}, 0x80000")
            e(f"s_addc_u32 s{sW+1}, s{sK+1}, 0")
            e(f"s_mov_b32 s{sW+2}, 131072")
            e(f"s_mov_b32 s{sW+3}, 0x20000")
            run(sW)
            self.label(l)

    def red_reduce(self, x):
        L, e = self.L, self.e
        regs = [x + r for r in range(4)]
        self.bfly_row("v_add_f32", regs, steps=(8,))
        tm = [x + 4 + r for r in range(4)]
        self.swap_reduce("v_add_f32", regs, tm, 16)
        self.swap_reduce("v_add_f32", regs, tm, 32)
        e(f"s_lshl_b32 s{sT0}, s{sWAVE}, 7")
        e(f"s_add_u32 s{sT0}, s{sT0}, {L['PART']}")
        e(f"v_and_b32 v{vT0}, 7, v{vLANE}")
        e(f"v_lshlrev_b32 v{vT0}, 4, v{vT0}")
        e(f"v_add_u32 v{vT1}, s{sT0}, v{vT0}")
        e(f"ds_write_b128 v{vT1}, v[{x}:{x+3}]")
        e("s_waitcnt lgkmcnt(0)")
        e("s_barrier")

    def reducer(self):
        cfg, L, e = self.cfg, self.L, self.e
        self.label("L_RED")
        x = vD
        sR, sRB, sCB = sT4, sT5, 49
        e(f"s_sub_u32 s{sR}, s2, {R0}")
        e(f"s_lshr_b32 s{sRB}, s{sR}, 4")
        e(f"s_and_b32 s{sCB}, s{sR}, 15")
        self.srd(sW, sB2, 1024)
        e(f"v_and_b32 v2, 7, v{vLANE}")
        e(f"v_lshlrev_b32 v3, 3, v2")
        e(f"s_lshl_b32 s{sT0}, s{sCB}, 6")
        e(f"buffer_load_dwordx2 v[4:5], v3, s[{sW}:{sW+3}], s{sT0} offen")
        e(f"v_lshrrev_b32 v6, 3, v{vLANE}")
        e(f"v_lshlrev_b32 v7, 17, v6")
        e(f"v_lshl_add_u32 v7, v2, 4, v7")
        e(f"s_lshl_b32 s{sT0}, s{sWAVE}, 6")
        e(f"s_lshr_b32 s{sT1}, s{sCB}, 1")
        e(f"s_add_u32 s{sT0}, s{sT0}, s{sT1}")
        e(f"s_lshl_b32 s{sT0}, s{sT0}, 14")
        e(f"s_add_u32 s{sT0}, s{sT0}, s{sL}")
        e(f"s_lshl_b32 s{sT1}, s{sRB}, 8")
        e(f"s_add_u32 s{sT0}, s{sT0}, s{sT1}")
        e(f"s_and_b32 s{sT1}, s{sCB}, 1")
        e(f"s_lshl_b32 s{sT1}, s{sT1}, 7")
        e(f"s_add_u32 s{sT0}, s{sT0}, s{sT1}")
        lp = self.poll_begin()
        e(f"buffer_load_dwordx4 v[{x}:{x+3}], v7, s[{sWS}:{sWS+3}], s{sT0} offen offset:{YP} sc1")
        e("s_waitcnt vmcnt(0)")
        self.poll_check(range(x, x + 4), vT0)
        self.poll_end(lp)
        self.stamp(17, True)
        self.red_reduce(x)
        lw = self.lab("Lr1")
        e(f"s_cmp_lg_u32 s{sWAVE}, 0")
        e(f"s_cbranch_scc1 {lw}")

        def final_sum():
            e(f"v_add_u32 v{vT1}, {L['PART']}, v{vT0}")
            for w in range(4):
                e(f"ds_read_b128 v[{x+4*w}:{x+4*w+3}], v{vT1} offset:{w*128}")
            e(f"v_add_u32 v{vT0}, {L['XRES']}, v{vT0}")
            e(f"ds_read_b128 v[{vO+4}:{vO+7}], v{vT0}")
            e("s_waitcnt lgkmcnt(0)")
            for r in range(4):
                e(f"v_add_f32 v{x+r}, v{x+r}, v{x+4+r}")
                e(f"v_add_f32 v{x+8+r}, v{x+8+r}, v{x+12+r}")
            for r in range(4):
                e(f"v_add_f32 v{x+r}, v{x+r}, v{x+8+r}")
            for r in range(4):
                e(f"v_add_f32 v{x+r}, v{x+r}, v{vO+4+r}")
        final_sum()
        e(f"ds_write_b128 v{vT0}, v[{x}:{x+3}]")
        e(f"s_add_u32 s{sT0}, s{sBLKW}, s{sL}")
        e(f"v_lshlrev_b32 v3, 4, v2")
        e(f"s_mov_b64 s[{sEX}:{sEX+1}], exec")
        e("s_mov_b64 exec, 0xff")
        e(f"buffer_store_dwordx4 v[{x}:{x+3}], v3, s[{sWS}:{sWS+3}], s{sT0} offen offset:{X1} sc1")
        e(f"s_mov_b64 exec, s[{sEX}:{sEX+1}]")
        self.label(lw)
        self.stamp(18, True)
        e("s_waitcnt lgkmcnt(0)")
        e("s_barrier")
        e(f"v_lshlrev_b32 v7, 14, v6")
        e(f"v_lshl_add_u32 v7, v2, 4, v7")
        e(f"s_lshl_b32 s{sT0}, s{sWAVE}, 17")
        e(f"s_add_u32 s{sT0}, s{sT0}, s{sL}")
        e(f"s_lshl_b32 s{sT1}, s{sRB}, 11")
        e(f"s_add_u32 s{sT0}, s{sT0}, s{sT1}")
        e(f"s_lshl_b32 s{sT1}, s{sCB}, 7")
        e(f"s_add_u32 s{sT0}, s{sT0}, s{sT1}")
        e(f"s_add_u32 s{sT0}, s{sT0}, {FP}")
        e(f"s_add_u32 s{sT1}, s{sT0}, {32*BLK}")
        e(f"s_add_u32 s{sT2}, s{sT0}, {64*BLK}")
        e(f"s_add_u32 s{sT3}, s{sT0}, {96*BLK}")
        for r in range(4):
            e(f"v_mov_b32 v{x+12+r}, 0")
        lp = self.poll_begin()
        l3 = self.lab("Lr3")
        for k, so in enumerate((sT0, sT1, sT2)):
            e(f"buffer_load_dwordx4 v[{x+4*k}:{x+4*k+3}], v7, s[{sWS}:{sWS+3}], s{so} offen sc1")
        e(f"s_cmp_ge_u32 s{sWAVE}, 2")
        e(f"s_cbranch_scc1 {l3}")
        e(f"buffer_load_dwordx4 v[{x+12}:{x+15}], v7, s[{sWS}:{sWS+3}], s{sT3} offen sc1")
        self.label(l3)
        e("s_waitcnt vmcnt(0)")
        self.poll_check(range(x, x + 16), vT0)
        self.poll_end(lp)
        self.stamp(19, True)
        for r in range(4):
            e(f"v_add_f32 v{x+r}, v{x+r}, v{x+4+r}")
            e(f"v_add_f32 v{x+8+r}, v{x+8+r}, v{x+12+r}")
        for r in range(4):
            e(f"v_add_f32 v{x+r}, v{x+r}, v{x+8+r}")
        self.red_reduce(x)
        lw = self.lab("Lr4")
        e(f"s_cmp_lg_u32 s{sWAVE}, 0")
        e(f"s_cbranch_scc1 {lw}")
        final_sum()
        e(f"v_lshlrev_b32 v{x+4}, 16, v4")
        e(f"v_and_b32 v{x+5}, 0xffff0000, v4")
        e(f"v_lshlrev_b32 v{x+6}, 16, v5")
        e(f"v_and_b32 v{x+7}, 0xffff0000, v5")
        for r in range(4):
            e(f"v_add_f32 v{x+r}, v{x+r}, v{x+4+r}")
        lo = self.lab("Lout")
        e(f"s_mov_b64 s[{sEX}:{sEX+1}], exec")
        e(f"s_cmp_lg_u32 s{sL}, 0")
        e(f"s_cbranch_scc1 {lo}")
        e(f"ds_write_b128 v{vT0}, v[{x}:{x+3}]")
        e(f"s_add_u32 s{sT0}, s{sBLKW}, s{sL}")
        e(f"v_lshlrev_b32 v3, 4, v2")
        e("s_mov_b64 exec, 0xff")
        e(f"buffer_store_dwordx4 v[{x}:{x+3}], v3, s[{sWS}:{sWS+3}], s{sT0} offen offset:{X2} sc1")
        e(f"s_mov_b64 exec, s[{sEX}:{sEX+1}]")
        e("s_waitcnt lgkmcnt(0)")
        e("s_branch L_G2")
        self.label(lo)
        self.srd(sW, sOUT, 2048)
        e(f"v_cvt_pk_bf16_f32 v{x+4}, v{x}, v{x+1}")
        e(f"v_cvt_pk_bf16_f32 v{x+5}, v{x+2}, v{x+3}")
        e(f"s_lshl_b32 s{sT0}, s{sR}, 6")
        e(f"v_lshlrev_b32 v3, 3, v2")
        e("s_mov_b64 exec, 0xff")
        e(f"buffer_store_dwordx2 v[{x+4}:{x+5}], v3, s[{sW}:{sW+3}], s{sT0} offen")
        e("s_waitcnt vmcnt(0)")
        e("s_branch L_end")
        self.label(lw)
        e(f"s_cmp_lg_u32 s{sL}, 0")
        e("s_cbranch_scc1 L_end")
        e("s_branch L_G2")

    def ffn(self):
        cfg, L, e = self.cfg, self.L, self.e
        self.label("L_FFN")
        t = vD
        self.srd(sW, sW2, 1792 * 512 * 2)
        e(f"v_lshrrev_b32 v2, 4, v{vLANE}")
        e(f"v_lshlrev_b32 v2, 10, v2")
        e(f"v_and_b32 v3, 15, v{vLANE}")
        e(f"v_lshl_add_u32 v2, v3, 4, v2")
        e(f"s_lshl_b32 s{sT0}, s2, 14")
        e(f"s_lshl_b32 s{sT1}, s{sWAVE}, 8")
        e(f"s_add_u32 s{sT0}, s{sT0}, s{sT1}")
        for i in range(4):
            e(f"s_add_u32 m0, s{sWB}, {i*1024}")
            if i > 0:
                e(f"s_add_u32 s{sT0}, s{sT0}, 4096")
            e(f"buffer_load_dwordx4 v2, s[{sW}:{sW+3}], s{sT0} offen lds")
        self.srd(sW, sB1, 1792 * 2)
        e(f"v_lshrrev_b32 v3, 4, v{vLANE}")
        e(f"v_lshlrev_b32 v3, 3, v3")
        e(f"s_lshl_b32 s{sT0}, s2, 5")
        e(f"buffer_load_dwordx2 v[4:5], v3, s[{sW}:{sW+3}], s{sT0} offen")
        e(f"v_lshrrev_b32 v2, 4, v{vLANE}")
        e(f"v_lshlrev_b32 v2, 2, v2")
        e(f"v_bfe_u32 v3, v{vLANE}, 2, 2")
        e(f"v_add_u32 v2, v2, v3")
        e(f"v_lshlrev_b32 v2, 8, v2")
        e(f"v_and_b32 v3, 3, v{vLANE}")
        e(f"v_lshl_add_u32 v2, v3, 3, v2")
        e(f"v_add_u32 v2, s{sWB}, v2")
        e("s_waitcnt vmcnt(0)")
        for tt in range(8):
            e(f"ds_read_b64_tr_b16 v[{vQF+2*tt}:{vQF+2*tt+1}], v2 offset:{tt*32}")
        e(f"v_lshlrev_b32 v2, 16, v4")
        e(f"v_and_b32 v3, 0xffff0000, v4")
        e(f"v_lshlrev_b32 v4, 16, v5")
        e(f"v_and_b32 v5, 0xffff0000, v5")
        e(f"v_lshrrev_b32 v10, 3, v{vLANE}")
        e(f"v_lshlrev_b32 v10, 14, v10")
        e(f"v_and_b32 v11, 7, v{vLANE}")
        e(f"v_lshl_add_u32 v10, v11, 4, v10")
        e(f"s_lshl_b32 s{sT0}, s{sWAVE}, 3")
        e(f"s_add_u32 s{sT0}, s{sT0}, {R0}")
        e(f"s_lshl_b32 s{sT0}, s{sT0}, 14")
        e(f"s_add_u32 s{sT0}, s{sT0}, s{sL}")
        e(f"s_lshl_b32 s{sT1}, s{sWAVE}, 9")
        e(f"s_add_u32 s{sT1}, s{sT1}, {L['XBUF']}")
        e(f"v_lshlrev_b32 v11, 3, v{vLANE}")
        e(f"v_add_u32 v11, s{sT1}, v11")
        e(f"v_and_b32 v12, 1, v{vLANE}")
        e(f"v_lshlrev_b32 v13, 10, v12")
        e(f"v_and_b32 v14, 48, v{vLANE}")
        e(f"v_add_u32 v13, v13, v14")
        e(f"s_lshl_b32 s{sT1}, s{sWAVE}, 8")
        e(f"s_add_u32 s{sT1}, s{sT1}, {L['XBUF']}")
        e(f"v_add_u32 v13, s{sT1}, v13")
        e(f"v_lshlrev_b32 v14, 1, v14")
        e(f"v_lshl_add_u32 v14, v12, 4, v14")
        e(f"v_add_u32 v14, {L['PART']}, v14")
        e(f"s_lshl_b32 s{sT1}, s{sWAVE}, 7")
        e(f"v_add_u32 v15, s{sT1}, v14")
        e("s_waitcnt lgkmcnt(0)")
        self.stamp(13, True)
        lp = self.poll_begin()
        e(f"buffer_load_dwordx4 v[{t}:{t+3}], v10, s[{sWS}:{sWS+3}], s{sT0} offen offset:{X1} sc1")
        e("s_waitcnt vmcnt(0)")
        self.poll_check(range(t, t + 4), vT0)
        self.poll_end(lp)
        self.stamp(14, True)
        e(f"v_cvt_pk_bf16_f32 v{t+4}, v{t}, v{t+1}")
        e(f"v_cvt_pk_bf16_f32 v{t+5}, v{t+2}, v{t+3}")
        e(f"ds_write_b64 v11, v[{t+4}:{t+5}]")
        e(f"v_lshlrev_b32 v{t}, 16, v{t+4}")
        e(f"v_and_b32 v{t+1}, 0xffff0000, v{t+4}")
        e(f"v_lshlrev_b32 v{t+2}, 16, v{t+5}")
        e(f"v_and_b32 v{t+3}, 0xffff0000, v{t+5}")
        e(f"v_add_f32 v{vMR}, v{t}, v{t+1}")
        e(f"v_mul_f32 v{vLR}, v{t}, v{t}")
        e(f"v_add_f32 v{vMR}, v{vMR}, v{t+2}")
        e(f"v_fmac_f32 v{vLR}, v{t+1}, v{t+1}")
        e(f"v_add_f32 v{vMR}, v{vMR}, v{t+3}")
        e(f"v_fmac_f32 v{vLR}, v{t+2}, v{t+2}")
        e(f"v_fmac_f32 v{vLR}, v{t+3}, v{t+3}")
        e("s_waitcnt lgkmcnt(0)")
        e("s_barrier")
        for s in range(4):
            e(f"ds_read_b128 v[{t+4*s}:{t+4*s+3}], v13 offset:{s*64}")
        e(f"v_and_b32 v10, 48, v{vLANE}")
        e(f"v_add_u32 v10, {L['CS1P']}, v10")
        e(f"ds_read_b128 v[6:9], v10")
        self.bfly_row("v_add_f32", [vMR, vLR])
        self.swap_reduce("v_add_f32", [vMR, vLR], [vT0, vT1], 16)
        self.swap_reduce("v_add_f32", [vMR, vLR], [vT0, vT1], 32)
        e("s_waitcnt lgkmcnt(0)")
        d = vO + 4
        for s in range(4):
            c = "0" if s == 0 else f"v[{d}:{d+3}]"
            e(f"v_mfma_f32_16x16x32_bf16 v[{d}:{d+3}], v[{vKF+4*s}:{vKF+4*s+3}], v[{t+4*s}:{t+4*s+3}], {c}")
        e(f"s_lshl_b32 s{sT1}, s{sWAVE}, 3")
        e(f"s_add_u32 s{sT1}, s{sT1}, {L['ST']}")
        e(f"v_mov_b32 v{vT0}, s{sT1}")
        e(f"ds_write_b64 v{vT0}, v[{vMR}:{vMR+1}]")
        for w in range(1, 4):
            e(f"ds_read_b128 v[{t+4*w}:{t+4*w+3}], v10 offset:{w*64}")
        e(f"ds_write_b128 v15, v[{d}:{d+3}]")
        e("s_waitcnt lgkmcnt(0)")
        for w in range(1, 4):
            for r in range(4):
                e(f"v_add_f32 v{6+r}, v{6+r}, v{t+4*w+r}")
        e("s_barrier")
        for w in range(4):
            e(f"ds_read_b128 v[{t+4*w}:{t+4*w+3}], v14 offset:{w*128}")
        e(f"v_lshlrev_b32 v{vT0}, 4, v12")
        e(f"v_add_u32 v{vT0}, {L['ST']}, v{vT0}")
        e(f"ds_read_b128 v[{d}:{d+3}], v{vT0}")
        e("s_waitcnt lgkmcnt(0)")
        e(f"v_add_f32 v{vMR}, v{d}, v{d+2}")
        e(f"v_add_f32 v{vLR}, v{d+1}, v{d+3}")
        self.mean_rstd(vMR, vLR, None)
        for r in range(4):
            e(f"v_add_f32 v{t+r}, v{t+r}, v{t+4+r}")
            e(f"v_add_f32 v{t+8+r}, v{t+8+r}, v{t+12+r}")
        for r in range(4):
            e(f"v_add_f32 v{t+r}, v{t+r}, v{t+8+r}")
        for r in range(4):
            e(f"v_fma_f32 v{t+r}, -v{vMR}, v{6+r}, v{t+r}")
        for r in range(4):
            e(f"v_fma_f32 v{t+r}, v{vLR}, v{t+r}, v{2+r}")
        k0 = -2.0 * 0.7978845608028654 * 1.4426950408889634
        e(f"s_mov_b32 s{sT1}, {hex(f2u(0.044715))}")
        e(f"s_mov_b32 s{sT2}, {hex(f2u(k0))}")
        for r in range(4):
            e(f"v_mul_f32 v{t+4+r}, v{t+r}, v{t+r}")
        for r in range(4):
            e(f"v_fma_f32 v{t+4+r}, v{t+4+r}, s{sT1}, 1.0")
        for r in range(4):
            e(f"v_mul_f32 v{t+4+r}, v{t+4+r}, v{t+r}")
        for r in range(4):
            e(f"v_mul_f32 v{t+4+r}, s{sT2}, v{t+4+r}")
        for r in range(4):
            e(f"v_exp_f32 v{t+4+r}, v{t+4+r}")
        for r in range(4):
            e(f"v_add_f32 v{t+4+r}, 1.0, v{t+4+r}")
        for r in range(4):
            e(f"v_rcp_f32 v{t+4+r}, v{t+4+r}")
        for r in range(4):
            e(f"v_mul_f32 v{t+r}, v{t+r}, v{t+4+r}")
        e(f"v_cvt_pk_bf16_f32 v{t+8}, v{t}, v{t+1}")
        e(f"v_cvt_pk_bf16_f32 v{t+9}, v{t+2}, v{t+3}")
        e(f"v_lshlrev_b32 v10, 11, v12")
        e(f"v_bfe_u32 v11, v{vLANE}, 1, 3")
        e(f"v_lshl_add_u32 v10, v11, 6, v10")
        e(f"v_and_b32 v11, 48, v{vLANE}")
        e(f"v_add_u32 v10, v10, v11")
        e(f"s_lshl_b32 s{sT0}, s{sWAVE}, 9")
        e(f"s_add_u32 s{sT0}, s{sT0}, s{sBLKW}")
        e(f"s_add_u32 s{sT0}, s{sT0}, s{sL}")
        e(f"s_add_u32 s{sT0}, s{sT0}, {FP}")
        bb = [t + 10, t + 12]
        def mk(tt):
            b = bb[tt & 1]
            e(f"s_lshl_b64 s[{sMK}:{sMK+1}], s[{sN2}:{sN2+1}], {2*tt}")
            e(f"v_cndmask_b32 v{b}, 0, v{t+8}, s[{sMK}:{sMK+1}]")
            e(f"v_cndmask_b32 v{b+1}, 0, v{t+9}, s[{sMK}:{sMK+1}]")
        mk(0)
        for tt in range(8):
            if tt + 1 < 8:
                mk(tt + 1)
            b = bb[tt & 1]
            c = "0" if tt == 0 else f"v[{d}:{d+3}]"
            e(f"v_mfma_f32_16x16x16_bf16 v[{d}:{d+3}], v[{vQF+2*tt}:{vQF+2*tt+1}], v[{b}:{b+1}], {c}")
        e(f"buffer_store_dwordx4 v[{d}:{d+3}], v10, s[{sWS}:{sWS+3}], s{sT0} offen sc1")
        self.stamp(15, True)
        e(f"s_cmp_lg_u32 s{sL}, 0")
        e("s_cbranch_scc1 L_end")
        self.set_wq()
        self.w_dma(vT0, cond=True)
        if cfg.PFF:
            self.l2_prefetch(cfg.PFF, False)
            e(f"s_waitcnt vmcnt({min(cfg.PFD, 4*cfg.PFF)})")
        else:
            e("s_waitcnt vmcnt(0)")
        self.w_frags(vKF, vT0)
        e("s_waitcnt lgkmcnt(0)")
        e("s_branch L_G2")

    def g2(self):
        cfg, L, e = self.cfg, self.L, self.e
        self.label("L_G2")
        self.stamp(21)
        self.consts()
        lw = self.lab("Lg2")
        e(f"s_cmp_lg_u32 s{sWAVE}, 0")
        e(f"s_cbranch_scc1 {lw}")
        t = vD
        e(f"v_lshrrev_b32 v{vT0}, 5, v{vLANE}")
        e(f"v_lshlrev_b32 v{vT0}, 4, v{vT0}")
        e(f"v_bfe_u32 v{vT1}, v{vLANE}, 3, 2")
        e(f"v_add_u32 v{vT0}, v{vT0}, v{vT1}")
        e(f"v_lshlrev_b32 v{vT0}, 14, v{vT0}")
        e(f"v_and_b32 v{vT1}, 7, v{vLANE}")
        e(f"v_lshl_add_u32 v{vT0}, v{vT1}, 4, v{vT0}")
        e(f"s_lshr_b32 s{sT0}, s{sJ}, 1")
        e(f"s_lshl_b32 s{sT0}, s{sT0}, 2")
        e(f"s_add_u32 s{sT0}, s{sT0}, {R0}")
        e(f"s_lshl_b32 s{sT0}, s{sT0}, 14")
        e(f"v_lshrrev_b32 v{t+8}, 5, v{vLANE}")
        e(f"v_lshlrev_b32 v{t+8}, 8, v{t+8}")
        e(f"v_and_b32 v{t+9}, 31, v{vLANE}")
        e(f"v_lshl_add_u32 v{t+8}, v{t+9}, 3, v{t+8}")
        e(f"v_add_u32 v{t+8}, {L['XQ']}, v{t+8}")
        lp = self.poll_begin()
        e(f"buffer_load_dwordx4 v[{t}:{t+3}], v{vT0}, s[{sWS}:{sWS+3}], s{sT0} offen offset:{X2} sc1")
        e("s_waitcnt vmcnt(0)")
        self.poll_check(range(t, t + 4), vT1)
        self.poll_end(lp)
        self.stamp(22)
        e(f"v_cvt_pk_bf16_f32 v{t+4}, v{t}, v{t+1}")
        e(f"v_cvt_pk_bf16_f32 v{t+5}, v{t+2}, v{t+3}")
        e(f"ds_write_b64 v{t+8}, v[{t+4}:{t+5}]")
        e(f"v_lshlrev_b32 v{t}, 16, v{t+4}")
        e(f"v_and_b32 v{t+1}, 0xffff0000, v{t+4}")
        e(f"v_lshlrev_b32 v{t+2}, 16, v{t+5}")
        e(f"v_and_b32 v{t+3}, 0xffff0000, v{t+5}")
        self.stats_partial(t)
        self.label(lw)
        e(f"s_mov_b32 s{sL}, {LOFF}")
        e("s_waitcnt lgkmcnt(0)")
        e("s_branch L_QE")

    def build(self):
        cfg, e = self.cfg, self.e
        self.prologue()

        def snap():
            return (list(self.pending), set(self.ready), self.vm_n, dict(self.vm_tags), self.vm_done, self.lg_n, dict(self.lg_tags), self._vo)

        def rest(s):
            self.pending, self.ready, self.vm_n, self.vm_tags, self.vm_done, self.lg_n, self.lg_tags, self._vo = \
                list(s[0]), set(s[1]), s[2], dict(s[3]), s[4], s[5], dict(s[6]), s[7]

        def both(fn, name, cap_e, cap_o, last_falls):
            if not cfg.CAPO:
                self.cap, self.capend = cap_e, cfg.CAPEND
                fn()
                if not last_falls:
                    e("s_branch L_TAIL")
                return
            s0 = snap()
            e(f"s_cmp_lg_u32 s{sPAR}, 0")
            e(f"s_cbranch_scc1 {name}")
            self.cap, self.capend = cap_e, cfg.CAPEND
            fn()
            e("s_branch L_TAIL")
            rest(s0)
            self.label(name)
            self.cap, self.capend = cap_o, cfg.CAPENDO or cfg.CAPEND
            fn()
            if not last_falls:
                e("s_branch L_TAIL")
        both(self.pass1, "L_P1_odd", cfg.CAP, cfg.CAPO, False)
        self.qe()
        self.vm_n += 5000; self.vm_done = self.vm_n; self.vm_tags = {}
        self.pending = []
        both(self.pass2, "L_P2_odd", cfg.CAP2 or cfg.CAP, cfg.CAPO2 or cfg.CAPO, True)
        self.tail()
        self.label("L_end")
        self.stamp(63, last=True)
        self.label("L_exit")
        e("s_endpgm")

    def text(self):
        cfg = self.cfg
        body, nn = hazard_pass(self.lines)
        hdr = []
        ref = open("interleave_layers__mha_block_cached__dense_activation_gelu__decode.s.ref").read().split("\n")
        for l in ref:
            if l.startswith("; @launch"):
                hdr.append("; @launch grid=(256,1,1) block=(256,1,1) lds=163840")
                break
            if l.startswith(";"):
                hdr.append(l)
        hdr += ['.amdgcn_target "amdgcn-amd-amdhsa--gfx950"', ".text", f".globl {KNAME}", ".p2align 8",
                f".type {KNAME},@function", f"{KNAME}:"]
        ftr = ['.section .rodata,"a"', ".p2align 6", f".amdhsa_kernel {KNAME}",
               "  .amdhsa_next_free_vgpr 512", "  .amdhsa_next_free_sgpr 102", "  .amdhsa_accum_offset 256",
               "  .amdhsa_group_segment_fixed_size 0", "  .amdhsa_kernarg_size 104", "  .amdhsa_user_sgpr_count 2",
               "  .amdhsa_user_sgpr_kernarg_segment_ptr 1", "  .amdhsa_system_sgpr_workgroup_id_x 1",
               ".end_amdhsa_kernel", ""]
        return "\n".join(hdr + body + ftr), nn


def generate(path, **kw):
    cfg = Cfg()
    for k, v in kw.items():
        setattr(cfg, k, v)
    g = Gen(cfg)
    g.build()
    txt, nn = g.text()
    open(path, "w").write(txt)
    return len(txt), nn, len(g.lines)


if __name__ == "__main__":
    out = sys.argv[1] if len(sys.argv) > 1 else "interleave_layers__mha_block_cached__dense_activation_gelu__decode.s"
    kw = {}
    for a in sys.argv[2:]:
        k, v = a.split("=")
        kw[k] = v if (k.endswith("POL") or k.startswith("CK") or k.startswith("PART")) else int(v)
    print(generate(out, **kw))
```

```python
import sys, struct, os
sys.path.insert(0, os.path.dirname(os.path.abspath(__file__)))
from asmlib import Asm, hazard_pass

KNAME = "interleave_layers__mha_block_cached__dense_activation_gelu__decode_kernel"


def f2u(x):
    return struct.unpack("<I", struct.pack("<f", x))[0]


class Cfg:
    NR = 8
    NWORK = 72
    CAP = 16
    INIT_V = 24
    CAP0 = 44
    QF = 32
    QA = 4
    QPF = 1
    LOC = 0
    XMAP = 1
    PF = 0
    PFF = 0
    PFD = 8
    PFPOL = ""
    THR = 0
    T1 = 128
    T2 = 0
    CAPT1 = 6
    CAPT2 = 4
    CK1 = "KB7:12,VB0:10,VB20:30,KA3:8,KA11:15,VA4:14,VA18:26"
    CK2 = "KA11:15,KB2:6,KB8:12"
    PART1 = "KB,VB,KA,VA"
    PART2 = "KA,KB"
    NOARR = 0
    KSPLIT = 0
    CAPEND = 0
    CAPO = 0
    CAP2 = 0
    CAPO2 = 0
    CAPENDO = 0
    KRET = 8
    KRETB = 0
    VRET = 0
    RETPOL = ""
    P2POL = "nt"
    P2VPOL = "nt"
    SPIN = 200000
    KPOL = "nt"
    VPOL = "nt"
    PROF = False
    POLL_SLEEP = 0


RING = 0
def lds_map(cfg):
    m = {}
    m["W"] = cfg.NR * 4096 * 4
    misc = m["W"] + 16384
    m["PBUF"] = misc
    m["RED"] = misc + 4608
    m["ML"] = misc + 8704
    m["XQ"] = misc + 8768
    m["QBUF"] = misc + 9536
    m["CSB"] = misc + 9792
    m["XRES"] = misc + 10304
    m["XBUF"] = misc + 10432
    m["PART"] = misc + 12480
    m["ST"] = misc + 12992
    m["CS1P"] = misc + 13056
    m["LVL"] = misc + 13312
    m["LOC"] = misc + 13328
    m["END"] = misc + 13344
    return m

BLK = 16384
LOFF = 8192
QP, QST, OP, YP, X1, X2, FP = 0, 768, 1024, 2048, 3072, 3200, 4096
PROF_OFF = 256 * BLK
NF = 112
R0 = 224

sK, sV, sWS, sW = 4, 8, 12, 16
sWQ, sWO, sW1, sW2, sB1, sB2, sOUT, sDBG, sX = 20, 22, 24, 26, 28, 30, 32, 34, 36
sWAVE, sH, sJ, sB, sC = 38, 39, 40, 41, 42
sRING, sWB, sL, sLOC, sSPIN = 43, 44, 46, 47, 48
sQO = 45
sEX = 50
sMK = 52
sT0, sT1, sT2, sT3, sT4, sT5 = 54, 55, 56, 57, 64, 65
sM0 = 58
sCS = 60
sBLK = 61
sLT8 = 62
sKO, sVO = 66, 67
sN2 = 68
sN3 = 70
sBLKW = 72
sPAR = 73
sLVL, sRK = 77, 78
sCK = 80
sP0 = 74

vLANE, vVOFF = 0, 1
vKD = 2
vKR = 6
vM = 10
vPW, vPR = 14, 15
vQF = 16
vKF = 32
vB0, vB1, vP0, vP1 = 32, 36, 40, 44
vD = 48
vS = 56
vO = 60
vMR, vLR = 68, 69
vT0, vT1 = 70, 71
vCK = 72

SCALE = 128 ** -0.5 * 1.4426950408889634


class Gen(Asm):
    def __init__(self, cfg):
        super().__init__()
        self.cfg = cfg
        self.L = lds_map(cfg)
        assert self.L["END"] <= 163840
        self.nstamp = 0
        self.pending = []
        self.ready = set()
        self.cap = cfg.CAP
        self.thr_on = False
        self.nck = 0
        self.ck_at = {}
        self.lvl_pending = None

    def stamp(self, sid, shared=False, last=False):
        if not self.cfg.PROF:
            return
        e = self.e
        vST = self.cfg.NWORK - 1
        if sid == 0:
            e(f"v_mov_b32 v{vST}, 0")
            e(f"s_getreg_b32 s{sP0}, hwreg(HW_REG_XCC_ID)")
            e(f"s_or_b32 s{sP0}, s{sP0}, 0x10000")
            e(f"v_writelane_b32 v{vST}, s{sP0}, 62")
            e(f"s_getreg_b32 s{sP0}, hwreg(HW_REG_HW_ID)")
            e(f"v_writelane_b32 v{vST}, s{sP0}, 61")
            e(f"s_memrealtime s[{sP0}:{sP0+1}]")
            e(f"s_mov_b32 s{sP0+2}, 0")
            return
        e("s_waitcnt lgkmcnt(0)")
        e(f"s_mov_b32 m0, s{sP0+2}")
        e("s_nop 0")
        e(f"v_writelane_b32 v{vST}, s{sP0}, m0")
        if shared:
            e(f"s_lshr_b32 s{sP0+2}, s{sL}, 8")
            e(f"s_add_u32 s{sP0+2}, s{sP0+2}, {sid}")
        else:
            e(f"s_mov_b32 s{sP0+2}, {sid}")
        e(f"s_memrealtime s[{sP0}:{sP0+1}]")
        if last:
            e("s_waitcnt lgkmcnt(0)")
            e(f"s_mov_b32 m0, s{sP0+2}")
            e("s_nop 0")
            e(f"v_writelane_b32 v{vST}, s{sP0}, m0")
            e(f"s_lshl_b32 s{sT0}, s2, 2")
            e(f"s_add_u32 s{sT0}, s{sT0}, s{sWAVE}")
            e(f"s_lshl_b32 s{sT0}, s{sT0}, 8")
            e(f"s_add_u32 s{sT0}, s{sT0}, {PROF_OFF}")
            e(f"s_mov_b64 exec, -1")
            e(f"v_lshlrev_b32 v1, 2, v0")
            e(f"buffer_store_dword v{vST}, v1, s[{sWS}:{sWS+3}], s{sT0} offen")
            e("s_waitcnt vmcnt(0)")

    def srd(self, d, ptr, nbytes, add=None):
        if add is None:
            self.e(f"s_mov_b32 s{d}, s{ptr}")
            self.e(f"s_and_b32 s{d+1}, s{ptr+1}, 0xffff")
        else:
            self.e(f"s_add_u32 s{d}, s{ptr}, s{add}")
            self.e(f"s_addc_u32 s{d+1}, s{ptr+1}, 0")
            self.e(f"s_and_b32 s{d+1}, s{d+1}, 0xffff")
        self.e(f"s_mov_b32 s{d+2}, {nbytes}")
        self.e(f"s_mov_b32 s{d+3}, 0x20000")

    def bfly_row(self, op, regs, steps=(8, 4, 2, 1)):
        for st in steps:
            for r in regs:
                self.e(f"{op}_dpp v{r}, v{r}, v{r} row_ror:{st} row_mask:0xf bank_mask:0xf")

    def swap_reduce(self, op, regs, tmps, which):
        for r, t in zip(regs, tmps):
            self.e(f"v_mov_b32 v{t}, v{r}")
        for r, t in zip(regs, tmps):
            self.e(f"v_permlane{which}_swap_b32 v{t}, v{r}")
        for r, t in zip(regs, tmps):
            self.e(f"{op} v{r}, v{t}, v{r}")

    def poll_begin(self):
        l = self.lab("Lpoll")
        self.e(f"s_mov_b32 s{sSPIN}, {self.cfg.SPIN}")
        self.label(l)
        return l

    def poll_check(self, regs, tmp):
        regs = list(regs)
        if len(regs) == 1:
            self.e(f"v_cmp_eq_u32 vcc, -1, v{regs[0]}")
            return
        if len(regs) == 2:
            self.e(f"v_max_u32 v{tmp}, v{regs[0]}, v{regs[1]}")
            rest = []
        else:
            self.e(f"v_max3_u32 v{tmp}, v{regs[0]}, v{regs[1]}, v{regs[2]}")
            rest = regs[3:]
        while len(rest) >= 2:
            self.e(f"v_max3_u32 v{tmp}, v{tmp}, v{rest[0]}, v{rest[1]}")
            rest = rest[2:]
        if rest:
            self.e(f"v_max_u32 v{tmp}, v{tmp}, v{rest[0]}")
        self.e(f"v_cmp_eq_u32 vcc, -1, v{tmp}")

    def poll_end(self, l):
        ok = self.lab("Lok")
        self.e(f"s_cbranch_vccz {ok}")
        if self.cfg.POLL_SLEEP:
            self.e(f"s_sleep {self.cfg.POLL_SLEEP}")
        self.e(f"s_sub_u32 s{sSPIN}, s{sSPIN}, 1")
        self.e(f"s_cmp_lg_u32 s{sSPIN}, 0")
        self.e(f"s_cbranch_scc1 {l}")
        self.label(ok)

    def consts(self):
        L = self.L
        e = self.e
        self.c("per-lane stream constants")
        e(f"v_lshlrev_b32 v{vVOFF}, 4, v{vLANE}")
        e(f"v_and_b32 v{vT0}, 15, v{vLANE}")
        e(f"v_lshrrev_b32 v{vT1}, 4, v{vLANE}")
        for t in range(4):
            e(f"v_add_u32 v{vD}, {4*t}, v{vT1}")
            e(f"v_xor_b32 v{vD}, v{vD}, v{vT0}")
            e(f"v_lshlrev_b32 v{vD}, 4, v{vD}")
            e(f"v_lshl_add_u32 v{vKD+t}, v{vT1}, 8, v{vD}")
        for s in range(4):
            e(f"v_add_u32 v{vD}, {4*s}, v{vT1}")
            e(f"v_xor_b32 v{vD}, v{vD}, v{vT0}")
            e(f"v_lshlrev_b32 v{vD}, 4, v{vD}")
            e(f"v_lshl_add_u32 v{vD}, v{vT0}, 8, v{vD}")
            e(f"v_add_u32 v{vKR+s}, s{sRING}, v{vD}")
        e(f"v_and_b32 v{vD}, 7, v{vT0}")
        e(f"v_mov_b32 v{vD+1}, 0xffff")
        e(f"v_mov_b32 v{vD+2}, 0xffff0000")
        for jj in range(4):
            e(f"v_mov_b32 v{vM+jj}, 0")
            e(f"v_cmp_eq_u32 vcc, {2*jj}, v{vD}")
            e(f"v_cndmask_b32 v{vM+jj}, v{vM+jj}, v{vD+1}, vcc")
            e(f"v_cmp_eq_u32 vcc, {2*jj+1}, v{vD}")
            e(f"v_cndmask_b32 v{vM+jj}, v{vM+jj}, v{vD+2}, vcc")
        e(f"s_mul_i32 s{sT0}, s{sWAVE}, 1152")
        e(f"s_add_u32 s{sT0}, s{sT0}, {L['PBUF']}")
        e(f"v_and_b32 v{vD}, 1, v{vT1}")
        e(f"v_mul_u32_u24 v{vD}, 576, v{vD}")
        e(f"v_lshrrev_b32 v{vD+1}, 1, v{vT1}")
        e(f"v_lshl_add_u32 v{vD+1}, v{vT0}, 1, v{vD+1}")
        e(f"v_lshl_add_u32 v{vD}, v{vD+1}, 2, v{vD}")
        e(f"v_add_u32 v{vPW}, s{sT0}, v{vD}")
        e(f"v_lshrrev_b32 v{vD}, 3, v{vT0}")
        e(f"v_lshl_add_u32 v{vD}, v{vD}, 2, v{vT1}")
        e(f"v_mul_u32_u24 v{vD}, 144, v{vD}")
        e(f"v_add_u32 v{vPR}, s{sT0}, v{vD}")

    def vreg_of(self, blk, t, pas):
        nret = (256 - self.cfg.NWORK) // 4
        if blk in ("A", "Q"):
            return f"a[{4*t}:{4*t+3}]"
        if t < nret:
            r = self.cfg.NWORK + 4 * t
            return f"v[{r}:{r+3}]"
        r = 4 * (t - nret)
        return f"a[{r}:{r+3}]"

    def k_desc(self, blk, n, slot):
        return dict(kind="K", blk=blk, n=n, slot=slot, tag=("K", blk, n), need=("slot", slot, blk, n), cnt=4, q=None)

    def split_k(self, ls):
        if not self.cfg.KSPLIT:
            return ls
        out = []
        for d in ls:
            if d["kind"] == "K":
                for q in range(4):
                    x = dict(d); x["q"] = q; x["cnt"] = 1
                    x["tag"] = d["tag"] if q == 3 else ("Kq", d["blk"], d["n"], q)
                    out.append(x)
            else:
                out.append(d)
        return out

    def v_desc(self, blk, t, need=None):
        return dict(kind="V", blk=blk, t=t, tag=("V", blk, t), need=need, cnt=1)

    def issue_desc(self, d, pas):
        cfg = self.cfg
        if d["kind"] == "K":
            tile = d["n"] + (0 if d["blk"] == "A" else 16)
            self.e(f"s_add_u32 m0, s{sRING}, {d['slot']*4096}")
            self.e(f"s_mov_b32 s{sKO}, {tile*4096}")
            pol = cfg.KPOL
            if d["blk"] == "A" and 8 <= d["n"] < 8 + cfg.KRET and pas == 1:
                pol = cfg.RETPOL
            if d["blk"] == "B" and d["n"] < cfg.KRETB and pas == 1:
                pol = cfg.RETPOL
            if pas == 2:
                pol = cfg.P2POL
            for t in (range(4) if d["q"] is None else [d["q"]]):
                self.vm(f"buffer_load_dwordx4 v{vKD+t}, s[{sK}:{sK+3}], s{sKO} offen offset:{t*1024} {pol} lds",
                        tag=d["tag"] if t == 3 else None)
        elif d["kind"] == "V":
            gt = d["t"] + (0 if d["blk"] == "A" else 64)
            base = (gt >> 2) * 4096
            if getattr(self, "_vo", None) != base:
                self.e(f"s_mov_b32 s{sVO}, {base}")
                self._vo = base
            pol = cfg.VPOL
            nret = (256 - cfg.NWORK) // 4
            if d["blk"] == "B" and d["t"] >= nret and d["t"] >= 64 - cfg.VRET and pas == 1:
                pol = cfg.RETPOL
            if pas == 2:
                pol = cfg.P2VPOL
            self.vm(f"buffer_load_dwordx4 {self.vreg_of(d['blk'], d['t'], pas)}, v{vVOFF}, s[{sV}:{sV+3}], s{sVO} offen offset:{(gt&3)*1024} {pol}",
                    tag=d["tag"])
        elif d["kind"] == "Q":
            t = d["t"]
            if t > 0:
                self.e(f"s_add_u32 s{sQO}, s{sQO}, 32768")
            self.vm(f"buffer_load_dwordx4 {self.vreg_of('Q', t, pas)}, v{vQF}, s[{sW}:{sW+3}], s{sQO} offen", tag=d["tag"])
        elif d["kind"] == "F":
            d["fn"]()

    def pump(self, pas, limit=None):
        n = 0
        while self.pending:
            d = self.pending[0]
            if d["need"] is not None and d["need"] not in self.ready:
                break
            if self.vm_outstanding() + d["cnt"] > self.cap:
                break
            if limit is not None and n + d["cnt"] > limit:
                break
            self.pending.pop(0)
            self.throttle(d)
            self.issue_desc(d, pas)
            n += d["cnt"]

    def force_issued(self, tag, pas):
        while tag not in self.vm_tags or self.vm_tags[tag] < 0:
            d = self.pending[0]
            assert d["need"] is None or d["need"] in self.ready, ("not ready", d, tag)
            if self.vm_outstanding() + d["cnt"] > self.cap:
                target = self.vm_n + d["cnt"] - self.cap
                self.e(f"s_waitcnt vmcnt({self.vm_n - target})")
                self.vm_done = max(self.vm_done, target)
            self.pending.pop(0)
            self.throttle(d)
            self.issue_desc(d, pas)

    def throttle(self, d):
        cfg = self.cfg
        if not cfg.THR or not self.thr_on or d["kind"] not in ("K", "V"):
            return
        n1 = max(cfg.CAPT1 - d["cnt"], 0)
        if self.vm_outstanding() <= n1 and (not cfg.T2 or self.vm_outstanding() <= max(cfg.CAPT2 - d["cnt"], 0)):
            return
        l = self.lab("Lthr")
        self.e(f"s_cmp_eq_u32 s{sLVL}, 0")
        self.e(f"s_cbranch_scc1 {l}")
        self.e(f"s_waitcnt vmcnt({n1})")
        if cfg.T2:
            n2 = max(cfg.CAPT2 - d["cnt"], 0)
            self.e(f"s_cmp_eq_u32 s{sLVL}, 1")
            self.e(f"s_cbranch_scc1 {l}")
            self.e(f"s_waitcnt vmcnt({n2})")
        self.label(l)

    def ck_plan(self, spec, phase):
        hooks = {}
        if self.cfg.THR == 2:
            self.thr_on = phase in (self.cfg.PART1 if spec is self.cfg.CK1 else self.cfg.PART2).split(",")
        if self.cfg.THR != 1:
            return hooks
        for item in spec.split(","):
            if not item.startswith(phase):
                continue
            a, b = item[2:].split(":")
            cid = self.nck; self.nck += 1
            reg = vT0 if phase[0] == "K" else vD
            hooks.setdefault(int(a), []).append(lambda cid=cid, reg=reg: self.ck_issue(cid, reg))
            hooks.setdefault(int(b), []).insert(0, lambda cid=cid, reg=reg: self.ck_use(cid, reg))
        return {k: (lambda fs=v: [f() for f in fs]) for k, v in hooks.items()}

    def ck_issue(self, cid, reg):
        e = self.e
        assert cid < 32
        l = self.lab("Lck")
        e(f"s_cmp_lg_u32 s{sWAVE}, 0")
        e(f"s_cbranch_scc1 {l}")
        e("s_mov_b64 exec, 1")
        e(f"v_mov_b32 v{vCK}, -1")
        self.vm(f"buffer_load_dword v{vCK}, off, s[{sCK}:{sCK+3}], 0 offset:{128 + 4*cid} sc1", cond=True)
        e(f"v_mov_b32 v{reg+1}, 1")
        self.vm(f"buffer_atomic_add v{reg+1}, off, s[{sCK}:{sCK+3}], 0 offset:{128 + 4*cid} sc1", cond=True)
        e("s_mov_b64 exec, -1")
        self.label(l)
        self.thr_on = True

    def ck_use(self, cid, reg):
        cfg, e = self.cfg, self.e
        l = self.lab("Lcu")
        e(f"s_cmp_lg_u32 s{sWAVE}, 0")
        e(f"s_cbranch_scc1 {l}")
        e(f"v_readfirstlane_b32 s{sRK}, v{vCK}")
        e(f"s_cmp_eq_u32 s{sRK}, -1")
        e(f"s_cbranch_scc1 {l}")
        e(f"s_cmp_lt_u32 s{sRK}, {cfg.T1}")
        e(f"s_cselect_b32 s{sLVL}, 1, 0")
        if cfg.T2:
            e(f"s_cmp_lt_u32 s{sRK}, {cfg.T2}")
            e(f"s_cselect_b32 s{sLVL}, 2, s{sLVL}")
        e(f"v_mov_b32 v{reg}, {self.L['LVL']}")
        e(f"v_mov_b32 v{reg+1}, s{sLVL}")
        e(f"ds_write_b32 v{reg}, v{reg+1}")
        self.label(l)

    def lvl_read(self, reg):
        if self.cfg.THR != 1 or not self.thr_on:
            return
        self.e(f"v_mov_b32 v{reg}, {self.L['LVL']}")
        self.ds(f"ds_read_b32 v{reg}, v{reg}")
        self.lvl_pending = reg

    def lvl_take(self):
        if self.lvl_pending is not None:
            self.e(f"v_readfirstlane_b32 s{sLVL}, v{self.lvl_pending}")
            self.lvl_pending = None

    def k_phase(self, tiles, pas, hooks=None):
        e = self.e

        def reads(i):
            blk, n, slot, resident, frees = tiles[i]
            if not resident:
                self.force_issued(("K", blk, n), pas)
                self.vm_wait(("K", blk, n))
            for s in range(4):
                self.ds(f"ds_read_b128 v[{vKF+4*s}:{vKF+4*s+3}], v{vKR+s} offset:{slot*4096}")

        def select(i):
            blk, n, slot, resident, frees = tiles[i]
            d = vD + 4 * (i & 1)
            e(f"s_lshl_b64 s[{sMK}:{sMK+1}], s[{sM0}:{sM0+1}], {n}")
            for r in range(4):
                e(f"v_cndmask_b32 v{vS+r}, v{vS+r}, v{d+r}, s[{sMK}:{sMK+1}]")

        reads(0)
        for i in range(len(tiles)):
            blk, n, slot, resident, frees = tiles[i]
            self.lg_wait_all()
            self.lvl_take()
            for tok in frees:
                self.ready.add(tok)
            d = vD + 4 * (i & 1)
            for s in range(4):
                c = "0" if s == 0 else f"v[{d}:{d+3}]"
                e(f"v_mfma_f32_16x16x32_bf16 v[{d}:{d+3}], v[{vKF+4*s}:{vKF+4*s+3}], v[{vQF+4*s}:{vQF+4*s+3}], {c}")
            if hooks and i in hooks:
                hooks[i]()
            self.pump(pas)
            if i + 1 < len(tiles):
                if (i & 1) == 0:
                    self.lvl_read(vT1)
                reads(i + 1)
            if i > 0:
                select(i - 1)
        select(len(tiles) - 1)

    def softmax(self, first):
        e = self.e
        a, b = vT0, vT1
        e(f"v_max3_f32 v{a}, v{vS}, v{vS+1}, v{vS+2}")
        e(f"v_max_f32 v{a}, v{a}, v{vS+3}")
        self.bfly_row("v_max_f32", [a])
        self.swap_reduce("v_max_f32", [a], [b], 16)
        self.swap_reduce("v_max_f32", [a], [b], 32)
        if first:
            e(f"v_mov_b32 v{vMR}, v{a}")
        else:
            e(f"v_max_f32 v{a}, v{a}, v{vMR}")
            e(f"v_sub_f32 v{b}, v{vMR}, v{a}")
            e(f"v_mul_f32 v{b}, s{sCS}, v{b}")
            e(f"v_exp_f32 v{b}, v{b}")
            e(f"v_mov_b32 v{vMR}, v{a}")
            for r in range(8):
                e(f"v_mul_f32 v{vO+r}, v{b}, v{vO+r}")
            e(f"v_mul_f32 v{vLR}, v{b}, v{vLR}")
        e(f"v_mul_f32 v{a}, s{sCS}, v{vMR}")
        for r in range(4):
            e(f"v_fma_f32 v{vS+r}, v{vS+r}, s{sCS}, -v{a}")
        for r in range(4):
            e(f"v_exp_f32 v{vS+r}, v{vS+r}")
        for r in range(4):
            e(f"v_cvt_pk_bf16_f32 v{vD+r}, v{vS+r}, v{vS+r}")
        for r in range(4):
            self.ds(f"ds_write_b32 v{vPW}, v{vD+r} offset:{r*144}")
        e(f"v_add_f32 v{vS}, v{vS}, v{vS+1}")
        e(f"v_add_f32 v{vS+2}, v{vS+2}, v{vS+3}")
        e(f"v_add_f32 v{vS}, v{vS}, v{vS+2}")
        if first:
            e(f"v_mov_b32 v{vLR}, v{vS}")
        else:
            e(f"v_add_f32 v{vLR}, v{vLR}, v{vS}")
        self.lg_wait_all()

    def v_phase(self, blk, pas, first, order, resident, frees, hooks):
        e = self.e
        groups = [order[i:i + 4] for i in range(0, len(order), 4)]
        for g in groups:
            assert g == list(range(g[0], g[0] + 4)) and g[0] % 4 == 0

        def pread(gi):
            p = vP0 if (gi & 1) == 0 else vP1
            self.ds(f"ds_read_b128 v[{p}:{p+3}], v{vPR} offset:{groups[gi][0]*4}", tag=("P", gi))

        def bbuild(pos, half):
            gi, k = pos // 4, pos % 4
            p = (vP0 if (gi & 1) == 0 else vP1) + k
            b = vB0 if (pos & 1) == 0 else vB1
            for jj in (2 * half, 2 * half + 1):
                e(f"v_and_b32 v{b+jj}, v{p}, v{vM+jj}")

        pread(0)
        self.lg_wait(("P", 0))
        if len(groups) > 1:
            pread(1)
        bbuild(0, 0); bbuild(0, 1)
        for pos, u in enumerate(order):
            if pos in hooks:
                hooks[pos]()
            b = vB0 if (pos & 1) == 0 else vB1
            nxt = pos + 1 < len(order)
            if nxt and (pos + 1) % 4 == 0:
                self.lg_wait(("P", (pos + 1) // 4))
                self.lvl_take()
            for half in range(2):
                t = 2 * u + half
                if not resident(t):
                    self.force_issued(("V", blk, t), pas)
                    self.vm_wait(("V", blk, t))
                if nxt:
                    bbuild(pos + 1, half)
                o = vO + 4 * half
                c = "0" if (first and pos == 0) else f"v[{o}:{o+3}]"
                e(f"v_mfma_f32_16x16x32_bf16 v[{o}:{o+3}], {self.vreg_of(blk, t, pas)}, v[{b}:{b+3}], {c}")
            if nxt and (pos + 1) % 4 == 0 and (pos + 1) // 4 + 1 < len(groups):
                if blk != "Q":
                    self.lvl_read(vD + 2)
                pread((pos + 1) // 4 + 1)
            for tok in frees.get(u, []):
                self.ready.add(tok)
            self.pump(pas)

    def w_dma(self, vtmp, cond=False, tag=None):
        e = self.e
        e(f"v_lshrrev_b32 v{vtmp}, 1, v{vLANE}")
        e(f"v_mul_lo_u32 v{vtmp}, v{vtmp}, s{sT1}")
        e(f"v_and_b32 v{vtmp+1}, 1, v{vLANE}")
        e(f"v_lshl_add_u32 v{vtmp}, v{vtmp+1}, 4, v{vtmp}")
        e(f"s_lshl_b32 s{sT3}, s{sT1}, 5")
        for i in range(4):
            e(f"s_add_u32 m0, s{sWB}, {i*1024}")
            if i > 0:
                e(f"s_add_u32 s{sT2}, s{sT2}, s{sT3}")
            self.vm(f"buffer_load_dwordx4 v{vtmp}, s[{sW}:{sW+3}], s{sT2} offen lds", tag=tag if i == 3 else None, cond=cond)

    def w_frags(self, dst, vtmp):
        e = self.e
        e(f"v_lshrrev_b32 v{vtmp}, 4, v{vLANE}")
        e(f"v_lshlrev_b32 v{vtmp}, 3, v{vtmp}")
        e(f"v_bfe_u32 v{vtmp+1}, v{vLANE}, 2, 2")
        e(f"v_add_u32 v{vtmp}, v{vtmp}, v{vtmp+1}")
        e(f"v_lshlrev_b32 v{vtmp}, 5, v{vtmp}")
        e(f"v_and_b32 v{vtmp+1}, 3, v{vLANE}")
        e(f"v_lshl_add_u32 v{vtmp}, v{vtmp+1}, 3, v{vtmp}")
        e(f"v_add_u32 v{vtmp}, s{sWB}, v{vtmp}")
        for s in range(4):
            self.ds(f"ds_read_b64_tr_b16 v[{dst+4*s}:{dst+4*s+1}], v{vtmp} offset:{s*1024}")
            self.ds(f"ds_read_b64_tr_b16 v[{dst+4*s+2}:{dst+4*s+3}], v{vtmp} offset:{s*1024+128}")

    def set_wo(self):
        e = self.e
        self.srd(sW, sWO, 4096 * 512 * 2)
        e(f"s_mov_b32 s{sT1}, 1024")
        e(f"s_lshl_b32 s{sT2}, s{sH}, 17")
        e(f"s_lshl_b32 s{sT3}, s{sJ}, 7")
        e(f"s_add_u32 s{sT2}, s{sT2}, s{sT3}")
        e(f"s_lshl_b32 s{sT3}, s{sWAVE}, 5")
        e(f"s_add_u32 s{sT2}, s{sT2}, s{sT3}")

    def set_wq(self):
        e = self.e
        self.srd(sW, sWQ, 512 * 4096 * 2)
        e(f"s_mov_b32 s{sT1}, 8192")
        e(f"s_lshr_b32 s{sT2}, s{sJ}, 1")
        e(f"s_lshl_b32 s{sT2}, s{sT2}, 20")
        e(f"s_lshl_b32 s{sT3}, s{sH}, 8")
        e(f"s_add_u32 s{sT2}, s{sT2}, s{sT3}")
        e(f"s_and_b32 s{sT3}, s{sJ}, 1")
        e(f"s_lshl_b32 s{sT3}, s{sT3}, 7")
        e(f"s_add_u32 s{sT2}, s{sT2}, s{sT3}")
        e(f"s_lshl_b32 s{sT3}, s{sWAVE}, 5")
        e(f"s_add_u32 s{sT2}, s{sT2}, s{sT3}")

    def set_w1(self):
        e = self.e
        self.srd(sW, sW1, 512 * 1792 * 2)
        e(f"s_mov_b32 s{sT1}, 3584")
        e(f"s_mul_i32 s{sT2}, s{sWAVE}, {128*3584}")
        e(f"s_lshl_b32 s{sT3}, s2, 5")
        e(f"s_add_u32 s{sT2}, s{sT2}, s{sT3}")

    def stage1_dma(self):
        self.set_wo()
        self.w_dma(vT0, tag="wo")

    def stage2_dma(self):
        lf, lj = self.lab("Ls2"), self.lab("Ls2j")
        self.e(f"s_cmp_lt_u32 s2, {NF}")
        self.e(f"s_cbranch_scc1 {lf}")
        self.set_wq()
        self.e(f"s_branch {lj}")
        self.label(lf)
        self.set_w1()
        self.label(lj)
        self.w_dma(vT0, tag="w2nd")

    def last_block_hooks(self, pas):
        def h0():
            if pas == 1 and not self.cfg.NOARR:
                self.arrival_load()
            L = self.L
            self.vm_wait("wo")
            self.w_frags(vQF, vT0)
            self.bfly_row("v_add_f32", [vLR])
            self.swap_reduce("v_add_f32", [vLR], [vT0], 16)
            self.swap_reduce("v_add_f32", [vLR], [vT0], 32)
            self.e(f"s_lshl_b32 s{sT0}, s{sWAVE}, 3")
            self.e(f"s_add_u32 s{sT0}, s{sT0}, {L['ML']}")
            self.e(f"v_mov_b32 v{vT0}, s{sT0}")
            self.ds(f"ds_write_b64 v{vT0}, v[{vMR}:{vMR+1}]")
            self.lg_wait_all()
            self.stage2_dma()
        return h0

    def pass1(self):
        cfg = self.cfg
        NR = cfg.NR
        assert NR == 8
        pas = 1
        self._vo = None
        kB = [("B", n, n % NR, False, [("slot", n % NR, "B", n + 8)] if n < 8 else [("slot", n % NR, "A", n)]) for n in range(16)]
        self.k_phase(kB, pas, self.ck_plan(cfg.CK1, "KB"))
        self.stamp(6)
        self.softmax(first=True)
        self.v_phase("B", pas, True, list(range(32)), lambda t: False,
                     {31: [("tmpfree",)]}, self.ck_plan(cfg.CK1, "VB"))
        self.stamp(7)
        kA = [("A", n, n % NR, False, [("slot", n % NR, "A", n - 8)]) for n in range(8, 16)] + \
             [("A", n, n, False, []) for n in range(8)]
        self.k_phase(kA, pas, self.ck_plan(cfg.CK1, "KA"))
        self.stamp(8)
        self.softmax(first=False)
        if self.capend: self.cap = self.capend
        hk = self.ck_plan(cfg.CK1, "VA")
        h0, h1 = self.last_block_hooks(1), hk.get(0)
        hk[0] = (lambda: (h0(), h1())) if h1 else h0
        self.v_phase("A", pas, False, list(range(32)), lambda t: False, {}, hk)
        assert not self.pending, self.pending
        if not cfg.NOARR:
            self.arrival_check()

    def pass1_list(self):
        cfg = self.cfg
        nret = (256 - cfg.NWORK) // 4
        wq = [dict(kind="Q", t=t, tag=("V", "Q", t), need=None, cnt=1) for t in range(32)]
        k0 = [self.k_desc("B", n, n) for n in range(8)]
        for d in k0:
            d["need"] = None
        ls, wq = wq[:cfg.QF], wq[cfg.QF:]
        while wq:
            if k0:
                ls.append(k0.pop(0))
            ls += wq[:cfg.QA]
            wq = wq[cfg.QA:]
        ls += k0
        vb = lambda t: self.v_desc("B", t, need=("qdone",) if t >= nret else None)
        ls += [vb(t) for t in range(cfg.INIT_V)]
        ls += [self.k_desc("B", n, n % 8) for n in range(8, 16)]
        ls += [vb(t) for t in range(cfg.INIT_V, 64)]
        ls += [self.k_desc("A", n, n % 8) for n in range(8, 16)]
        ls += [self.k_desc("A", n, n % 8) for n in range(0, 8)]
        ls += [dict(kind="F", fn=self.stage1_dma, need=None, cnt=4, tag="wo")]
        ntmp = 64 - nret
        ls += [self.v_desc("A", t, need=("tmpfree",) if t < ntmp else None) for t in range(64)]
        return self.split_k(ls)

    def pass2(self):
        cfg = self.cfg
        pas = 2
        nret = (256 - cfg.NWORK) // 4
        self._vo = None
        for k in list(self.vm_tags):
            if isinstance(k, tuple) and k[0] in ("K", "V"):
                del self.vm_tags[k]
        self.vm_tags.pop("wo", None); self.vm_tags.pop("w2nd", None)
        self.ready = set()
        ls = []
        ls += [self.k_desc("A", n, n % 8) for n in range(8, 16)]
        ls += [self.k_desc("B", n, n % 8) for n in range(0, 16)]
        ls += [dict(kind="F", fn=self.stage1_dma, need=None, cnt=4, tag="wo")]
        ls += [self.v_desc("B", t, need=("afree",)) for t in range(nret, 64)]
        self.pending = self.split_k(ls)
        kA = [("A", n, n, True, [("slot", n, "A", n + 8)]) for n in range(8)] + \
             [("A", n, n % 8, False, [("slot", n % 8, "B", n - 8)]) for n in range(8, 16)]
        self.thr_on = False
        if cfg.THR == 1:
            self.e(f"s_mov_b32 s{sLVL}, 0")
        self.k_phase(kA, pas, self.ck_plan(cfg.CK2, "KA"))
        self.stamp(38)
        self.softmax(first=True)
        self.v_phase("A", pas, True, list(range(32)), lambda t: True, {31: [("afree",)]}, self.ck_plan(cfg.CK2, "VA"))
        self.stamp(39)
        kB = [("B", n, n % 8, False, [("slot", n % 8, "B", n + 8)] if n < 8 else []) for n in range(16)]
        if self.capend: self.cap = self.capend
        self.k_phase(kB, pas, self.ck_plan(cfg.CK2, "KB"))
        self.stamp(40)
        self.softmax(first=False)
        hk = self.ck_plan(cfg.CK2, "VB")
        assert 0 not in hk
        hk[0] = self.last_block_hooks(2)
        self.v_phase("B", pas, False, list(range(32)), lambda t: t < nret, {}, hk)
        assert not self.pending, self.pending

    def prologue(self):
        cfg, L, e = self.cfg, self.L, self.e
        e("s_cmp_ge_u32 s2, 256")
        e("s_cbranch_scc1 L_exit")
        self.stamp(0)
        e("s_load_dwordx4 s[4:7], s[0:1], 8")
        e(f"s_load_dwordx2 s[{sX}:{sX+1}], s[0:1], 0")
        e(f"s_load_dwordx4 s[{sWQ}:{sWQ+3}], s[0:1], 24")
        e(f"s_load_dwordx2 s[{sT4}:{sT4+1}], s[0:1], 96")
        e(f"s_load_dwordx2 s[{sW1}:{sW1+1}], s[0:1], 48")
        e(f"s_load_dwordx2 s[{sB1}:{sB1+1}], s[0:1], 56")
        e(f"s_load_dwordx2 s[{sW2}:{sW2+1}], s[0:1], 64")
        e(f"s_load_dwordx2 s[{sB2}:{sB2+1}], s[0:1], 72")
        e(f"s_load_dwordx4 s[{sOUT}:{sOUT+3}], s[0:1], 80")
        e(f"v_lshrrev_b32 v{vT0}, 6, v0")
        e(f"v_and_b32 v{vLANE}, 63, v0")
        e(f"v_readfirstlane_b32 s{sWAVE}, v{vT0}")
        if cfg.XMAP:
            e(f"s_and_b32 s{sH}, s2, 7")
            e(f"s_lshl_b32 s{sH}, s{sH}, 2")
            e(f"s_bfe_u32 s{sJ}, s2, 0x20003")
            e(f"s_add_u32 s{sH}, s{sH}, s{sJ}")
            e(f"s_lshr_b32 s{sJ}, s2, 5")
        else:
            e(f"s_lshr_b32 s{sH}, s2, 3")
            e(f"s_and_b32 s{sJ}, s2, 7")
        e(f"s_lshr_b32 s{sB}, s{sJ}, 2")
        e(f"s_and_b32 s{sC}, s{sJ}, 3")
        e(f"s_lshl_b32 s{sBLK}, s{sH}, 3")
        e(f"s_add_u32 s{sBLK}, s{sBLK}, s{sJ}")
        e(f"s_lshl_b32 s{sBLK}, s{sBLK}, 14")
        e(f"s_lshl_b32 s{sBLKW}, s2, 14")
        e(f"s_mov_b32 s{sL}, 0")
        if cfg.CAPO:
            e(f"s_getreg_b32 s{sPAR}, hwreg(HW_REG_XCC_ID, 0, 1)")
        e(f"s_mul_i32 s{sRING}, s{sWAVE}, {cfg.NR*4096}")
        e(f"s_lshl_b32 s{sWB}, s{sWAVE}, 12")
        e(f"s_add_u32 s{sWB}, s{sWB}, {L['W']}")
        e(f"s_mov_b32 s{sM0}, 0x00010001"); e(f"s_mov_b32 s{sM0+1}, 0x00010001")
        e(f"s_mov_b32 s{sLT8}, 0x00ff00ff"); e(f"s_mov_b32 s{sLT8+1}, 0x00ff00ff")
        e(f"s_mov_b32 s{sN2}, 0x00030003"); e(f"s_mov_b32 s{sN2+1}, 0x00030003")
        e(f"s_mov_b32 s{sN3}, 0x00070007"); e(f"s_mov_b32 s{sN3+1}, 0x00070007")
        e(f"s_mov_b32 s{sCS}, {hex(f2u(SCALE))}")
        e(f"s_lshl_b32 s{sT0}, s{sB}, 5")
        e(f"s_add_u32 s{sT0}, s{sT0}, s{sH}")
        e(f"s_lshl_b32 s{sT0}, s{sT0}, 21")
        e(f"s_lshl_b32 s{sT1}, s{sC}, 19")
        e(f"s_add_u32 s{sT0}, s{sT0}, s{sT1}")
        e(f"s_lshl_b32 s{sT1}, s{sWAVE}, 17")
        e(f"s_add_u32 s{sT0}, s{sT0}, s{sT1}")
        e(f"v_lshlrev_b32 v{vVOFF}, 4, v{vLANE}")
        e(f"v_lshrrev_b32 v{vT1}, 4, v{vLANE}")
        e(f"v_lshlrev_b32 v{vT1}, 13, v{vT1}")
        e(f"v_and_b32 v{vT0}, 15, v{vLANE}")
        e(f"v_lshl_add_u32 v{vQF}, v{vT0}, 4, v{vT1}")
        e(f"s_lshl_b32 s{sQO}, s{sWAVE}, 20")
        e(f"s_lshl_b32 s{sT3}, s{sH}, 8")
        e(f"s_add_u32 s{sQO}, s{sQO}, s{sT3}")
        e("s_waitcnt lgkmcnt(0)")
        e(f"s_add_u32 s{sV}, s6, s{sT0}")
        e(f"s_addc_u32 s{sV+1}, s7, 0")
        e(f"s_and_b32 s{sV+1}, s{sV+1}, 0xffff")
        e(f"s_mov_b32 s{sV+2}, 131072")
        e(f"s_mov_b32 s{sV+3}, 0x20000")
        self.srd(sK, 4, 131072, add=sT0)
        self.srd(sWS, sT4, 256 * BLK + (1 << 20))
        if cfg.THR == 1:
            self.srd(sCK, sDBG, 256)
            e(f"s_mov_b32 s{sLVL}, 0")
        if cfg.THR == 2:
            e(f"s_getreg_b32 s{sLVL}, hwreg(HW_REG_XCC_ID, 0, 1)")
            e(f"s_xor_b32 s{sLVL}, s{sLVL}, 1")
        self.stamp(28)
        self.c("clear own hand-off slots")
        for r in range(4):
            e(f"v_mov_b32 v{vD+r}, -1")
        e(f"s_cmp_eq_u32 s{sWAVE}, 3")
        e(f"s_cselect_b32 s{sT1}, s{sBLKW}, s{sBLK}")
        e(f"s_lshl_b32 s{sT0}, s{sWAVE}, 10")
        e(f"s_add_u32 s{sT1}, s{sT0}, s{sT1}")
        self.vm(f"buffer_store_dwordx4 v[{vD}:{vD+3}], v{vVOFF}, s[{sWS}:{sWS+3}], s{sT1} offen sc1")
        e(f"s_add_u32 s{sT1}, s{sT1}, {LOFF}")
        self.vm(f"buffer_store_dwordx4 v[{vD}:{vD+3}], v{vVOFF}, s[{sWS}:{sWS+3}], s{sT1} offen sc1")
        lnf = self.lab("Lnf")
        e(f"s_cmp_lt_u32 s2, {NF}")
        e(f"s_cbranch_scc0 {lnf}")
        e(f"s_add_u32 s{sT0}, s{sT0}, s{sBLKW}")
        e(f"s_add_u32 s{sT0}, s{sT0}, {FP}")
        e(f"s_add_u32 s{sT1}, s{sT0}, {LOFF}")
        self.vm(f"buffer_store_dwordx4 v[{vD}:{vD+3}], v{vVOFF}, s[{sWS}:{sWS+3}], s{sT0} offen sc1", cond=True)
        self.vm(f"buffer_store_dwordx4 v[{vD}:{vD+3}], v{vVOFF}, s[{sWS}:{sWS+3}], s{sT1} offen sc1", cond=True)
        self.label(lnf)
        self.srd(sW, sX, 2048)
        lnr = self.lab("Lnr")
        e(f"s_cmp_ge_u32 s2, {R0}")
        e(f"s_cbranch_scc0 {lnr}")
        e(f"s_sub_u32 s{sT0}, s2, {R0}")
        e(f"s_lshl_b32 s{sT0}, s{sT0}, 6")
        e(f"v_and_b32 v{vT0}, 7, v{vLANE}")
        e(f"v_lshlrev_b32 v{vT0}, 3, v{vT0}")
        self.vm(f"buffer_load_dwordx2 v[{vO}:{vO+1}], v{vT0}, s[{sW}:{sW+3}], s{sT0} offen", cond=True)
        self.label(lnr)
        e(f"s_lshl_b32 s{sT0}, s{sB}, 10")
        self.vm(f"buffer_load_dwordx4 v[{vS}:{vS+3}], v{vVOFF}, s[{sW}:{sW+3}], s{sT0} offen", tag="xrow")
        self.srd(sW, sWQ, 512 * 4096 * 2)
        self.pending = self.pass1_list()
        self.cap = cfg.CAP0
        self._vo = None
        self.stamp(29)
        self.pump(1, limit=cfg.QF)
        self.stamp(30)
        self.consts()
        self.pump(1)
        self.stamp(1)
        e(f"v_and_b32 v{vD}, 31, v{vLANE}")
        e(f"v_lshlrev_b32 v{vD}, 3, v{vD}")
        e(f"v_add_u32 v{vD}, {L['XQ']+512}, v{vD}")
        e(f"v_mov_b32 v{vD+2}, 0x3f803f80"); e(f"v_mov_b32 v{vD+3}, 0x3f803f80")
        self.ds(f"ds_write_b64 v{vD}, v[{vD+2}:{vD+3}]")
        self.vm_wait("xrow")
        self.stamp(3)
        x = vD
        for r in range(4):
            e(f"v_lshlrev_b32 v{x+2*r}, 16, v{vS+r}")
            e(f"v_and_b32 v{x+2*r+1}, 0xffff0000, v{vS+r}")
        e(f"v_add_f32 v{vMR}, v{x}, v{x+1}")
        e(f"v_mul_f32 v{vLR}, v{x}, v{x}")
        e(f"v_fmac_f32 v{vLR}, v{x+1}, v{x+1}")
        for r in range(2, 8):
            e(f"v_add_f32 v{vMR}, v{vMR}, v{x+r}")
            e(f"v_fmac_f32 v{vLR}, v{x+r}, v{x+r}")
        lnr2 = self.lab("Lnr2")
        e(f"s_cmp_ge_u32 s2, {R0}")
        e(f"s_cbranch_scc0 {lnr2}")
        e(f"v_lshlrev_b32 v{vO+4}, 16, v{vO}")
        e(f"v_and_b32 v{vO+5}, 0xffff0000, v{vO}")
        e(f"v_lshlrev_b32 v{vO+6}, 16, v{vO+1}")
        e(f"v_and_b32 v{vO+7}, 0xffff0000, v{vO+1}")
        e(f"v_and_b32 v{vT0}, 7, v{vLANE}")
        e(f"v_lshlrev_b32 v{vT0}, 4, v{vT0}")
        e(f"v_add_u32 v{vT0}, {L['XRES']}, v{vT0}")
        e(f"ds_write_b128 v{vT0}, v[{vO+4}:{vO+7}]")
        self.label(lnr2)
        self.bfly_row("v_add_f32", [vMR, vLR])
        self.swap_reduce("v_add_f32", [vMR, vLR], [vT0, vT1], 16)
        self.swap_reduce("v_add_f32", [vMR, vLR], [vT0, vT1], 32)
        self.mean_rstd(vMR, vLR, None)
        for r in range(8):
            e(f"v_sub_f32 v{x+r}, v{x+r}, v{vMR}")
        for r in range(8):
            e(f"v_mul_f32 v{x+r}, v{vLR}, v{x+r}")
        for r in range(8):
            e(f"v_cvt_pk_bf16_f32 v{x+r}, v{x+r}, v{x+r}")
        e(f"s_mul_i32 s{sT0}, s{sWAVE}, 1152")
        e(f"s_add_u32 s{sT0}, s{sT0}, {L['PBUF']}")
        e(f"v_and_b32 v{vT0}, 15, v{vLANE}")
        e(f"v_lshlrev_b32 v{vT0}, 2, v{vT0}")
        e(f"v_add_u32 v{vT0}, s{sT0}, v{vT0}")
        e(f"s_lshl_b32 s{sT0}, s{sWAVE}, 4")
        e(f"s_mov_b64 s[{sMK}:{sMK+1}], 0xffff")
        e(f"s_lshl_b64 s[{sMK}:{sMK+1}], s[{sMK}:{sMK+1}], s{sT0}")
        e(f"s_mov_b64 exec, s[{sMK}:{sMK+1}]")
        for r in range(8):
            self.ds(f"ds_write_b32 v{vT0}, v{x+r} offset:{r*144}")
        e("s_mov_b64 exec, -1")
        self.lg_wait_all()
        self.stamp(4)
        qh = {1: lambda: self.stamp(24), 4: lambda: self.stamp(25), 8: lambda: self.stamp(26), 12: lambda: self.stamp(27)} if cfg.PROF else {}
        self.v_phase("Q", 1, True, list(range(16)), lambda t: False, {15: [("qdone",)]}, qh)
        self.cap = cfg.CAP
        self.stamp(2)
        t = vS
        e(f"v_and_b32 v{vT0}, 15, v{vLANE}")
        e(f"v_lshrrev_b32 v{vT1}, 3, v{vT0}")
        e(f"s_lshl_b32 s{sT0}, s{sWAVE}, 1")
        e(f"v_add_u32 v{vT1}, s{sT0}, v{vT1}")
        e(f"v_lshlrev_b32 v{vT1}, 9, v{vT1}")
        e(f"v_and_b32 v{vT0}, 7, v{vT0}")
        e(f"v_lshl_add_u32 v{vT1}, v{vT0}, 2, v{vT1}")
        e(f"v_lshrrev_b32 v{vT0}, 4, v{vLANE}")
        e(f"v_lshl_add_u32 v{vT1}, v{vT0}, 7, v{vT1}")
        e(f"v_add_u32 v{vT1}, {L['RED']}, v{vT1}")
        for r in range(4):
            e(f"v_cndmask_b32 v{t+r}, v{vO+4+r}, v{vO+r}, s[{sLT8}:{sLT8+1}]")
        for r in range(4):
            e(f"ds_write_b32 v{vT1}, v{t+r} offset:{r*32}")
        e(f"s_and_b32 s{sT0}, s{sWAVE}, 1")
        e(f"s_lshl_b32 s{sT0}, s{sT0}, 8")
        e(f"v_lshlrev_b32 v{vT0}, 2, v{vLANE}")
        e(f"v_add_u32 v{vT0}, s{sT0}, v{vT0}")
        e(f"v_lshrrev_b32 v{vT1}, 1, v{vT0}")
        e(f"v_add_u32 v{vT1}, {L['QBUF']}, v{vT1}")
        e(f"v_add_u32 v{vT0}, {L['RED']}, v{vT0}")
        e("s_waitcnt lgkmcnt(0)")
        e("s_barrier")
        t = vD
        for p in range(8):
            e(f"ds_read_b32 v{t+p}, v{vT0} offset:{p*512}")
        la = self.lab("Larr")
        e(f"s_cmp_lg_u32 s{sWAVE}, 0")
        e(f"s_cbranch_scc1 {la}")
        if cfg.NOARR:
            e(f"s_branch {la}")
        if cfg.THR == 1:
            e(f"v_mov_b32 v{vS}, {L['LVL']}")
            e(f"v_mov_b32 v{vS+1}, 0")
            e(f"ds_write_b32 v{vS}, v{vS+1}")
        if True:
            self.srd(sW, sDBG, 256)
            e(f"s_lshl_b32 s{sT1}, s{sH}, 2")
            e(f"v_mov_b32 v{vS}, s{sT1}")
            if cfg.LOC:
                e(f"s_getreg_b32 s{sT2}, hwreg(HW_REG_XCC_ID, 0, 4)")
                e(f"s_mul_i32 s{sT3}, s{sT2}, s{sT2}")
                e(f"s_lshl_b32 s{sT3}, s{sT3}, 16")
                e(f"s_lshl_b32 s{sT2}, s{sT2}, 8")
                e(f"s_add_u32 s{sT2}, s{sT2}, s{sT3}")
                e(f"s_add_u32 s{sT2}, s{sT2}, 1")
                e(f"v_mov_b32 v{vS+1}, s{sT2}")
                e(f"s_lshl_b32 s{sLOC}, s{sT2}, 3")
            else:
                e(f"v_mov_b32 v{vS+1}, 1")
            e("s_mov_b64 exec, 1")
            self.vm(f"buffer_atomic_add v{vS+1}, v{vS}, s[{sW}:{sW+3}], 0 offen sc1", cond=True)
            e("s_mov_b64 exec, -1")
        self.label(la)
        e("s_waitcnt lgkmcnt(0)")
        for p in range(0, 8, 2):
            e(f"v_add_f32 v{t+p}, v{t+p}, v{t+p+1}")
        e(f"v_add_f32 v{t}, v{t}, v{t+2}")
        e(f"v_add_f32 v{t+4}, v{t+4}, v{t+6}")
        e(f"v_add_f32 v{t}, v{t}, v{t+4}")
        e(f"v_cvt_pk_bf16_f32 v{t}, v{t}, v{t}")
        e(f"ds_write_b16 v{vT1}, v{t}")
        e(f"v_and_b32 v{vT0}, 48, v{vLANE}")
        e(f"v_add_u32 v{vT0}, {L['QBUF']}, v{vT0}")
        e("s_waitcnt lgkmcnt(0)")
        e("s_barrier")
        for s in range(4):
            e(f"ds_read_b128 v[{vQF+4*s}:{vQF+4*s+3}], v{vT0} offset:{s*64}")
        e("s_waitcnt lgkmcnt(0)")
        self.stamp(5)

    def arrival_load(self):
        e = self.e
        l = self.lab("Lal")
        e(f"s_cmp_lg_u32 s{sWAVE}, 0")
        e(f"s_cbranch_scc1 {l}")
        self.srd(sW, sDBG, 256)
        if True:
            e(f"v_and_b32 v{vS+1}, 31, v{vLANE}")
            e(f"v_lshlrev_b32 v{vS+1}, 2, v{vS+1}")
        self.vm(f"buffer_load_dword v{vS}, v{vS+1}, s[{sW}:{sW+3}], 0 offen sc1", cond=True)
        self.label(l)

    def arrival_check(self):
        e = self.e
        l = self.lab("Lac")
        e(f"s_cmp_lg_u32 s{sWAVE}, 0")
        e(f"s_cbranch_scc1 {l}")
        e("s_waitcnt vmcnt(0)")

        def missing():
            if False:
                e(f"v_subrev_u32 v{vS+2}, 0x01010101, v{vS}")
                e(f"v_not_b32 v{vS+3}, v{vS}")
                e(f"v_and_b32 v{vS+2}, v{vS+2}, v{vS+3}")
                e(f"v_and_b32 v{vS+2}, 0x80808080, v{vS+2}")
                e(f"v_cmp_ne_u32 vcc, 0, v{vS+2}")
            elif self.cfg.LOC:
                e(f"v_and_b32 v{vS+2}, 0xff, v{vS}")
                e(f"v_cmp_gt_u32 vcc, 8, v{vS+2}")
            else:
                e(f"v_cmp_gt_u32 vcc, 8, v{vS}")
        missing()
        l2 = self.lab("Lac2") if self.cfg.LOC else l
        e(f"s_cbranch_vccz {l2}")
        self.srd(sW, sDBG, 256)
        lp = self.poll_begin()
        e(f"buffer_load_dword v{vS}, v{vS+1}, s[{sW}:{sW+3}], 0 offen sc1")
        e("s_waitcnt vmcnt(0)")
        missing()
        self.poll_end(lp)
        if self.cfg.LOC:
            self.label(l2)
            e(f"v_readlane_b32 s{sT0}, v{vS}, s{sH}")
            e(f"s_cmp_eq_u32 s{sT0}, s{sLOC}")
            e(f"s_cselect_b32 s{sT0}, 1, 0")
            e(f"v_mov_b32 v{vS+2}, {self.L['LOC']}")
            e(f"v_mov_b32 v{vS+3}, s{sT0}")
            e(f"ds_write_b32 v{vS+2}, v{vS+3}")
        self.label(l)

    def loc_store(self, *ins):
        e = self.e
        if not self.cfg.LOC:
            for i in ins:
                e(i + " sc1")
            return
        lg, lj = self.lab("Lsg"), self.lab("Lsj")
        e(f"s_cmp_eq_u32 s{sLOC}, 0")
        e(f"s_cbranch_scc1 {lg}")
        for i in ins:
            e(i)
        e(f"s_branch {lj}")
        self.label(lg)
        for i in ins:
            e(i + " sc1")
        self.label(lj)

    def stats_partial(self, x):
        e = self.e
        e(f"v_add_f32 v{vMR}, v{x}, v{x+1}")
        e(f"v_mul_f32 v{vLR}, v{x}, v{x}")
        e(f"v_add_f32 v{vMR}, v{vMR}, v{x+2}")
        e(f"v_fmac_f32 v{vLR}, v{x+1}, v{x+1}")
        e(f"v_add_f32 v{vMR}, v{vMR}, v{x+3}")
        e(f"v_fmac_f32 v{vLR}, v{x+2}, v{x+2}")
        e(f"v_fmac_f32 v{vLR}, v{x+3}, v{x+3}")
        self.bfly_row("v_add_f32", [vMR, vLR])
        self.swap_reduce("v_add_f32", [vMR, vLR], [vT0, vT1], 16)

    def qe(self):
        cfg, L, e = self.cfg, self.L, self.e
        self.label("L_QE")
        e("s_barrier")
        self.stamp(34)
        e(f"v_and_b32 v{vT0}, 15, v{vLANE}")
        e(f"v_min_u32 v{vT1}, 2, v{vT0}")
        e(f"v_lshlrev_b32 v{vT1}, 8, v{vT1}")
        e(f"v_and_b32 v{vO}, 48, v{vLANE}")
        e(f"v_add_u32 v{vT1}, v{vT1}, v{vO}")
        e(f"v_add_u32 v{vT1}, {L['XQ']}, v{vT1}")
        e(f"v_lshlrev_b32 v{vT0}, 8, v{vT0}")
        e(f"v_add_u32 v{vT0}, v{vT0}, v{vO}")
        for s in range(4):
            e(f"ds_read_b128 v[{vD+4*s}:{vD+4*s+3}], v{vT1} offset:{s*64}")
        e(f"s_lshl_b32 s{sT0}, s{sWAVE}, 6")
        e(f"s_add_u32 s{sT0}, s{sT0}, s{sBLK}")
        e(f"s_add_u32 s{sT0}, s{sT0}, s{sL}")
        e("s_waitcnt lgkmcnt(0)")
        d = vO + 4
        for s in range(4):
            c = "0" if s == 0 else f"v[{d}:{d+3}]"
            e(f"v_mfma_f32_16x16x32_bf16 v[{d}:{d+3}], v[{vKF+4*s}:{vKF+4*s+3}], v[{vD+4*s}:{vD+4*s+3}], {c}")
        e(f"s_mov_b64 exec, s[{sN3}:{sN3+1}]")
        self.loc_store(f"buffer_store_dwordx4 v[{d}:{d+3}], v{vT0}, s[{sWS}:{sWS+3}], s{sT0} offen offset:{QP}")
        e("s_mov_b64 exec, -1")
        e(f"s_cmp_lg_u32 s{sWAVE}, 0")
        e("s_cbranch_scc1 L_QE_wait")
        e(f"v_lshrrev_b32 v{vT0}, 5, v{vLANE}")
        e(f"v_lshlrev_b32 v{vT0}, 3, v{vT0}")
        e(f"s_add_u32 s{sT0}, s{sBLK}, s{sL}")
        e("s_mov_b32 exec_lo, 1"); e("s_mov_b32 exec_hi, 1")
        self.loc_store(f"buffer_store_dwordx2 v[{vMR}:{vMR+1}], v{vT0}, s[{sWS}:{sWS+3}], s{sT0} offen offset:{QST}")
        e("s_mov_b64 exec, -1")
        e(f"v_bfe_u32 v{vT0}, v{vLANE}, 4, 1")
        e(f"v_lshrrev_b32 v{vT1}, 5, v{vLANE}")
        e(f"v_lshl_add_u32 v{vT0}, v{vT1}, 1, v{vT0}")
        e(f"v_lshlrev_b32 v{vT0}, 14, v{vT0}")
        e(f"v_and_b32 v{vT1}, 15, v{vLANE}")
        e(f"v_lshl_add_u32 v{vT0}, v{vT1}, 4, v{vT0}")
        e(f"s_lshl_b32 s{sT0}, s{sH}, 17")
        e(f"s_add_u32 s{sT0}, s{sT0}, s{sL}")
        e(f"s_lshl_b32 s{sT1}, s{sB}, 8")
        e(f"s_add_u32 s{sT1}, s{sT1}, s{sT0}")
        e(f"s_add_u32 s{sT2}, s{sT1}, {4*BLK}")
        e(f"v_and_b32 v{vT1}, 3, v{vLANE}")
        e(f"v_lshlrev_b32 v{vT1}, 15, v{vT1}")
        e(f"s_lshl_b32 s{sT3}, s{sB}, 3")
        e(f"s_add_u32 s{sT3}, s{sT3}, s{sT0}")
        e(f"s_add_u32 s{sT4}, s{sT0}, 512")
        e(f"s_add_u32 s{sT5}, s{sT4}, {4*BLK}")
        cs = vD + 12
        lp = self.poll_begin()
        e(f"buffer_load_dwordx4 v[{vD}:{vD+3}], v{vT0}, s[{sWS}:{sWS+3}], s{sT1} offen offset:{QP} sc1")
        e(f"buffer_load_dwordx4 v[{vD+4}:{vD+7}], v{vT0}, s[{sWS}:{sWS+3}], s{sT2} offen offset:{QP} sc1")
        e(f"buffer_load_dwordx2 v[{vD+8}:{vD+9}], v{vT1}, s[{sWS}:{sWS+3}], s{sT3} offen offset:{QST} sc1")
        e(f"buffer_load_dwordx4 v[{cs}:{cs+3}], v{vT0}, s[{sWS}:{sWS+3}], s{sT4} offen offset:{QP} sc1")
        e(f"buffer_load_dwordx4 v[{vKF}:{vKF+3}], v{vT0}, s[{sWS}:{sWS+3}], s{sT5} offen offset:{QP} sc1")
        e("s_waitcnt vmcnt(0)")
        self.poll_check(list(range(vD, vD + 10)) + list(range(cs, cs + 4)) + list(range(vKF, vKF + 4)), vKF + 4)
        self.poll_end(lp)
        self.stamp(36)
        for r in range(4):
            e(f"v_add_f32 v{cs+r}, v{cs+r}, v{vKF+r}")
            e(f"v_add_f32 v{vD+r}, v{vD+r}, v{vD+4+r}")
        self.swap_reduce("v_add_f32", [cs + r for r in range(4)] + [vD + r for r in range(4)],
                         [vKF + r for r in range(4)] + [vD + 4 + r for r in range(4)], 32)
        s1, s2 = vD + 8, vD + 9
        for qp in ("[1,0,3,2]", "[2,3,0,1]"):
            for r in (s1, s2):
                e(f"v_add_f32_dpp v{r}, v{r}, v{r} quad_perm:{qp} row_mask:0xf bank_mask:0xf")
        self.mean_rstd(s1, s2, vD + 10)
        for r in range(4):
            e(f"v_fma_f32 v{vD+r}, -v{s1}, v{cs+r}, v{vD+r}")
        for r in range(4):
            e(f"v_mul_f32 v{vD+r}, v{s2}, v{vD+r}")
        e(f"v_cvt_pk_bf16_f32 v{vD+4}, v{vD}, v{vD+1}")
        e(f"v_cvt_pk_bf16_f32 v{vD+5}, v{vD+2}, v{vD+3}")
        e(f"v_and_b32 v{vT0}, 31, v{vLANE}")
        e(f"v_lshlrev_b32 v{vT0}, 3, v{vT0}")
        e(f"v_add_u32 v{vT0}, {L['QBUF']}, v{vT0}")
        e(f"ds_write_b64 v{vT0}, v[{vD+4}:{vD+5}]")
        self.label("L_QE_wait")
        e(f"v_and_b32 v{vT1}, 48, v{vLANE}")
        e(f"v_add_u32 v{vT1}, {L['QBUF']}, v{vT1}")
        e("s_waitcnt lgkmcnt(0)")
        e("s_barrier")
        for s in range(4):
            e(f"ds_read_b128 v[{vQF+4*s}:{vQF+4*s+3}], v{vT1} offset:{s*64}")
        e("s_waitcnt lgkmcnt(0)")
        self.stamp(37)

    def mean_rstd(self, s1, s2, t):
        e = self.e
        e(f"v_mul_f32 v{s1}, {hex(f2u(1/512))}, v{s1}")
        e(f"v_mul_f32 v{s2}, {hex(f2u(1/512))}, v{s2}")
        e(f"v_fma_f32 v{s2}, -v{s1}, v{s1}, v{s2}")
        e(f"v_max_f32 v{s2}, 0, v{s2}")
        e(f"v_add_f32 v{s2}, {hex(f2u(1e-5))}, v{s2}")
        e(f"v_rsq_f32 v{s2}, v{s2}")

    def tail(self):
        cfg, L, e = self.cfg, self.L, self.e
        self.label("L_TAIL")
        self.stamp(9, True)
        t = vD
        e(f"v_and_b32 v{vT0}, 15, v{vLANE}")
        e(f"v_lshrrev_b32 v{vT1}, 3, v{vT0}")
        e(f"s_lshl_b32 s{sT0}, s{sWAVE}, 1")
        e(f"v_add_u32 v{vT1}, s{sT0}, v{vT1}")
        e(f"v_lshlrev_b32 v{vT1}, 9, v{vT1}")
        e(f"v_and_b32 v{vT0}, 7, v{vT0}")
        e(f"v_lshl_add_u32 v{vT1}, v{vT0}, 2, v{vT1}")
        e(f"v_lshrrev_b32 v{vT0}, 4, v{vLANE}")
        e(f"v_lshl_add_u32 v{vT1}, v{vT0}, 7, v{vT1}")
        e(f"v_add_u32 v{vT1}, {L['RED']}, v{vT1}")
        for r in range(4):
            e(f"v_cndmask_b32 v{t+r}, v{vO+4+r}, v{vO+r}, s[{sLT8}:{sLT8+1}]")
        for r in range(4):
            e(f"ds_write_b32 v{vT1}, v{t+r} offset:{r*32}")
        dv = 2
        e(f"s_and_b32 s{sT0}, s{sWAVE}, 1")
        e(f"s_lshl_b32 s{sT0}, s{sT0}, 8")
        e(f"v_lshlrev_b32 v{dv}, 2, v{vLANE}")
        e(f"v_add_u32 v{dv}, s{sT0}, v{dv}")
        e(f"v_add_u32 v{vT0}, {L['RED']}, v{dv}")
        e(f"v_mov_b32 v{vT1}, {L['ML']}")
        e("s_waitcnt lgkmcnt(0)")
        e("s_barrier")
        for p in range(8):
            e(f"ds_read_b32 v{t+p}, v{vT0} offset:{p*512}")
        e(f"ds_read_b128 v[{vS}:{vS+3}], v{vT1}")
        e(f"ds_read_b128 v[{vO}:{vO+3}], v{vT1} offset:16")
        if cfg.LOC:
            e(f"ds_read_b32 v{vO+6}, v{vT1} offset:{L['LOC'] - L['ML']}")
        e(f"s_add_u32 s{sT0}, s{sBLK}, s{sL}")
        e("s_waitcnt lgkmcnt(0)")
        if cfg.LOC:
            e(f"v_readfirstlane_b32 s{sLOC}, v{vO+6}")
        m = [vS, vS + 2, vO, vO + 2]; l = [vS + 1, vS + 3, vO + 1, vO + 3]
        M = vO + 4
        e(f"v_max3_f32 v{M}, v{m[0]}, v{m[1]}, v{m[2]}")
        e(f"v_max_f32 v{M}, v{M}, v{m[3]}")
        for w in range(4):
            e(f"v_sub_f32 v{m[w]}, v{m[w]}, v{M}")
        for w in range(4):
            e(f"v_mul_f32 v{m[w]}, s{sCS}, v{m[w]}")
        for w in range(4):
            e(f"v_exp_f32 v{m[w]}, v{m[w]}")
        for w in range(4):
            e(f"v_add_f32 v{t+2*w}, v{t+2*w}, v{t+2*w+1}")
        e(f"v_mul_f32 v{t}, v{m[0]}, v{t}")
        e(f"v_mul_f32 v{M+1}, v{m[0]}, v{l[0]}")
        for w in range(1, 4):
            e(f"v_fmac_f32 v{t}, v{m[w]}, v{t+2*w}")
            e(f"v_fmac_f32 v{M+1}, v{m[w]}, v{l[w]}")
        lsk = self.lab("Lop")
        e(f"s_cmp_ge_u32 s{sWAVE}, 2")
        e(f"s_cbranch_scc1 {lsk}")
        self.loc_store(f"buffer_store_dword v{t}, v{dv}, s[{sWS}:{sWS+3}], s{sT0} offen offset:{OP}")
        e(f"s_cmp_lg_u32 s{sWAVE}, 0")
        e(f"s_cbranch_scc1 {lsk}")
        e(f"s_mov_b64 s[{sEX}:{sEX+1}], exec")
        e("s_mov_b64 exec, 1")
        self.loc_store(f"buffer_store_dwordx2 v[{M}:{M+1}], off, s[{sWS}:{sWS+3}], s{sT0} offset:{OP+512}")
        e(f"s_mov_b64 exec, s[{sEX}:{sEX+1}]")
        self.label(lsk)
        self.stamp(10, True)
        e("s_waitcnt vmcnt(0)")
        self.w_frags(vKF, vT0)
        lnf = self.lab("Lnf")
        e(f"s_cmp_lt_u32 s2, {NF}")
        e(f"s_cbranch_scc0 {lnf}")
        e(f"v_mov_b32 v{t}, 0x3f803f80")
        for r in range(1, 4):
            e(f"v_mov_b32 v{t+r}, v{t}")
        e("s_waitcnt lgkmcnt(0)")
        for s in range(4):
            c = "0" if s == 0 else f"v[{vO}:{vO+3}]"
            e(f"v_mfma_f32_16x16x32_bf16 v[{vO}:{vO+3}], v[{vKF+4*s}:{vKF+4*s+3}], v[{t}:{t+3}], {c}")
        e(f"s_lshl_b32 s{sT0}, s{sWAVE}, 6")
        e(f"s_add_u32 s{sT0}, s{sT0}, {L['CS1P']}")
        e(f"v_and_b32 v{vT0}, 48, v{vLANE}")
        e(f"v_add_u32 v{vT0}, s{sT0}, v{vT0}")
        e(f"ds_write_b128 v{vT0}, v[{vO}:{vO+3}]")
        self.label(lnf)
        e("s_waitcnt lgkmcnt(0)")
        self.c("stage A")
        e(f"s_lshr_b32 s{sT0}, s{sWAVE}, 1")
        e(f"s_lshl_b32 s{sT0}, s{sT0}, 2")
        e(f"s_lshl_b32 s{sT1}, s{sH}, 3")
        e(f"s_add_u32 s{sT0}, s{sT0}, s{sT1}")
        e(f"s_lshl_b32 s{sT0}, s{sT0}, 14")
        e(f"s_add_u32 s{sT0}, s{sT0}, s{sL}")
        e(f"s_add_u32 s{sT1}, s{sT0}, {BLK}")
        e(f"s_add_u32 s{sT2}, s{sT0}, {2*BLK}")
        e(f"s_add_u32 s{sT3}, s{sT0}, {3*BLK}")
        so = [sT0, sT1, sT2, sT3]
        lp = self.poll_begin()
        for c in range(4):
            e(f"buffer_load_dword v{t+c}, v{dv}, s[{sWS}:{sWS+3}], s{so[c]} offen offset:{OP} sc1")
        for c in range(4):
            e(f"buffer_load_dwordx2 v[{t+4+2*c}:{t+5+2*c}], off, s[{sWS}:{sWS+3}], s{so[c]} offset:{OP+512} sc1")
        e("s_waitcnt vmcnt(0)")
        self.poll_check(range(t, t + 12), vT0)
        self.poll_end(lp)
        self.stamp(11, True)
        m = [t + 4 + 2 * c for c in range(4)]; l = [t + 5 + 2 * c for c in range(4)]
        M = vO
        e(f"v_max3_f32 v{M}, v{m[0]}, v{m[1]}, v{m[2]}")
        e(f"v_max_f32 v{M}, v{M}, v{m[3]}")
        for c in range(4):
            e(f"v_sub_f32 v{m[c]}, v{m[c]}, v{M}")
        for c in range(4):
            e(f"v_mul_f32 v{m[c]}, s{sCS}, v{m[c]}")
        for c in range(4):
            e(f"v_exp_f32 v{m[c]}, v{m[c]}")
        e(f"v_lshrrev_b32 v{vT0}, 1, v{dv}")
        e(f"s_lshr_b32 s{sT0}, s{sWAVE}, 1")
        e(f"s_lshl_b32 s{sT0}, s{sT0}, 8")
        e(f"s_add_u32 s{sT0}, s{sT0}, {L['XQ']}")
        e(f"v_add_u32 v{vT0}, s{sT0}, v{vT0}")
        e(f"v_mul_f32 v{M+1}, v{m[0]}, v{l[0]}")
        e(f"v_mul_f32 v{t}, v{m[0]}, v{t}")
        for c in range(1, 4):
            e(f"v_fmac_f32 v{M+1}, v{m[c]}, v{l[c]}")
            e(f"v_fmac_f32 v{t}, v{m[c]}, v{t+c}")
        e(f"v_rcp_f32 v{M+1}, v{M+1}")
        e(f"v_mul_f32 v{t}, v{M+1}, v{t}")
        e(f"v_cvt_pk_bf16_f32 v{t}, v{t}, v{t}")
        e(f"ds_write_b16 v{vT0}, v{t}")
        e(f"v_and_b32 v{vT0}, 15, v{vLANE}")
        e(f"v_min_u32 v{vT1}, 2, v{vT0}")
        e(f"v_lshlrev_b32 v{vT1}, 8, v{vT1}")
        e(f"v_and_b32 v{3}, 48, v{vLANE}")
        e(f"v_add_u32 v{vT1}, v{vT1}, v3")
        e(f"v_add_u32 v{vT1}, {L['XQ']}, v{vT1}")
        e(f"v_lshlrev_b32 v{vT0}, 8, v{vT0}")
        e(f"v_add_u32 v{vT0}, v{vT0}, v3")
        e(f"s_lshl_b32 s{sT0}, s{sWAVE}, 6")
        e(f"s_add_u32 s{sT0}, s{sT0}, s{sBLK}")
        e(f"s_add_u32 s{sT0}, s{sT0}, s{sL}")
        e("s_waitcnt lgkmcnt(0)")
        e("s_barrier")
        for s in range(4):
            e(f"ds_read_b128 v[{t+4*s}:{t+4*s+3}], v{vT1} offset:{s*64}")
        e("s_waitcnt lgkmcnt(0)")
        d = vO + 4
        for s in range(4):
            c = "0" if s == 0 else f"v[{d}:{d+3}]"
            e(f"v_mfma_f32_16x16x32_bf16 v[{d}:{d+3}], v[{vQF+4*s}:{vQF+4*s+3}], v[{t+4*s}:{t+4*s+3}], {c}")
        e(f"s_mov_b64 s[{sEX}:{sEX+1}], exec")
        e(f"s_mov_b64 exec, s[{sN2}:{sN2+1}]")
        e(f"buffer_store_dwordx4 v[{d}:{d+3}], v{vT0}, s[{sWS}:{sWS+3}], s{sT0} offen offset:{YP} sc1")
        e(f"s_mov_b64 exec, s[{sEX}:{sEX+1}]")
        self.stamp(12, True)
        e(f"s_cmp_lt_u32 s2, {NF}")
        e("s_cbranch_scc1 L_FFN")
        e(f"s_cmp_ge_u32 s2, {R0}")
        e("s_cbranch_scc1 L_RED")
        e(f"s_cmp_lg_u32 s{sL}, 0")
        e("s_cbranch_scc1 L_end")
        if cfg.PF:
            self.l2_prefetch(cfg.PF, True)
        e("s_branch L_G2")
        self.ffn()
        self.reducer()
        self.g2()

    def l2_prefetch(self, ntiles, partner):
        cfg, L, e = self.cfg, self.L, self.e
        e(f"s_mul_i32 s{sT0}, s{sWAVE}, 1152")
        e(f"s_add_u32 m0, s{sT0}, {L['PBUF']}")
        n = [0]

        def run(srd):
            for i in range(4 * ntiles):
                if i == 0:
                    e(f"s_mov_b32 s{sKO}, {8*4096}")
                else:
                    e(f"s_add_u32 s{sKO}, s{sKO}, 1024")
                if n[0] >= cfg.PFD:
                    e(f"s_waitcnt vmcnt({cfg.PFD-1})")
                e(f"buffer_load_dwordx4 v{vVOFF}, s[{srd}:{srd+3}], s{sKO} offen {cfg.PFPOL} lds")
                n[0] += 1
        run(sK)
        if partner:
            l = self.lab("Lpf")
            e("s_cmp_ge_u32 s2, 192")
            e(f"s_cbranch_scc0 {l}")
            e(f"s_add_u32 s{sW}, s{sK}, 0x80000")
            e(f"s_addc_u32 s{sW+1}, s{sK+1}, 0")
            e(f"s_mov_b32 s{sW+2}, 131072")
            e(f"s_mov_b32 s{sW+3}, 0x20000")
            run(sW)
            self.label(l)

    def red_reduce(self, x):
        L, e = self.L, self.e
        regs = [x + r for r in range(4)]
        self.bfly_row("v_add_f32", regs, steps=(8,))
        tm = [x + 4 + r for r in range(4)]
        self.swap_reduce("v_add_f32", regs, tm, 16)
        self.swap_reduce("v_add_f32", regs, tm, 32)
        e(f"s_lshl_b32 s{sT0}, s{sWAVE}, 7")
        e(f"s_add_u32 s{sT0}, s{sT0}, {L['PART']}")
        e(f"v_and_b32 v{vT0}, 7, v{vLANE}")
        e(f"v_lshlrev_b32 v{vT0}, 4, v{vT0}")
        e(f"v_add_u32 v{vT1}, s{sT0}, v{vT0}")
        e(f"ds_write_b128 v{vT1}, v[{x}:{x+3}]")
        e("s_waitcnt lgkmcnt(0)")
        e("s_barrier")

    def reducer(self):
        cfg, L, e = self.cfg, self.L, self.e
        self.label("L_RED")
        x = vD
        sR, sRB, sCB = sT4, sT5, 49
        e(f"s_sub_u32 s{sR}, s2, {R0}")
        e(f"s_lshr_b32 s{sRB}, s{sR}, 4")
        e(f"s_and_b32 s{sCB}, s{sR}, 15")
        self.srd(sW, sB2, 1024)
        e(f"v_and_b32 v2, 7, v{vLANE}")
        e(f"v_lshlrev_b32 v3, 3, v2")
        e(f"s_lshl_b32 s{sT0}, s{sCB}, 6")
        e(f"buffer_load_dwordx2 v[4:5], v3, s[{sW}:{sW+3}], s{sT0} offen")
        e(f"v_lshrrev_b32 v6, 3, v{vLANE}")
        e(f"v_lshlrev_b32 v7, 17, v6")
        e(f"v_lshl_add_u32 v7, v2, 4, v7")
        e(f"s_lshl_b32 s{sT0}, s{sWAVE}, 6")
        e(f"s_lshr_b32 s{sT1}, s{sCB}, 1")
        e(f"s_add_u32 s{sT0}, s{sT0}, s{sT1}")
        e(f"s_lshl_b32 s{sT0}, s{sT0}, 14")
        e(f"s_add_u32 s{sT0}, s{sT0}, s{sL}")
        e(f"s_lshl_b32 s{sT1}, s{sRB}, 8")
        e(f"s_add_u32 s{sT0}, s{sT0}, s{sT1}")
        e(f"s_and_b32 s{sT1}, s{sCB}, 1")
        e(f"s_lshl_b32 s{sT1}, s{sT1}, 7")
        e(f"s_add_u32 s{sT0}, s{sT0}, s{sT1}")
        lp = self.poll_begin()
        e(f"buffer_load_dwordx4 v[{x}:{x+3}], v7, s[{sWS}:{sWS+3}], s{sT0} offen offset:{YP} sc1")
        e("s_waitcnt vmcnt(0)")
        self.poll_check(range(x, x + 4), vT0)
        self.poll_end(lp)
        self.stamp(17, True)
        self.red_reduce(x)
        lw = self.lab("Lr1")
        e(f"s_cmp_lg_u32 s{sWAVE}, 0")
        e(f"s_cbranch_scc1 {lw}")

        def final_sum():
            e(f"v_add_u32 v{vT1}, {L['PART']}, v{vT0}")
            for w in range(4):
                e(f"ds_read_b128 v[{x+4*w}:{x+4*w+3}], v{vT1} offset:{w*128}")
            e(f"v_add_u32 v{vT0}, {L['XRES']}, v{vT0}")
            e(f"ds_read_b128 v[{vO+4}:{vO+7}], v{vT0}")
            e("s_waitcnt lgkmcnt(0)")
            for r in range(4):
                e(f"v_add_f32 v{x+r}, v{x+r}, v{x+4+r}")
                e(f"v_add_f32 v{x+8+r}, v{x+8+r}, v{x+12+r}")
            for r in range(4):
                e(f"v_add_f32 v{x+r}, v{x+r}, v{x+8+r}")
            for r in range(4):
                e(f"v_add_f32 v{x+r}, v{x+r}, v{vO+4+r}")
        final_sum()
        e(f"ds_write_b128 v{vT0}, v[{x}:{x+3}]")
        e(f"s_add_u32 s{sT0}, s{sBLKW}, s{sL}")
        e(f"v_lshlrev_b32 v3, 4, v2")
        e(f"s_mov_b64 s[{sEX}:{sEX+1}], exec")
        e("s_mov_b64 exec, 0xff")
        e(f"buffer_store_dwordx4 v[{x}:{x+3}], v3, s[{sWS}:{sWS+3}], s{sT0} offen offset:{X1} sc1")
        e(f"s_mov_b64 exec, s[{sEX}:{sEX+1}]")
        self.label(lw)
        self.stamp(18, True)
        e("s_waitcnt lgkmcnt(0)")
        e("s_barrier")
        e(f"v_lshlrev_b32 v7, 14, v6")
        e(f"v_lshl_add_u32 v7, v2, 4, v7")
        e(f"s_lshl_b32 s{sT0}, s{sWAVE}, 17")
        e(f"s_add_u32 s{sT0}, s{sT0}, s{sL}")
        e(f"s_lshl_b32 s{sT1}, s{sRB}, 11")
        e(f"s_add_u32 s{sT0}, s{sT0}, s{sT1}")
        e(f"s_lshl_b32 s{sT1}, s{sCB}, 7")
        e(f"s_add_u32 s{sT0}, s{sT0}, s{sT1}")
        e(f"s_add_u32 s{sT0}, s{sT0}, {FP}")
        e(f"s_add_u32 s{sT1}, s{sT0}, {32*BLK}")
        e(f"s_add_u32 s{sT2}, s{sT0}, {64*BLK}")
        e(f"s_add_u32 s{sT3}, s{sT0}, {96*BLK}")
        for r in range(4):
            e(f"v_mov_b32 v{x+12+r}, 0")
        lp = self.poll_begin()
        l3 = self.lab("Lr3")
        for k, so in enumerate((sT0, sT1, sT2)):
            e(f"buffer_load_dwordx4 v[{x+4*k}:{x+4*k+3}], v7, s[{sWS}:{sWS+3}], s{so} offen sc1")
        e(f"s_cmp_ge_u32 s{sWAVE}, 2")
        e(f"s_cbranch_scc1 {l3}")
        e(f"buffer_load_dwordx4 v[{x+12}:{x+15}], v7, s[{sWS}:{sWS+3}], s{sT3} offen sc1")
        self.label(l3)
        e("s_waitcnt vmcnt(0)")
        self.poll_check(range(x, x + 16), vT0)
        self.poll_end(lp)
        self.stamp(19, True)
        for r in range(4):
            e(f"v_add_f32 v{x+r}, v{x+r}, v{x+4+r}")
            e(f"v_add_f32 v{x+8+r}, v{x+8+r}, v{x+12+r}")
        for r in range(4):
            e(f"v_add_f32 v{x+r}, v{x+r}, v{x+8+r}")
        self.red_reduce(x)
        lw = self.lab("Lr4")
        e(f"s_cmp_lg_u32 s{sWAVE}, 0")
        e(f"s_cbranch_scc1 {lw}")
        final_sum()
        e(f"v_lshlrev_b32 v{x+4}, 16, v4")
        e(f"v_and_b32 v{x+5}, 0xffff0000, v4")
        e(f"v_lshlrev_b32 v{x+6}, 16, v5")
        e(f"v_and_b32 v{x+7}, 0xffff0000, v5")
        for r in range(4):
            e(f"v_add_f32 v{x+r}, v{x+r}, v{x+4+r}")
        lo = self.lab("Lout")
        e(f"s_mov_b64 s[{sEX}:{sEX+1}], exec")
        e(f"s_cmp_lg_u32 s{sL}, 0")
        e(f"s_cbranch_scc1 {lo}")
        e(f"ds_write_b128 v{vT0}, v[{x}:{x+3}]")
        e(f"s_add_u32 s{sT0}, s{sBLKW}, s{sL}")
        e(f"v_lshlrev_b32 v3, 4, v2")
        e("s_mov_b64 exec, 0xff")
        e(f"buffer_store_dwordx4 v[{x}:{x+3}], v3, s[{sWS}:{sWS+3}], s{sT0} offen offset:{X2} sc1")
        e(f"s_mov_b64 exec, s[{sEX}:{sEX+1}]")
        e("s_waitcnt lgkmcnt(0)")
        e("s_branch L_G2")
        self.label(lo)
        self.srd(sW, sOUT, 2048)
        e(f"v_cvt_pk_bf16_f32 v{x+4}, v{x}, v{x+1}")
        e(f"v_cvt_pk_bf16_f32 v{x+5}, v{x+2}, v{x+3}")
        e(f"s_lshl_b32 s{sT0}, s{sR}, 6")
        e(f"v_lshlrev_b32 v3, 3, v2")
        e("s_mov_b64 exec, 0xff")
        e(f"buffer_store_dwordx2 v[{x+4}:{x+5}], v3, s[{sW}:{sW+3}], s{sT0} offen")
        e("s_waitcnt vmcnt(0)")
        e("s_branch L_end")
        self.label(lw)
        e(f"s_cmp_lg_u32 s{sL}, 0")
        e("s_cbranch_scc1 L_end")
        e("s_branch L_G2")

    def ffn(self):
        cfg, L, e = self.cfg, self.L, self.e
        self.label("L_FFN")
        t = vD
        self.srd(sW, sW2, 1792 * 512 * 2)
        e(f"v_lshrrev_b32 v2, 4, v{vLANE}")
        e(f"v_lshlrev_b32 v2, 10, v2")
        e(f"v_and_b32 v3, 15, v{vLANE}")
        e(f"v_lshl_add_u32 v2, v3, 4, v2")
        e(f"s_lshl_b32 s{sT0}, s2, 14")
        e(f"s_lshl_b32 s{sT1}, s{sWAVE}, 8")
        e(f"s_add_u32 s{sT0}, s{sT0}, s{sT1}")
        for i in range(4):
            e(f"s_add_u32 m0, s{sWB}, {i*1024}")
            if i > 0:
                e(f"s_add_u32 s{sT0}, s{sT0}, 4096")
            e(f"buffer_load_dwordx4 v2, s[{sW}:{sW+3}], s{sT0} offen lds")
        self.srd(sW, sB1, 1792 * 2)
        e(f"v_lshrrev_b32 v3, 4, v{vLANE}")
        e(f"v_lshlrev_b32 v3, 3, v3")
        e(f"s_lshl_b32 s{sT0}, s2, 5")
        e(f"buffer_load_dwordx2 v[4:5], v3, s[{sW}:{sW+3}], s{sT0} offen")
        e(f"v_lshrrev_b32 v2, 4, v{vLANE}")
        e(f"v_lshlrev_b32 v2, 2, v2")
        e(f"v_bfe_u32 v3, v{vLANE}, 2, 2")
        e(f"v_add_u32 v2, v2, v3")
        e(f"v_lshlrev_b32 v2, 8, v2")
        e(f"v_and_b32 v3, 3, v{vLANE}")
        e(f"v_lshl_add_u32 v2, v3, 3, v2")
        e(f"v_add_u32 v2, s{sWB}, v2")
        e("s_waitcnt vmcnt(0)")
        for tt in range(8):
            e(f"ds_read_b64_tr_b16 v[{vQF+2*tt}:{vQF+2*tt+1}], v2 offset:{tt*32}")
        e(f"v_lshlrev_b32 v2, 16, v4")
        e(f"v_and_b32 v3, 0xffff0000, v4")
        e(f"v_lshlrev_b32 v4, 16, v5")
        e(f"v_and_b32 v5, 0xffff0000, v5")
        e(f"v_lshrrev_b32 v10, 3, v{vLANE}")
        e(f"v_lshlrev_b32 v10, 14, v10")
        e(f"v_and_b32 v11, 7, v{vLANE}")
        e(f"v_lshl_add_u32 v10, v11, 4, v10")
        e(f"s_lshl_b32 s{sT0}, s{sWAVE}, 3")
        e(f"s_add_u32 s{sT0}, s{sT0}, {R0}")
        e(f"s_lshl_b32 s{sT0}, s{sT0}, 14")
        e(f"s_add_u32 s{sT0}, s{sT0}, s{sL}")
        e(f"s_lshl_b32 s{sT1}, s{sWAVE}, 9")
        e(f"s_add_u32 s{sT1}, s{sT1}, {L['XBUF']}")
        e(f"v_lshlrev_b32 v11, 3, v{vLANE}")
        e(f"v_add_u32 v11, s{sT1}, v11")
        e(f"v_and_b32 v12, 1, v{vLANE}")
        e(f"v_lshlrev_b32 v13, 10, v12")
        e(f"v_and_b32 v14, 48, v{vLANE}")
        e(f"v_add_u32 v13, v13, v14")
        e(f"s_lshl_b32 s{sT1}, s{sWAVE}, 8")
        e(f"s_add_u32 s{sT1}, s{sT1}, {L['XBUF']}")
        e(f"v_add_u32 v13, s{sT1}, v13")
        e(f"v_lshlrev_b32 v14, 1, v14")
        e(f"v_lshl_add_u32 v14, v12, 4, v14")
        e(f"v_add_u32 v14, {L['PART']}, v14")
        e(f"s_lshl_b32 s{sT1}, s{sWAVE}, 7")
        e(f"v_add_u32 v15, s{sT1}, v14")
        e("s_waitcnt lgkmcnt(0)")
        self.stamp(13, True)
        lp = self.poll_begin()
        e(f"buffer_load_dwordx4 v[{t}:{t+3}], v10, s[{sWS}:{sWS+3}], s{sT0} offen offset:{X1} sc1")
        e("s_waitcnt vmcnt(0)")
        self.poll_check(range(t, t + 4), vT0)
        self.poll_end(lp)
        self.stamp(14, True)
        e(f"v_cvt_pk_bf16_f32 v{t+4}, v{t}, v{t+1}")
        e(f"v_cvt_pk_bf16_f32 v{t+5}, v{t+2}, v{t+3}")
        e(f"ds_write_b64 v11, v[{t+4}:{t+5}]")
        e(f"v_lshlrev_b32 v{t}, 16, v{t+4}")
        e(f"v_and_b32 v{t+1}, 0xffff0000, v{t+4}")
        e(f"v_lshlrev_b32 v{t+2}, 16, v{t+5}")
        e(f"v_and_b32 v{t+3}, 0xffff0000, v{t+5}")
        e(f"v_add_f32 v{vMR}, v{t}, v{t+1}")
        e(f"v_mul_f32 v{vLR}, v{t}, v{t}")
        e(f"v_add_f32 v{vMR}, v{vMR}, v{t+2}")
        e(f"v_fmac_f32 v{vLR}, v{t+1}, v{t+1}")
        e(f"v_add_f32 v{vMR}, v{vMR}, v{t+3}")
        e(f"v_fmac_f32 v{vLR}, v{t+2}, v{t+2}")
        e(f"v_fmac_f32 v{vLR}, v{t+3}, v{t+3}")
        e("s_waitcnt lgkmcnt(0)")
        e("s_barrier")
        for s in range(4):
            e(f"ds_read_b128 v[{t+4*s}:{t+4*s+3}], v13 offset:{s*64}")
        e(f"v_and_b32 v10, 48, v{vLANE}")
        e(f"v_add_u32 v10, {L['CS1P']}, v10")
        e(f"ds_read_b128 v[6:9], v10")
        self.bfly_row("v_add_f32", [vMR, vLR])
        self.swap_reduce("v_add_f32", [vMR, vLR], [vT0, vT1], 16)
        self.swap_reduce("v_add_f32", [vMR, vLR], [vT0, vT1], 32)
        e("s_waitcnt lgkmcnt(0)")
        d = vO + 4
        for s in range(4):
            c = "0" if s == 0 else f"v[{d}:{d+3}]"
            e(f"v_mfma_f32_16x16x32_bf16 v[{d}:{d+3}], v[{vKF+4*s}:{vKF+4*s+3}], v[{t+4*s}:{t+4*s+3}], {c}")
        e(f"s_lshl_b32 s{sT1}, s{sWAVE}, 3")
        e(f"s_add_u32 s{sT1}, s{sT1}, {L['ST']}")
        e(f"v_mov_b32 v{vT0}, s{sT1}")
        e(f"ds_write_b64 v{vT0}, v[{vMR}:{vMR+1}]")
        for w in range(1, 4):
            e(f"ds_read_b128 v[{t+4*w}:{t+4*w+3}], v10 offset:{w*64}")
        e(f"ds_write_b128 v15, v[{d}:{d+3}]")
        e("s_waitcnt lgkmcnt(0)")
        for w in range(1, 4):
            for r in range(4):
                e(f"v_add_f32 v{6+r}, v{6+r}, v{t+4*w+r}")
        e("s_barrier")
        for w in range(4):
            e(f"ds_read_b128 v[{t+4*w}:{t+4*w+3}], v14 offset:{w*128}")
        e(f"v_lshlrev_b32 v{vT0}, 4, v12")
        e(f"v_add_u32 v{vT0}, {L['ST']}, v{vT0}")
        e(f"ds_read_b128 v[{d}:{d+3}], v{vT0}")
        e("s_waitcnt lgkmcnt(0)")
        e(f"v_add_f32 v{vMR}, v{d}, v{d+2}")
        e(f"v_add_f32 v{vLR}, v{d+1}, v{d+3}")
        self.mean_rstd(vMR, vLR, None)
        for r in range(4):
            e(f"v_add_f32 v{t+r}, v{t+r}, v{t+4+r}")
            e(f"v_add_f32 v{t+8+r}, v{t+8+r}, v{t+12+r}")
        for r in range(4):
            e(f"v_add_f32 v{t+r}, v{t+r}, v{t+8+r}")
        for r in range(4):
            e(f"v_fma_f32 v{t+r}, -v{vMR}, v{6+r}, v{t+r}")
        for r in range(4):
            e(f"v_fma_f32 v{t+r}, v{vLR}, v{t+r}, v{2+r}")
        k0 = -2.0 * 0.7978845608028654 * 1.4426950408889634
        e(f"s_mov_b32 s{sT1}, {hex(f2u(0.044715))}")
        e(f"s_mov_b32 s{sT2}, {hex(f2u(k0))}")
        for r in range(4):
            e(f"v_mul_f32 v{t+4+r}, v{t+r}, v{t+r}")
        for r in range(4):
            e(f"v_fma_f32 v{t+4+r}, v{t+4+r}, s{sT1}, 1.0")
        for r in range(4):
            e(f"v_mul_f32 v{t+4+r}, v{t+4+r}, v{t+r}")
        for r in range(4):
            e(f"v_mul_f32 v{t+4+r}, s{sT2}, v{t+4+r}")
        for r in range(4):
            e(f"v_exp_f32 v{t+4+r}, v{t+4+r}")
        for r in range(4):
            e(f"v_add_f32 v{t+4+r}, 1.0, v{t+4+r}")
        for r in range(4):
            e(f"v_rcp_f32 v{t+4+r}, v{t+4+r}")
        for r in range(4):
            e(f"v_mul_f32 v{t+r}, v{t+r}, v{t+4+r}")
        e(f"v_cvt_pk_bf16_f32 v{t+8}, v{t}, v{t+1}")
        e(f"v_cvt_pk_bf16_f32 v{t+9}, v{t+2}, v{t+3}")
        e(f"v_lshlrev_b32 v10, 11, v12")
        e(f"v_bfe_u32 v11, v{vLANE}, 1, 3")
        e(f"v_lshl_add_u32 v10, v11, 6, v10")
        e(f"v_and_b32 v11, 48, v{vLANE}")
        e(f"v_add_u32 v10, v10, v11")
        e(f"s_lshl_b32 s{sT0}, s{sWAVE}, 9")
        e(f"s_add_u32 s{sT0}, s{sT0}, s{sBLKW}")
        e(f"s_add_u32 s{sT0}, s{sT0}, s{sL}")
        e(f"s_add_u32 s{sT0}, s{sT0}, {FP}")
        bb = [t + 10, t + 12]
        def mk(tt):
            b = bb[tt & 1]
            e(f"s_lshl_b64 s[{sMK}:{sMK+1}], s[{sN2}:{sN2+1}], {2*tt}")
            e(f"v_cndmask_b32 v{b}, 0, v{t+8}, s[{sMK}:{sMK+1}]")
            e(f"v_cndmask_b32 v{b+1}, 0, v{t+9}, s[{sMK}:{sMK+1}]")
        mk(0)
        for tt in range(8):
            if tt + 1 < 8:
                mk(tt + 1)
            b = bb[tt & 1]
            c = "0" if tt == 0 else f"v[{d}:{d+3}]"
            e(f"v_mfma_f32_16x16x16_bf16 v[{d}:{d+3}], v[{vQF+2*tt}:{vQF+2*tt+1}], v[{b}:{b+1}], {c}")
        e(f"buffer_store_dwordx4 v[{d}:{d+3}], v10, s[{sWS}:{sWS+3}], s{sT0} offen sc1")
        self.stamp(15, True)
        e(f"s_cmp_lg_u32 s{sL}, 0")
        e("s_cbranch_scc1 L_end")
        self.set_wq()
        self.w_dma(vT0, cond=True)
        if cfg.PFF:
            self.l2_prefetch(cfg.PFF, False)
            e(f"s_waitcnt vmcnt({min(cfg.PFD, 4*cfg.PFF)})")
        else:
            e("s_waitcnt vmcnt(0)")
        self.w_frags(vKF, vT0)
        e("s_waitcnt lgkmcnt(0)")
        e("s_branch L_G2")

    def g2(self):
        cfg, L, e = self.cfg, self.L, self.e
        self.label("L_G2")
        self.stamp(21)
        self.consts()
        lw = self.lab("Lg2")
        e(f"s_cmp_lg_u32 s{sWAVE}, 0")
        e(f"s_cbranch_scc1 {lw}")
        t = vD
        e(f"v_lshrrev_b32 v{vT0}, 5, v{vLANE}")
        e(f"v_lshlrev_b32 v{vT0}, 4, v{vT0}")
        e(f"v_bfe_u32 v{vT1}, v{vLANE}, 3, 2")
        e(f"v_add_u32 v{vT0}, v{vT0}, v{vT1}")
        e(f"v_lshlrev_b32 v{vT0}, 14, v{vT0}")
        e(f"v_and_b32 v{vT1}, 7, v{vLANE}")
        e(f"v_lshl_add_u32 v{vT0}, v{vT1}, 4, v{vT0}")
        e(f"s_lshr_b32 s{sT0}, s{sJ}, 1")
        e(f"s_lshl_b32 s{sT0}, s{sT0}, 2")
        e(f"s_add_u32 s{sT0}, s{sT0}, {R0}")
        e(f"s_lshl_b32 s{sT0}, s{sT0}, 14")
        e(f"v_lshrrev_b32 v{t+8}, 5, v{vLANE}")
        e(f"v_lshlrev_b32 v{t+8}, 8, v{t+8}")
        e(f"v_and_b32 v{t+9}, 31, v{vLANE}")
        e(f"v_lshl_add_u32 v{t+8}, v{t+9}, 3, v{t+8}")
        e(f"v_add_u32 v{t+8}, {L['XQ']}, v{t+8}")
        lp = self.poll_begin()
        e(f"buffer_load_dwordx4 v[{t}:{t+3}], v{vT0}, s[{sWS}:{sWS+3}], s{sT0} offen offset:{X2} sc1")
        e("s_waitcnt vmcnt(0)")
        self.poll_check(range(t, t + 4), vT1)
        self.poll_end(lp)
        self.stamp(22)
        e(f"v_cvt_pk_bf16_f32 v{t+4}, v{t}, v{t+1}")
        e(f"v_cvt_pk_bf16_f32 v{t+5}, v{t+2}, v{t+3}")
        e(f"ds_write_b64 v{t+8}, v[{t+4}:{t+5}]")
        e(f"v_lshlrev_b32 v{t}, 16, v{t+4}")
        e(f"v_and_b32 v{t+1}, 0xffff0000, v{t+4}")
        e(f"v_lshlrev_b32 v{t+2}, 16, v{t+5}")
        e(f"v_and_b32 v{t+3}, 0xffff0000, v{t+5}")
        self.stats_partial(t)
        self.label(lw)
        if cfg.LOC and cfg.QPF:
            lq = self.lab("Lqpf")
            e(f"s_cmp_eq_u32 s{sWAVE}, 1")
            e(f"s_cbranch_scc0 {lq}")
            e(f"s_add_u32 s{sT0}, s{sBLK}, {LOFF}")
            e(f"buffer_load_dword v{vMR}, v{vVOFF}, s[{sWS}:{sWS+3}], s{sT0} offen sc1")
            self.label(lq)
        e(f"s_mov_b32 s{sL}, {LOFF}")
        e("s_waitcnt lgkmcnt(0)")
        e("s_branch L_QE")

    def build(self):
        cfg, e = self.cfg, self.e
        self.prologue()

        def snap():
            return (list(self.pending), set(self.ready), self.vm_n, dict(self.vm_tags), self.vm_done, self.lg_n, dict(self.lg_tags), self._vo)

        def rest(s):
            self.pending, self.ready, self.vm_n, self.vm_tags, self.vm_done, self.lg_n, self.lg_tags, self._vo = \
                list(s[0]), set(s[1]), s[2], dict(s[3]), s[4], s[5], dict(s[6]), s[7]

        def both(fn, name, cap_e, cap_o, last_falls):
            if not cfg.CAPO:
                self.cap, self.capend = cap_e, cfg.CAPEND
                fn()
                if not last_falls:
                    e("s_branch L_TAIL")
                return
            s0 = snap()
            e(f"s_cmp_lg_u32 s{sPAR}, 0")
            e(f"s_cbranch_scc1 {name}")
            self.cap, self.capend = cap_e, cfg.CAPEND
            fn()
            e("s_branch L_TAIL")
            rest(s0)
            self.label(name)
            self.cap, self.capend = cap_o, cfg.CAPENDO or cfg.CAPEND
            fn()
            if not last_falls:
                e("s_branch L_TAIL")
        both(self.pass1, "L_P1_odd", cfg.CAP, cfg.CAPO, False)
        self.qe()
        self.vm_n += 5000; self.vm_done = self.vm_n; self.vm_tags = {}
        self.pending = []
        both(self.pass2, "L_P2_odd", cfg.CAP2 or cfg.CAP, cfg.CAPO2 or cfg.CAPO, True)
        self.tail()
        self.label("L_end")
        self.stamp(63, last=True)
        self.label("L_exit")
        e("s_endpgm")

    def text(self):
        cfg = self.cfg
        body, nn = hazard_pass(self.lines)
        hdr = []
        ref = open("interleave_layers__mha_block_cached__dense_activation_gelu__decode.s.ref").read().split("\n")
        for l in ref:
            if l.startswith("; @launch"):
                hdr.append("; @launch grid=(256,1,1) block=(256,1,1) lds=163840")
                break
            if l.startswith(";"):
                hdr.append(l)
        hdr += ['.amdgcn_target "amdgcn-amd-amdhsa--gfx950"', ".text", f".globl {KNAME}", ".p2align 8",
                f".type {KNAME},@function", f"{KNAME}:"]
        ftr = ['.section .rodata,"a"', ".p2align 6", f".amdhsa_kernel {KNAME}",
               "  .amdhsa_next_free_vgpr 512", "  .amdhsa_next_free_sgpr 102", "  .amdhsa_accum_offset 256",
               "  .amdhsa_group_segment_fixed_size 0", "  .amdhsa_kernarg_size 104", "  .amdhsa_user_sgpr_count 2",
               "  .amdhsa_user_sgpr_kernarg_segment_ptr 1", "  .amdhsa_system_sgpr_workgroup_id_x 1",
               ".end_amdhsa_kernel", ""]
        return "\n".join(hdr + body + ftr), nn


def generate(path, **kw):
    cfg = Cfg()
    for k, v in kw.items():
        setattr(cfg, k, v)
    g = Gen(cfg)
    g.build()
    txt, nn = g.text()
    open(path, "w").write(txt)
    return len(txt), nn, len(g.lines)


if __name__ == "__main__":
    out = sys.argv[1] if len(sys.argv) > 1 else "interleave_layers__mha_block_cached__dense_activation_gelu__decode.s"
    kw = {}
    for a in sys.argv[2:]:
        k, v = a.split("=")
        kw[k] = v if (k.endswith("POL") or k.startswith("CK") or k.startswith("PART")) else int(v)
    print(generate(out, **kw))
```

```python
import sys, struct, os
sys.path.insert(0, os.path.dirname(os.path.abspath(__file__)))
from asmlib import Asm, hazard_pass

KNAME = "interleave_layers__mha_block_cached__dense_activation_gelu__decode_kernel"


def f2u(x):
    return struct.unpack("<I", struct.pack("<f", x))[0]


class Cfg:
    NR = 8
    NWORK = 72
    CAP = 16
    INIT_V = 24
    CAP0 = 60
    QF = 0
    QA = 4
    QPF = 0
    LOC = 1
    GY = 0
    W2PF = 0
    XMAP = 1
    PF = 0
    PFF = 0
    PFD = 8
    PFPOL = ""
    PFV = 0
    PFK = 0
    THR = 0
    T1 = 128
    T2 = 0
    CAPT1 = 6
    CAPT2 = 4
    CK1 = "KB7:12,VB0:10,VB20:30,KA3:8,KA11:15,VA4:14,VA18:26"
    CK2 = "KA11:15,KB2:6,KB8:12"
    PART1 = "KB,VB,KA,VA"
    PART2 = "KA,KB"
    NOARR = 0
    KSPLIT = 0
    CAPEND = 0
    CAPO = 0
    CAP2 = 0
    CAPO2 = 0
    CAPENDO = 0
    KRET = 8
    KRETB = 0
    VRET = 0
    RETPOL = ""
    P2POL = "nt"
    P2VPOL = "nt"
    SPIN = 200000
    KPOL = "nt"
    VPOL = "nt"
    PROF = False
    POLL_SLEEP = 0


RING = 0
def lds_map(cfg):
    m = {}
    m["W"] = cfg.NR * 4096 * 4
    misc = m["W"] + 16384
    m["PBUF"] = misc
    m["RED"] = misc + 4608
    m["ML"] = misc + 8704
    m["XQ"] = misc + 8768
    m["QBUF"] = misc + 9536
    m["CSB"] = misc + 9792
    m["XRES"] = misc + 10304
    m["XBUF"] = misc + 10432
    m["PART"] = misc + 12480
    m["ST"] = misc + 12992
    m["CS1P"] = misc + 13056
    m["LVL"] = misc + 13312
    m["LOC"] = misc + 13328
    m["END"] = misc + 13344
    return m

BLK = 16384
LOFF = 8192
QP, QST, OP, YP, X1, X2, FP = 0, 768, 1024, 2048, 3072, 3200, 4096
PROF_OFF = 256 * BLK
NF = 112
R0 = 224

sK, sV, sWS, sW = 4, 8, 12, 16
sWQ, sWO, sW1, sW2, sB1, sB2, sOUT, sDBG, sX = 20, 22, 24, 26, 28, 30, 32, 34, 36
sWAVE, sH, sJ, sB, sC = 38, 39, 40, 41, 42
sRING, sWB, sL, sLOC, sSPIN = 43, 44, 46, 47, 48
sQO = 45
sEX = 50
sMK = 52
sT0, sT1, sT2, sT3, sT4, sT5 = 54, 55, 56, 57, 64, 65
sM0 = 58
sCS = 60
sBLK = 61
sLT8 = 62
sKO, sVO = 66, 67
sN2 = 68
sN3 = 70
sBLKW = 72
sPAR = 73
sLVL, sRK = 77, 78
sCK = 80
sP0 = 74

vLANE, vVOFF = 0, 1
vKD = 2
vKR = 6
vM = 10
vPW, vPR = 14, 15
vQF = 16
vKF = 32
vB0, vB1, vP0, vP1 = 32, 36, 40, 44
vD = 48
vS = 56
vO = 60
vMR, vLR = 68, 69
vT0, vT1 = 70, 71
vCK = 72

SCALE = 128 ** -0.5 * 1.4426950408889634


class Gen(Asm):
    def __init__(self, cfg):
        super().__init__()
        self.cfg = cfg
        self.L = lds_map(cfg)
        assert self.L["END"] <= 163840
        self.nstamp = 0
        self.pending = []
        self.ready = set()
        self.cap = cfg.CAP
        self.thr_on = False
        self.nck = 0
        self.ck_at = {}
        self.lvl_pending = None

    def stamp(self, sid, shared=False, last=False):
        if not self.cfg.PROF:
            return
        e = self.e
        vST = self.cfg.NWORK - 1
        if sid == 0:
            e(f"v_mov_b32 v{vST}, 0")
            e(f"s_getreg_b32 s{sP0}, hwreg(HW_REG_XCC_ID)")
            e(f"s_or_b32 s{sP0}, s{sP0}, 0x10000")
            e(f"v_writelane_b32 v{vST}, s{sP0}, 62")
            e(f"s_getreg_b32 s{sP0}, hwreg(HW_REG_HW_ID)")
            e(f"v_writelane_b32 v{vST}, s{sP0}, 61")
            e(f"s_memrealtime s[{sP0}:{sP0+1}]")
            e(f"s_mov_b32 s{sP0+2}, 0")
            return
        e("s_waitcnt lgkmcnt(0)")
        e(f"s_mov_b32 m0, s{sP0+2}")
        e("s_nop 0")
        e(f"v_writelane_b32 v{vST}, s{sP0}, m0")
        if shared:
            e(f"s_lshr_b32 s{sP0+2}, s{sL}, 8")
            e(f"s_add_u32 s{sP0+2}, s{sP0+2}, {sid}")
        else:
            e(f"s_mov_b32 s{sP0+2}, {sid}")
        e(f"s_memrealtime s[{sP0}:{sP0+1}]")
        if last:
            e("s_waitcnt lgkmcnt(0)")
            e(f"s_mov_b32 m0, s{sP0+2}")
            e("s_nop 0")
            e(f"v_writelane_b32 v{vST}, s{sP0}, m0")
            e(f"s_lshl_b32 s{sT0}, s2, 2")
            e(f"s_add_u32 s{sT0}, s{sT0}, s{sWAVE}")
            e(f"s_lshl_b32 s{sT0}, s{sT0}, 8")
            e(f"s_add_u32 s{sT0}, s{sT0}, {PROF_OFF}")
            e(f"s_mov_b64 exec, -1")
            e(f"v_lshlrev_b32 v1, 2, v0")
            e(f"buffer_store_dword v{vST}, v1, s[{sWS}:{sWS+3}], s{sT0} offen")
            e("s_waitcnt vmcnt(0)")

    def srd(self, d, ptr, nbytes, add=None):
        if add is None:
            self.e(f"s_mov_b32 s{d}, s{ptr}")
            self.e(f"s_and_b32 s{d+1}, s{ptr+1}, 0xffff")
        else:
            self.e(f"s_add_u32 s{d}, s{ptr}, s{add}")
            self.e(f"s_addc_u32 s{d+1}, s{ptr+1}, 0")
            self.e(f"s_and_b32 s{d+1}, s{d+1}, 0xffff")
        self.e(f"s_mov_b32 s{d+2}, {nbytes}")
        self.e(f"s_mov_b32 s{d+3}, 0x20000")

    def bfly_row(self, op, regs, steps=(8, 4, 2, 1)):
        for st in steps:
            for r in regs:
                self.e(f"{op}_dpp v{r}, v{r}, v{r} row_ror:{st} row_mask:0xf bank_mask:0xf")

    def swap_reduce(self, op, regs, tmps, which):
        for r, t in zip(regs, tmps):
            self.e(f"v_mov_b32 v{t}, v{r}")
        for r, t in zip(regs, tmps):
            self.e(f"v_permlane{which}_swap_b32 v{t}, v{r}")
        for r, t in zip(regs, tmps):
            self.e(f"{op} v{r}, v{t}, v{r}")

    def poll_begin(self):
        l = self.lab("Lpoll")
        self.e(f"s_mov_b32 s{sSPIN}, {self.cfg.SPIN}")
        self.label(l)
        return l

    def poll_check(self, regs, tmp):
        regs = list(regs)
        if len(regs) == 1:
            self.e(f"v_cmp_eq_u32 vcc, -1, v{regs[0]}")
            return
        if len(regs) == 2:
            self.e(f"v_max_u32 v{tmp}, v{regs[0]}, v{regs[1]}")
            rest = []
        else:
            self.e(f"v_max3_u32 v{tmp}, v{regs[0]}, v{regs[1]}, v{regs[2]}")
            rest = regs[3:]
        while len(rest) >= 2:
            self.e(f"v_max3_u32 v{tmp}, v{tmp}, v{rest[0]}, v{rest[1]}")
            rest = rest[2:]
        if rest:
            self.e(f"v_max_u32 v{tmp}, v{tmp}, v{rest[0]}")
        self.e(f"v_cmp_eq_u32 vcc, -1, v{tmp}")

    def poll_end(self, l):
        ok = self.lab("Lok")
        self.e(f"s_cbranch_vccz {ok}")
        if self.cfg.POLL_SLEEP:
            self.e(f"s_sleep {self.cfg.POLL_SLEEP}")
        self.e(f"s_sub_u32 s{sSPIN}, s{sSPIN}, 1")
        self.e(f"s_cmp_lg_u32 s{sSPIN}, 0")
        self.e(f"s_cbranch_scc1 {l}")
        self.label(ok)

    def consts(self):
        L = self.L
        e = self.e
        self.c("per-lane stream constants")
        e(f"v_lshlrev_b32 v{vVOFF}, 4, v{vLANE}")
        e(f"v_and_b32 v{vT0}, 15, v{vLANE}")
        e(f"v_lshrrev_b32 v{vT1}, 4, v{vLANE}")
        for t in range(4):
            e(f"v_add_u32 v{vD}, {4*t}, v{vT1}")
            e(f"v_xor_b32 v{vD}, v{vD}, v{vT0}")
            e(f"v_lshlrev_b32 v{vD}, 4, v{vD}")
            e(f"v_lshl_add_u32 v{vKD+t}, v{vT1}, 8, v{vD}")
        for s in range(4):
            e(f"v_add_u32 v{vD}, {4*s}, v{vT1}")
            e(f"v_xor_b32 v{vD}, v{vD}, v{vT0}")
            e(f"v_lshlrev_b32 v{vD}, 4, v{vD}")
            e(f"v_lshl_add_u32 v{vD}, v{vT0}, 8, v{vD}")
            e(f"v_add_u32 v{vKR+s}, s{sRING}, v{vD}")
        e(f"v_and_b32 v{vD}, 7, v{vT0}")
        e(f"v_mov_b32 v{vD+1}, 0xffff")
        e(f"v_mov_b32 v{vD+2}, 0xffff0000")
        for jj in range(4):
            e(f"v_mov_b32 v{vM+jj}, 0")
            e(f"v_cmp_eq_u32 vcc, {2*jj}, v{vD}")
            e(f"v_cndmask_b32 v{vM+jj}, v{vM+jj}, v{vD+1}, vcc")
            e(f"v_cmp_eq_u32 vcc, {2*jj+1}, v{vD}")
            e(f"v_cndmask_b32 v{vM+jj}, v{vM+jj}, v{vD+2}, vcc")
        e(f"s_mul_i32 s{sT0}, s{sWAVE}, 1152")
        e(f"s_add_u32 s{sT0}, s{sT0}, {L['PBUF']}")
        e(f"v_and_b32 v{vD}, 1, v{vT1}")
        e(f"v_mul_u32_u24 v{vD}, 576, v{vD}")
        e(f"v_lshrrev_b32 v{vD+1}, 1, v{vT1}")
        e(f"v_lshl_add_u32 v{vD+1}, v{vT0}, 1, v{vD+1}")
        e(f"v_lshl_add_u32 v{vD}, v{vD+1}, 2, v{vD}")
        e(f"v_add_u32 v{vPW}, s{sT0}, v{vD}")
        e(f"v_lshrrev_b32 v{vD}, 3, v{vT0}")
        e(f"v_lshl_add_u32 v{vD}, v{vD}, 2, v{vT1}")
        e(f"v_mul_u32_u24 v{vD}, 144, v{vD}")
        e(f"v_add_u32 v{vPR}, s{sT0}, v{vD}")

    def vreg_of(self, blk, t, pas):
        nret = (256 - self.cfg.NWORK) // 4
        if blk in ("A", "Q"):
            return f"a[{4*t}:{4*t+3}]"
        if t < nret:
            r = self.cfg.NWORK + 4 * t
            return f"v[{r}:{r+3}]"
        r = 4 * (t - nret)
        return f"a[{r}:{r+3}]"

    def k_desc(self, blk, n, slot):
        return dict(kind="K", blk=blk, n=n, slot=slot, tag=("K", blk, n), need=("slot", slot, blk, n), cnt=4, q=None)

    def split_k(self, ls):
        if not self.cfg.KSPLIT:
            return ls
        out = []
        for d in ls:
            if d["kind"] == "K":
                for q in range(4):
                    x = dict(d); x["q"] = q; x["cnt"] = 1
                    x["tag"] = d["tag"] if q == 3 else ("Kq", d["blk"], d["n"], q)
                    out.append(x)
            else:
                out.append(d)
        return out

    def v_desc(self, blk, t, need=None):
        return dict(kind="V", blk=blk, t=t, tag=("V", blk, t), need=need, cnt=1)

    def issue_desc(self, d, pas):
        cfg = self.cfg
        if d["kind"] == "K":
            tile = d["n"] + (0 if d["blk"] == "A" else 16)
            self.e(f"s_add_u32 m0, s{sRING}, {d['slot']*4096}")
            self.e(f"s_mov_b32 s{sKO}, {tile*4096}")
            pol = cfg.KPOL
            if d["blk"] == "A" and 8 <= d["n"] < 8 + cfg.KRET and pas == 1:
                pol = cfg.RETPOL
            if d["blk"] == "B" and d["n"] < cfg.KRETB and pas == 1:
                pol = cfg.RETPOL
            if pas == 2:
                pol = cfg.P2POL
            for t in (range(4) if d["q"] is None else [d["q"]]):
                self.vm(f"buffer_load_dwordx4 v{vKD+t}, s[{sK}:{sK+3}], s{sKO} offen offset:{t*1024} {pol} lds",
                        tag=d["tag"] if t == 3 else None)
        elif d["kind"] == "V":
            gt = d["t"] + (0 if d["blk"] == "A" else 64)
            base = (gt >> 2) * 4096
            if getattr(self, "_vo", None) != base:
                self.e(f"s_mov_b32 s{sVO}, {base}")
                self._vo = base
            pol = cfg.VPOL
            nret = (256 - cfg.NWORK) // 4
            if d["blk"] == "B" and d["t"] >= nret and d["t"] >= 64 - cfg.VRET and pas == 1:
                pol = cfg.RETPOL
            if pas == 2:
                pol = cfg.P2VPOL
            self.vm(f"buffer_load_dwordx4 {self.vreg_of(d['blk'], d['t'], pas)}, v{vVOFF}, s[{sV}:{sV+3}], s{sVO} offen offset:{(gt&3)*1024} {pol}",
                    tag=d["tag"])
        elif d["kind"] == "Q":
            t = d["t"]
            if t > 0:
                self.e(f"s_add_u32 s{sQO}, s{sQO}, 32768")
            self.vm(f"buffer_load_dwordx4 {self.vreg_of('Q', t, pas)}, v{vQF}, s[{sW}:{sW+3}], s{sQO} offen", tag=d["tag"])
        elif d["kind"] == "F":
            d["fn"]()

    def pump(self, pas, limit=None):
        n = 0
        while self.pending:
            d = self.pending[0]
            if d["need"] is not None and d["need"] not in self.ready:
                break
            if self.vm_outstanding() + d["cnt"] > self.cap:
                break
            if limit is not None and n + d["cnt"] > limit:
                break
            self.pending.pop(0)
            self.throttle(d)
            self.issue_desc(d, pas)
            n += d["cnt"]

    def force_issued(self, tag, pas):
        while tag not in self.vm_tags or self.vm_tags[tag] < 0:
            d = self.pending[0]
            assert d["need"] is None or d["need"] in self.ready, ("not ready", d, tag)
            if self.vm_outstanding() + d["cnt"] > self.cap:
                target = self.vm_n + d["cnt"] - self.cap
                self.e(f"s_waitcnt vmcnt({self.vm_n - target})")
                self.vm_done = max(self.vm_done, target)
            self.pending.pop(0)
            self.throttle(d)
            self.issue_desc(d, pas)

    def throttle(self, d):
        cfg = self.cfg
        if not cfg.THR or not self.thr_on or d["kind"] not in ("K", "V"):
            return
        n1 = max(cfg.CAPT1 - d["cnt"], 0)
        if self.vm_outstanding() <= n1 and (not cfg.T2 or self.vm_outstanding() <= max(cfg.CAPT2 - d["cnt"], 0)):
            return
        l = self.lab("Lthr")
        self.e(f"s_cmp_eq_u32 s{sLVL}, 0")
        self.e(f"s_cbranch_scc1 {l}")
        self.e(f"s_waitcnt vmcnt({n1})")
        if cfg.T2:
            n2 = max(cfg.CAPT2 - d["cnt"], 0)
            self.e(f"s_cmp_eq_u32 s{sLVL}, 1")
            self.e(f"s_cbranch_scc1 {l}")
            self.e(f"s_waitcnt vmcnt({n2})")
        self.label(l)

    def ck_plan(self, spec, phase):
        hooks = {}
        if self.cfg.THR == 2:
            self.thr_on = phase in (self.cfg.PART1 if spec is self.cfg.CK1 else self.cfg.PART2).split(",")
        if self.cfg.THR != 1:
            return hooks
        for item in spec.split(","):
            if not item.startswith(phase):
                continue
            a, b = item[2:].split(":")
            cid = self.nck; self.nck += 1
            reg = vT0 if phase[0] == "K" else vD
            hooks.setdefault(int(a), []).append(lambda cid=cid, reg=reg: self.ck_issue(cid, reg))
            hooks.setdefault(int(b), []).insert(0, lambda cid=cid, reg=reg: self.ck_use(cid, reg))
        return {k: (lambda fs=v: [f() for f in fs]) for k, v in hooks.items()}

    def ck_issue(self, cid, reg):
        e = self.e
        assert cid < 32
        l = self.lab("Lck")
        e(f"s_cmp_lg_u32 s{sWAVE}, 0")
        e(f"s_cbranch_scc1 {l}")
        e("s_mov_b64 exec, 1")
        e(f"v_mov_b32 v{vCK}, -1")
        self.vm(f"buffer_load_dword v{vCK}, off, s[{sCK}:{sCK+3}], 0 offset:{128 + 4*cid} sc1", cond=True)
        e(f"v_mov_b32 v{reg+1}, 1")
        self.vm(f"buffer_atomic_add v{reg+1}, off, s[{sCK}:{sCK+3}], 0 offset:{128 + 4*cid} sc1", cond=True)
        e("s_mov_b64 exec, -1")
        self.label(l)
        self.thr_on = True

    def ck_use(self, cid, reg):
        cfg, e = self.cfg, self.e
        l = self.lab("Lcu")
        e(f"s_cmp_lg_u32 s{sWAVE}, 0")
        e(f"s_cbranch_scc1 {l}")
        e(f"v_readfirstlane_b32 s{sRK}, v{vCK}")
        e(f"s_cmp_eq_u32 s{sRK}, -1")
        e(f"s_cbranch_scc1 {l}")
        e(f"s_cmp_lt_u32 s{sRK}, {cfg.T1}")
        e(f"s_cselect_b32 s{sLVL}, 1, 0")
        if cfg.T2:
            e(f"s_cmp_lt_u32 s{sRK}, {cfg.T2}")
            e(f"s_cselect_b32 s{sLVL}, 2, s{sLVL}")
        e(f"v_mov_b32 v{reg}, {self.L['LVL']}")
        e(f"v_mov_b32 v{reg+1}, s{sLVL}")
        e(f"ds_write_b32 v{reg}, v{reg+1}")
        self.label(l)

    def lvl_read(self, reg):
        if self.cfg.THR != 1 or not self.thr_on:
            return
        self.e(f"v_mov_b32 v{reg}, {self.L['LVL']}")
        self.ds(f"ds_read_b32 v{reg}, v{reg}")
        self.lvl_pending = reg

    def lvl_take(self):
        if self.lvl_pending is not None:
            self.e(f"v_readfirstlane_b32 s{sLVL}, v{self.lvl_pending}")
            self.lvl_pending = None

    def k_phase(self, tiles, pas, hooks=None):
        e = self.e

        def reads(i):
            blk, n, slot, resident, frees = tiles[i]
            if not resident:
                self.force_issued(("K", blk, n), pas)
                self.vm_wait(("K", blk, n))
            for s in range(4):
                self.ds(f"ds_read_b128 v[{vKF+4*s}:{vKF+4*s+3}], v{vKR+s} offset:{slot*4096}")

        def select(i):
            blk, n, slot, resident, frees = tiles[i]
            d = vD + 4 * (i & 1)
            e(f"s_lshl_b64 s[{sMK}:{sMK+1}], s[{sM0}:{sM0+1}], {n}")
            for r in range(4):
                e(f"v_cndmask_b32 v{vS+r}, v{vS+r}, v{d+r}, s[{sMK}:{sMK+1}]")

        reads(0)
        for i in range(len(tiles)):
            blk, n, slot, resident, frees = tiles[i]
            self.lg_wait_all()
            self.lvl_take()
            for tok in frees:
                self.ready.add(tok)
            d = vD + 4 * (i & 1)
            for s in range(4):
                c = "0" if s == 0 else f"v[{d}:{d+3}]"
                e(f"v_mfma_f32_16x16x32_bf16 v[{d}:{d+3}], v[{vKF+4*s}:{vKF+4*s+3}], v[{vQF+4*s}:{vQF+4*s+3}], {c}")
            if hooks and i in hooks:
                hooks[i]()
            self.pump(pas)
            if i + 1 < len(tiles):
                if (i & 1) == 0:
                    self.lvl_read(vT1)
                reads(i + 1)
            if i > 0:
                select(i - 1)
        select(len(tiles) - 1)

    def softmax(self, first):
        e = self.e
        a, b = vT0, vT1
        e(f"v_max3_f32 v{a}, v{vS}, v{vS+1}, v{vS+2}")
        e(f"v_max_f32 v{a}, v{a}, v{vS+3}")
        self.bfly_row("v_max_f32", [a])
        self.swap_reduce("v_max_f32", [a], [b], 16)
        self.swap_reduce("v_max_f32", [a], [b], 32)
        if first:
            e(f"v_mov_b32 v{vMR}, v{a}")
        else:
            e(f"v_max_f32 v{a}, v{a}, v{vMR}")
            e(f"v_sub_f32 v{b}, v{vMR}, v{a}")
            e(f"v_mul_f32 v{b}, s{sCS}, v{b}")
            e(f"v_exp_f32 v{b}, v{b}")
            e(f"v_mov_b32 v{vMR}, v{a}")
            for r in range(8):
                e(f"v_mul_f32 v{vO+r}, v{b}, v{vO+r}")
            e(f"v_mul_f32 v{vLR}, v{b}, v{vLR}")
        e(f"v_mul_f32 v{a}, s{sCS}, v{vMR}")
        for r in range(4):
            e(f"v_fma_f32 v{vS+r}, v{vS+r}, s{sCS}, -v{a}")
        for r in range(4):
            e(f"v_exp_f32 v{vS+r}, v{vS+r}")
        for r in range(4):
            e(f"v_cvt_pk_bf16_f32 v{vD+r}, v{vS+r}, v{vS+r}")
        for r in range(4):
            self.ds(f"ds_write_b32 v{vPW}, v{vD+r} offset:{r*144}")
        e(f"v_add_f32 v{vS}, v{vS}, v{vS+1}")
        e(f"v_add_f32 v{vS+2}, v{vS+2}, v{vS+3}")
        e(f"v_add_f32 v{vS}, v{vS}, v{vS+2}")
        if first:
            e(f"v_mov_b32 v{vLR}, v{vS}")
        else:
            e(f"v_add_f32 v{vLR}, v{vLR}, v{vS}")
        self.lg_wait_all()

    def v_phase(self, blk, pas, first, order, resident, frees, hooks):
        e = self.e
        groups = [order[i:i + 4] for i in range(0, len(order), 4)]
        for g in groups:
            assert g == list(range(g[0], g[0] + 4)) and g[0] % 4 == 0

        def pread(gi):
            p = vP0 if (gi & 1) == 0 else vP1
            self.ds(f"ds_read_b128 v[{p}:{p+3}], v{vPR} offset:{groups[gi][0]*4}", tag=("P", gi))

        def bbuild(pos, half):
            gi, k = pos // 4, pos % 4
            p = (vP0 if (gi & 1) == 0 else vP1) + k
            b = vB0 if (pos & 1) == 0 else vB1
            for jj in (2 * half, 2 * half + 1):
                e(f"v_and_b32 v{b+jj}, v{p}, v{vM+jj}")

        pread(0)
        self.lg_wait(("P", 0))
        if len(groups) > 1:
            pread(1)
        bbuild(0, 0); bbuild(0, 1)
        for pos, u in enumerate(order):
            if pos in hooks:
                hooks[pos]()
            b = vB0 if (pos & 1) == 0 else vB1
            nxt = pos + 1 < len(order)
            if nxt and (pos + 1) % 4 == 0:
                self.lg_wait(("P", (pos + 1) // 4))
                self.lvl_take()
            for half in range(2):
                t = 2 * u + half
                if not resident(t):
                    self.force_issued(("V", blk, t), pas)
                    self.vm_wait(("V", blk, t))
                if nxt:
                    bbuild(pos + 1, half)
                o = vO + 4 * half
                c = "0" if (first and pos == 0) else f"v[{o}:{o+3}]"
                e(f"v_mfma_f32_16x16x32_bf16 v[{o}:{o+3}], {self.vreg_of(blk, t, pas)}, v[{b}:{b+3}], {c}")
            if nxt and (pos + 1) % 4 == 0 and (pos + 1) // 4 + 1 < len(groups):
                if blk != "Q":
                    self.lvl_read(vD + 2)
                pread((pos + 1) // 4 + 1)
            for tok in frees.get(u, []):
                self.ready.add(tok)
            self.pump(pas)

    def w_dma(self, vtmp, cond=False, tag=None):
        e = self.e
        e(f"v_lshrrev_b32 v{vtmp}, 1, v{vLANE}")
        e(f"v_mul_lo_u32 v{vtmp}, v{vtmp}, s{sT1}")
        e(f"v_and_b32 v{vtmp+1}, 1, v{vLANE}")
        e(f"v_lshl_add_u32 v{vtmp}, v{vtmp+1}, 4, v{vtmp}")
        e(f"s_lshl_b32 s{sT3}, s{sT1}, 5")
        for i in range(4):
            e(f"s_add_u32 m0, s{sWB}, {i*1024}")
            if i > 0:
                e(f"s_add_u32 s{sT2}, s{sT2}, s{sT3}")
            self.vm(f"buffer_load_dwordx4 v{vtmp}, s[{sW}:{sW+3}], s{sT2} offen lds", tag=tag if i == 3 else None, cond=cond)

    def w_frags(self, dst, vtmp):
        e = self.e
        e(f"v_lshrrev_b32 v{vtmp}, 4, v{vLANE}")
        e(f"v_lshlrev_b32 v{vtmp}, 3, v{vtmp}")
        e(f"v_bfe_u32 v{vtmp+1}, v{vLANE}, 2, 2")
        e(f"v_add_u32 v{vtmp}, v{vtmp}, v{vtmp+1}")
        e(f"v_lshlrev_b32 v{vtmp}, 5, v{vtmp}")
        e(f"v_and_b32 v{vtmp+1}, 3, v{vLANE}")
        e(f"v_lshl_add_u32 v{vtmp}, v{vtmp+1}, 3, v{vtmp}")
        e(f"v_add_u32 v{vtmp}, s{sWB}, v{vtmp}")
        for s in range(4):
            self.ds(f"ds_read_b64_tr_b16 v[{dst+4*s}:{dst+4*s+1}], v{vtmp} offset:{s*1024}")
            self.ds(f"ds_read_b64_tr_b16 v[{dst+4*s+2}:{dst+4*s+3}], v{vtmp} offset:{s*1024+128}")

    def set_wo(self):
        e = self.e
        self.srd(sW, sWO, 4096 * 512 * 2)
        e(f"s_mov_b32 s{sT1}, 1024")
        if self.cfg.GY:
            e(f"s_and_b32 s{sT2}, s2, 7")
            e(f"s_lshl_b32 s{sT2}, s{sT2}, 19")
            e(f"s_lshl_b32 s{sT3}, s{sWAVE}, 17")
            e(f"s_add_u32 s{sT2}, s{sT2}, s{sT3}")
            e(f"s_lshr_b32 s{sT3}, s2, 3")
            e(f"s_lshl_b32 s{sT3}, s{sT3}, 5")
            e(f"s_add_u32 s{sT2}, s{sT2}, s{sT3}")
            return
        e(f"s_lshl_b32 s{sT2}, s{sH}, 17")
        e(f"s_lshl_b32 s{sT3}, s{sJ}, 7")
        e(f"s_add_u32 s{sT2}, s{sT2}, s{sT3}")
        e(f"s_lshl_b32 s{sT3}, s{sWAVE}, 5")
        e(f"s_add_u32 s{sT2}, s{sT2}, s{sT3}")

    def set_wq(self):
        e = self.e
        self.srd(sW, sWQ, 512 * 4096 * 2)
        e(f"s_mov_b32 s{sT1}, 8192")
        e(f"s_lshr_b32 s{sT2}, s{sJ}, 1")
        e(f"s_lshl_b32 s{sT2}, s{sT2}, 20")
        e(f"s_lshl_b32 s{sT3}, s{sH}, 8")
        e(f"s_add_u32 s{sT2}, s{sT2}, s{sT3}")
        e(f"s_and_b32 s{sT3}, s{sJ}, 1")
        e(f"s_lshl_b32 s{sT3}, s{sT3}, 7")
        e(f"s_add_u32 s{sT2}, s{sT2}, s{sT3}")
        e(f"s_lshl_b32 s{sT3}, s{sWAVE}, 5")
        e(f"s_add_u32 s{sT2}, s{sT2}, s{sT3}")

    def set_w1(self):
        e = self.e
        self.srd(sW, sW1, 512 * 1792 * 2)
        e(f"s_mov_b32 s{sT1}, 3584")
        e(f"s_mul_i32 s{sT2}, s{sWAVE}, {128*3584}")
        e(f"s_lshl_b32 s{sT3}, s2, 5")
        e(f"s_add_u32 s{sT2}, s{sT2}, s{sT3}")

    def stage1_dma(self):
        self.set_wo()
        self.w_dma(vT0, tag="wo")

    def stage2_dma(self):
        lf, lj = self.lab("Ls2"), self.lab("Ls2j")
        self.e(f"s_cmp_lt_u32 s2, {NF}")
        self.e(f"s_cbranch_scc1 {lf}")
        self.set_wq()
        self.e(f"s_branch {lj}")
        self.label(lf)
        self.set_w1()
        self.label(lj)
        self.w_dma(vT0, tag="w2nd")

    def last_block_hooks(self, pas):
        def h0():
            if pas == 1 and not self.cfg.NOARR:
                self.arrival_load()
            L = self.L
            self.vm_wait("wo")
            self.w_frags(vQF, vT0)
            self.bfly_row("v_add_f32", [vLR])
            self.swap_reduce("v_add_f32", [vLR], [vT0], 16)
            self.swap_reduce("v_add_f32", [vLR], [vT0], 32)
            self.e(f"s_lshl_b32 s{sT0}, s{sWAVE}, 3")
            self.e(f"s_add_u32 s{sT0}, s{sT0}, {L['ML']}")
            self.e(f"v_mov_b32 v{vT0}, s{sT0}")
            self.ds(f"ds_write_b64 v{vT0}, v[{vMR}:{vMR+1}]")
            self.lg_wait_all()
            self.stage2_dma()
        return h0

    def w2_prefetch(self):
        e = self.e
        self.srd(sW, sW2, 1792 * 512 * 2)
        e(f"v_lshlrev_b32 v9, 6, v{vLANE}")
        e(f"s_lshl_b32 s{sT0}, s2, 14")
        e(f"s_lshl_b32 s{sT1}, s{sWAVE}, 12")
        e(f"s_add_u32 s{sT0}, s{sT0}, s{sT1}")
        self.vm(f"buffer_load_dword v9, v9, s[{sW}:{sW+3}], s{sT0} offen")

    def pass1(self):
        cfg = self.cfg
        NR = cfg.NR
        assert NR == 8
        pas = 1
        self._vo = None
        kB = [("B", n, n % NR, False, [("slot", n % NR, "B", n + 8)] if n < 8 else [("slot", n % NR, "A", n)]) for n in range(16)]
        self.k_phase(kB, pas, self.ck_plan(cfg.CK1, "KB"))
        self.stamp(6)
        self.softmax(first=True)
        self.v_phase("B", pas, True, list(range(32)), lambda t: False,
                     {31: [("tmpfree",)]}, self.ck_plan(cfg.CK1, "VB"))
        self.stamp(7)
        kA = [("A", n, n % NR, False, [("slot", n % NR, "A", n - 8)]) for n in range(8, 16)] + \
             [("A", n, n, False, []) for n in range(8)]
        self.k_phase(kA, pas, self.ck_plan(cfg.CK1, "KA"))
        self.stamp(8)
        self.softmax(first=False)
        if self.capend: self.cap = self.capend
        hk = self.ck_plan(cfg.CK1, "VA")
        h0, h1 = self.last_block_hooks(1), hk.get(0)
        hk[0] = (lambda: (h0(), h1())) if h1 else h0
        if cfg.W2PF:
            hk[cfg.W2PF] = self.w2_prefetch
        self.v_phase("A", pas, False, list(range(32)), lambda t: False, {}, hk)
        assert not self.pending, self.pending
        if not cfg.NOARR:
            self.arrival_check()

    def pass1_list(self):
        cfg = self.cfg
        nret = (256 - cfg.NWORK) // 4
        wq = [dict(kind="Q", t=t, tag=("V", "Q", t), need=None, cnt=1) for t in range(32)]
        k0 = [self.k_desc("B", n, n) for n in range(8)]
        for d in k0:
            d["need"] = None
        ls, wq = wq[:cfg.QF], wq[cfg.QF:]
        while wq:
            if k0:
                ls.append(k0.pop(0))
            ls += wq[:cfg.QA]
            wq = wq[cfg.QA:]
        ls += k0
        vb = lambda t: self.v_desc("B", t, need=("qdone",) if t >= nret else None)
        ls += [vb(t) for t in range(cfg.INIT_V)]
        ls += [self.k_desc("B", n, n % 8) for n in range(8, 16)]
        ls += [vb(t) for t in range(cfg.INIT_V, 64)]
        ls += [self.k_desc("A", n, n % 8) for n in range(8, 16)]
        ls += [self.k_desc("A", n, n % 8) for n in range(0, 8)]
        ls += [dict(kind="F", fn=self.stage1_dma, need=None, cnt=4, tag="wo")]
        ntmp = 64 - nret
        ls += [self.v_desc("A", t, need=("tmpfree",) if t < ntmp else None) for t in range(64)]
        return self.split_k(ls)

    def pass2(self):
        cfg = self.cfg
        pas = 2
        nret = (256 - cfg.NWORK) // 4
        self._vo = None
        for k in list(self.vm_tags):
            if isinstance(k, tuple) and k[0] in ("K", "V"):
                del self.vm_tags[k]
        self.vm_tags.pop("wo", None); self.vm_tags.pop("w2nd", None)
        self.ready = set()
        ls = []
        ls += [self.k_desc("A", n, n % 8) for n in range(8, 16)]
        ls += [self.k_desc("B", n, n % 8) for n in range(0, 16)]
        ls += [dict(kind="F", fn=self.stage1_dma, need=None, cnt=4, tag="wo")]
        ls += [self.v_desc("B", t, need=("afree",)) for t in range(nret, 64)]
        self.pending = self.split_k(ls)
        kA = [("A", n, n, True, [("slot", n, "A", n + 8)]) for n in range(8)] + \
             [("A", n, n % 8, False, [("slot", n % 8, "B", n - 8)]) for n in range(8, 16)]
        self.thr_on = False
        if cfg.THR == 1:
            self.e(f"s_mov_b32 s{sLVL}, 0")
        self.k_phase(kA, pas, self.ck_plan(cfg.CK2, "KA"))
        self.stamp(38)
        self.softmax(first=True)
        self.v_phase("A", pas, True, list(range(32)), lambda t: True, {31: [("afree",)]}, self.ck_plan(cfg.CK2, "VA"))
        self.stamp(39)
        kB = [("B", n, n % 8, False, [("slot", n % 8, "B", n + 8)] if n < 8 else []) for n in range(16)]
        if self.capend: self.cap = self.capend
        self.k_phase(kB, pas, self.ck_plan(cfg.CK2, "KB"))
        self.stamp(40)
        self.softmax(first=False)
        hk = self.ck_plan(cfg.CK2, "VB")
        assert 0 not in hk
        hk[0] = self.last_block_hooks(2)
        if cfg.W2PF:
            hk[min(cfg.W2PF, 4)] = self.w2_prefetch
        self.v_phase("B", pas, False, list(range(32)), lambda t: t < nret, {}, hk)
        assert not self.pending, self.pending

    def prologue(self):
        cfg, L, e = self.cfg, self.L, self.e
        e("s_cmp_ge_u32 s2, 256")
        e("s_cbranch_scc1 L_exit")
        self.stamp(0)
        e("s_load_dwordx4 s[4:7], s[0:1], 8")
        e(f"s_load_dwordx2 s[{sX}:{sX+1}], s[0:1], 0")
        e(f"s_load_dwordx4 s[{sWQ}:{sWQ+3}], s[0:1], 24")
        e(f"s_load_dwordx2 s[{sT4}:{sT4+1}], s[0:1], 96")
        e(f"s_load_dwordx2 s[{sW1}:{sW1+1}], s[0:1], 48")
        e(f"s_load_dwordx2 s[{sB1}:{sB1+1}], s[0:1], 56")
        e(f"s_load_dwordx2 s[{sW2}:{sW2+1}], s[0:1], 64")
        e(f"s_load_dwordx2 s[{sB2}:{sB2+1}], s[0:1], 72")
        e(f"s_load_dwordx4 s[{sOUT}:{sOUT+3}], s[0:1], 80")
        e(f"v_lshrrev_b32 v{vT0}, 6, v0")
        e(f"v_and_b32 v{vLANE}, 63, v0")
        e(f"v_readfirstlane_b32 s{sWAVE}, v{vT0}")
        if cfg.XMAP:
            e(f"s_and_b32 s{sH}, s2, 7")
            e(f"s_lshl_b32 s{sH}, s{sH}, 2")
            e(f"s_bfe_u32 s{sJ}, s2, 0x20003")
            e(f"s_add_u32 s{sH}, s{sH}, s{sJ}")
            e(f"s_lshr_b32 s{sJ}, s2, 5")
        else:
            e(f"s_lshr_b32 s{sH}, s2, 3")
            e(f"s_and_b32 s{sJ}, s2, 7")
        e(f"s_lshr_b32 s{sB}, s{sJ}, 2")
        e(f"s_and_b32 s{sC}, s{sJ}, 3")
        e(f"s_lshl_b32 s{sBLK}, s{sH}, 3")
        e(f"s_add_u32 s{sBLK}, s{sBLK}, s{sJ}")
        e(f"s_lshl_b32 s{sBLK}, s{sBLK}, 14")
        e(f"s_lshl_b32 s{sBLKW}, s2, 14")
        e(f"s_mov_b32 s{sL}, 0")
        if cfg.CAPO:
            e(f"s_getreg_b32 s{sPAR}, hwreg(HW_REG_XCC_ID, 0, 1)")
        e(f"s_mul_i32 s{sRING}, s{sWAVE}, {cfg.NR*4096}")
        e(f"s_lshl_b32 s{sWB}, s{sWAVE}, 12")
        e(f"s_add_u32 s{sWB}, s{sWB}, {L['W']}")
        e(f"s_mov_b32 s{sM0}, 0x00010001"); e(f"s_mov_b32 s{sM0+1}, 0x00010001")
        e(f"s_mov_b32 s{sLT8}, 0x00ff00ff"); e(f"s_mov_b32 s{sLT8+1}, 0x00ff00ff")
        e(f"s_mov_b32 s{sN2}, 0x00030003"); e(f"s_mov_b32 s{sN2+1}, 0x00030003")
        e(f"s_mov_b32 s{sN3}, 0x00070007"); e(f"s_mov_b32 s{sN3+1}, 0x00070007")
        e(f"s_mov_b32 s{sCS}, {hex(f2u(SCALE))}")
        e(f"s_lshl_b32 s{sT0}, s{sB}, 5")
        e(f"s_add_u32 s{sT0}, s{sT0}, s{sH}")
        e(f"s_lshl_b32 s{sT0}, s{sT0}, 21")
        e(f"s_lshl_b32 s{sT1}, s{sC}, 19")
        e(f"s_add_u32 s{sT0}, s{sT0}, s{sT1}")
        e(f"s_lshl_b32 s{sT1}, s{sWAVE}, 17")
        e(f"s_add_u32 s{sT0}, s{sT0}, s{sT1}")
        e(f"v_lshlrev_b32 v{vVOFF}, 4, v{vLANE}")
        e(f"v_lshrrev_b32 v{vT1}, 4, v{vLANE}")
        e(f"v_lshlrev_b32 v{vT1}, 13, v{vT1}")
        e(f"v_and_b32 v{vT0}, 15, v{vLANE}")
        e(f"v_lshl_add_u32 v{vQF}, v{vT0}, 4, v{vT1}")
        e(f"s_lshl_b32 s{sQO}, s{sWAVE}, 20")
        e(f"s_lshl_b32 s{sT3}, s{sH}, 8")
        e(f"s_add_u32 s{sQO}, s{sQO}, s{sT3}")
        e("s_waitcnt lgkmcnt(0)")
        e(f"s_add_u32 s{sV}, s6, s{sT0}")
        e(f"s_addc_u32 s{sV+1}, s7, 0")
        e(f"s_and_b32 s{sV+1}, s{sV+1}, 0xffff")
        e(f"s_mov_b32 s{sV+2}, 131072")
        e(f"s_mov_b32 s{sV+3}, 0x20000")
        self.srd(sK, 4, 131072, add=sT0)
        self.srd(sWS, sT4, 256 * BLK + (1 << 20))
        if cfg.THR == 1:
            self.srd(sCK, sDBG, 256)
            e(f"s_mov_b32 s{sLVL}, 0")
        if cfg.THR == 2:
            e(f"s_getreg_b32 s{sLVL}, hwreg(HW_REG_XCC_ID, 0, 1)")
            e(f"s_xor_b32 s{sLVL}, s{sLVL}, 1")
        self.stamp(28)
        self.c("clear own hand-off slots")
        for r in range(4):
            e(f"v_mov_b32 v{vD+r}, -1")
        e(f"s_cmp_eq_u32 s{sWAVE}, 3")
        e(f"s_cselect_b32 s{sT1}, s{sBLKW}, s{sBLK}")
        e(f"s_lshl_b32 s{sT0}, s{sWAVE}, 10")
        e(f"s_add_u32 s{sT1}, s{sT0}, s{sT1}")
        self.vm(f"buffer_store_dwordx4 v[{vD}:{vD+3}], v{vVOFF}, s[{sWS}:{sWS+3}], s{sT1} offen sc1")
        e(f"s_add_u32 s{sT1}, s{sT1}, {LOFF}")
        self.vm(f"buffer_store_dwordx4 v[{vD}:{vD+3}], v{vVOFF}, s[{sWS}:{sWS+3}], s{sT1} offen sc1")
        lnf = self.lab("Lnf")
        e(f"s_cmp_lt_u32 s2, {NF}")
        e(f"s_cbranch_scc0 {lnf}")
        e(f"s_add_u32 s{sT0}, s{sT0}, s{sBLKW}")
        e(f"s_add_u32 s{sT0}, s{sT0}, {FP}")
        e(f"s_add_u32 s{sT1}, s{sT0}, {LOFF}")
        self.vm(f"buffer_store_dwordx4 v[{vD}:{vD+3}], v{vVOFF}, s[{sWS}:{sWS+3}], s{sT0} offen sc1", cond=True)
        self.vm(f"buffer_store_dwordx4 v[{vD}:{vD+3}], v{vVOFF}, s[{sWS}:{sWS+3}], s{sT1} offen sc1", cond=True)
        self.label(lnf)
        self.srd(sW, sX, 2048)
        lnr = self.lab("Lnr")
        e(f"s_cmp_ge_u32 s2, {R0}")
        e(f"s_cbranch_scc0 {lnr}")
        e(f"s_sub_u32 s{sT0}, s2, {R0}")
        e(f"s_lshl_b32 s{sT0}, s{sT0}, 6")
        e(f"v_and_b32 v{vT0}, 7, v{vLANE}")
        e(f"v_lshlrev_b32 v{vT0}, 3, v{vT0}")
        self.vm(f"buffer_load_dwordx2 v[{vO}:{vO+1}], v{vT0}, s[{sW}:{sW+3}], s{sT0} offen", cond=True)
        self.label(lnr)
        e(f"s_lshl_b32 s{sT0}, s{sB}, 10")
        self.vm(f"buffer_load_dwordx4 v[{vS}:{vS+3}], v{vVOFF}, s[{sW}:{sW+3}], s{sT0} offen", tag="xrow")
        self.srd(sW, sWQ, 512 * 4096 * 2)
        self.pending = self.pass1_list()
        self.cap = cfg.CAP0
        self._vo = None
        self.stamp(29)
        self.pump(1, limit=cfg.QF)
        self.stamp(30)
        self.consts()
        self.pump(1)
        self.stamp(1)
        e(f"v_and_b32 v{vD}, 31, v{vLANE}")
        e(f"v_lshlrev_b32 v{vD}, 3, v{vD}")
        e(f"v_add_u32 v{vD}, {L['XQ']+512}, v{vD}")
        e(f"v_mov_b32 v{vD+2}, 0x3f803f80"); e(f"v_mov_b32 v{vD+3}, 0x3f803f80")
        self.ds(f"ds_write_b64 v{vD}, v[{vD+2}:{vD+3}]")
        self.vm_wait("xrow")
        self.stamp(3)
        x = vD
        for r in range(4):
            e(f"v_lshlrev_b32 v{x+2*r}, 16, v{vS+r}")
            e(f"v_and_b32 v{x+2*r+1}, 0xffff0000, v{vS+r}")
        e(f"v_add_f32 v{vMR}, v{x}, v{x+1}")
        e(f"v_mul_f32 v{vLR}, v{x}, v{x}")
        e(f"v_fmac_f32 v{vLR}, v{x+1}, v{x+1}")
        for r in range(2, 8):
            e(f"v_add_f32 v{vMR}, v{vMR}, v{x+r}")
            e(f"v_fmac_f32 v{vLR}, v{x+r}, v{x+r}")
        lnr2 = self.lab("Lnr2")
        e(f"s_cmp_ge_u32 s2, {R0}")
        e(f"s_cbranch_scc0 {lnr2}")
        e(f"v_lshlrev_b32 v{vO+4}, 16, v{vO}")
        e(f"v_and_b32 v{vO+5}, 0xffff0000, v{vO}")
        e(f"v_lshlrev_b32 v{vO+6}, 16, v{vO+1}")
        e(f"v_and_b32 v{vO+7}, 0xffff0000, v{vO+1}")
        e(f"v_and_b32 v{vT0}, 7, v{vLANE}")
        e(f"v_lshlrev_b32 v{vT0}, 4, v{vT0}")
        e(f"v_add_u32 v{vT0}, {L['XRES']}, v{vT0}")
        e(f"ds_write_b128 v{vT0}, v[{vO+4}:{vO+7}]")
        self.label(lnr2)
        self.bfly_row("v_add_f32", [vMR, vLR])
        self.swap_reduce("v_add_f32", [vMR, vLR], [vT0, vT1], 16)
        self.swap_reduce("v_add_f32", [vMR, vLR], [vT0, vT1], 32)
        self.mean_rstd(vMR, vLR, None)
        for r in range(8):
            e(f"v_sub_f32 v{x+r}, v{x+r}, v{vMR}")
        for r in range(8):
            e(f"v_mul_f32 v{x+r}, v{vLR}, v{x+r}")
        for r in range(8):
            e(f"v_cvt_pk_bf16_f32 v{x+r}, v{x+r}, v{x+r}")
        e(f"s_mul_i32 s{sT0}, s{sWAVE}, 1152")
        e(f"s_add_u32 s{sT0}, s{sT0}, {L['PBUF']}")
        e(f"v_and_b32 v{vT0}, 15, v{vLANE}")
        e(f"v_lshlrev_b32 v{vT0}, 2, v{vT0}")
        e(f"v_add_u32 v{vT0}, s{sT0}, v{vT0}")
        e(f"s_lshl_b32 s{sT0}, s{sWAVE}, 4")
        e(f"s_mov_b64 s[{sMK}:{sMK+1}], 0xffff")
        e(f"s_lshl_b64 s[{sMK}:{sMK+1}], s[{sMK}:{sMK+1}], s{sT0}")
        e(f"s_mov_b64 exec, s[{sMK}:{sMK+1}]")
        for r in range(8):
            self.ds(f"ds_write_b32 v{vT0}, v{x+r} offset:{r*144}")
        e("s_mov_b64 exec, -1")
        self.lg_wait_all()
        self.stamp(4)
        qh = {1: lambda: self.stamp(24), 4: lambda: self.stamp(25), 8: lambda: self.stamp(26), 12: lambda: self.stamp(27)} if cfg.PROF else {}
        self.v_phase("Q", 1, True, list(range(16)), lambda t: False, {15: [("qdone",)]}, qh)
        self.cap = cfg.CAP
        self.stamp(2)
        t = vS
        e(f"v_and_b32 v{vT0}, 15, v{vLANE}")
        e(f"v_lshrrev_b32 v{vT1}, 3, v{vT0}")
        e(f"s_lshl_b32 s{sT0}, s{sWAVE}, 1")
        e(f"v_add_u32 v{vT1}, s{sT0}, v{vT1}")
        e(f"v_lshlrev_b32 v{vT1}, 9, v{vT1}")
        e(f"v_and_b32 v{vT0}, 7, v{vT0}")
        e(f"v_lshl_add_u32 v{vT1}, v{vT0}, 2, v{vT1}")
        e(f"v_lshrrev_b32 v{vT0}, 4, v{vLANE}")
        e(f"v_lshl_add_u32 v{vT1}, v{vT0}, 7, v{vT1}")
        e(f"v_add_u32 v{vT1}, {L['RED']}, v{vT1}")
        for r in range(4):
            e(f"v_cndmask_b32 v{t+r}, v{vO+4+r}, v{vO+r}, s[{sLT8}:{sLT8+1}]")
        for r in range(4):
            e(f"ds_write_b32 v{vT1}, v{t+r} offset:{r*32}")
        e(f"s_and_b32 s{sT0}, s{sWAVE}, 1")
        e(f"s_lshl_b32 s{sT0}, s{sT0}, 8")
        e(f"v_lshlrev_b32 v{vT0}, 2, v{vLANE}")
        e(f"v_add_u32 v{vT0}, s{sT0}, v{vT0}")
        e(f"v_lshrrev_b32 v{vT1}, 1, v{vT0}")
        e(f"v_add_u32 v{vT1}, {L['QBUF']}, v{vT1}")
        e(f"v_add_u32 v{vT0}, {L['RED']}, v{vT0}")
        e("s_waitcnt lgkmcnt(0)")
        e("s_barrier")
        t = vD
        for p in range(8):
            e(f"ds_read_b32 v{t+p}, v{vT0} offset:{p*512}")
        la = self.lab("Larr")
        e(f"s_cmp_lg_u32 s{sWAVE}, 0")
        e(f"s_cbranch_scc1 {la}")
        if cfg.NOARR:
            e(f"s_branch {la}")
        if cfg.THR == 1:
            e(f"v_mov_b32 v{vS}, {L['LVL']}")
            e(f"v_mov_b32 v{vS+1}, 0")
            e(f"ds_write_b32 v{vS}, v{vS+1}")
        if True:
            self.srd(sW, sDBG, 256)
            e(f"s_lshl_b32 s{sT1}, s{sH}, 2")
            e(f"v_mov_b32 v{vS}, s{sT1}")
            if cfg.LOC:
                e(f"s_getreg_b32 s{sT2}, hwreg(HW_REG_XCC_ID, 0, 4)")
                e(f"s_mul_i32 s{sT3}, s{sT2}, s{sT2}")
                e(f"s_lshl_b32 s{sT3}, s{sT3}, 16")
                e(f"s_lshl_b32 s{sT2}, s{sT2}, 8")
                e(f"s_add_u32 s{sT2}, s{sT2}, s{sT3}")
                e(f"s_add_u32 s{sT2}, s{sT2}, 1")
                e(f"v_mov_b32 v{vS+1}, s{sT2}")
                e(f"s_lshl_b32 s{sLOC}, s{sT2}, 3")
            else:
                e(f"v_mov_b32 v{vS+1}, 1")
            e("s_mov_b64 exec, 1")
            self.vm(f"buffer_atomic_add v{vS+1}, v{vS}, s[{sW}:{sW+3}], 0 offen sc1", cond=True)
            e("s_mov_b64 exec, -1")
        self.label(la)
        e("s_waitcnt lgkmcnt(0)")
        for p in range(0, 8, 2):
            e(f"v_add_f32 v{t+p}, v{t+p}, v{t+p+1}")
        e(f"v_add_f32 v{t}, v{t}, v{t+2}")
        e(f"v_add_f32 v{t+4}, v{t+4}, v{t+6}")
        e(f"v_add_f32 v{t}, v{t}, v{t+4}")
        e(f"v_cvt_pk_bf16_f32 v{t}, v{t}, v{t}")
        e(f"ds_write_b16 v{vT1}, v{t}")
        e(f"v_and_b32 v{vT0}, 48, v{vLANE}")
        e(f"v_add_u32 v{vT0}, {L['QBUF']}, v{vT0}")
        e("s_waitcnt lgkmcnt(0)")
        e("s_barrier")
        for s in range(4):
            e(f"ds_read_b128 v[{vQF+4*s}:{vQF+4*s+3}], v{vT0} offset:{s*64}")
        e("s_waitcnt lgkmcnt(0)")
        self.stamp(5)

    def arrival_load(self):
        e = self.e
        l = self.lab("Lal")
        e(f"s_cmp_lg_u32 s{sWAVE}, 0")
        e(f"s_cbranch_scc1 {l}")
        self.srd(sW, sDBG, 256)
        if True:
            e(f"v_and_b32 v{vS+1}, 31, v{vLANE}")
            e(f"v_lshlrev_b32 v{vS+1}, 2, v{vS+1}")
        self.vm(f"buffer_load_dword v{vS}, v{vS+1}, s[{sW}:{sW+3}], 0 offen sc1", cond=True)
        self.label(l)

    def arrival_check(self):
        e = self.e
        l = self.lab("Lac")
        e(f"s_cmp_lg_u32 s{sWAVE}, 0")
        e(f"s_cbranch_scc1 {l}")
        e("s_waitcnt vmcnt(0)")

        def missing():
            if False:
                e(f"v_subrev_u32 v{vS+2}, 0x01010101, v{vS}")
                e(f"v_not_b32 v{vS+3}, v{vS}")
                e(f"v_and_b32 v{vS+2}, v{vS+2}, v{vS+3}")
                e(f"v_and_b32 v{vS+2}, 0x80808080, v{vS+2}")
                e(f"v_cmp_ne_u32 vcc, 0, v{vS+2}")
            elif self.cfg.LOC:
                e(f"v_and_b32 v{vS+2}, 0xff, v{vS}")
                e(f"v_cmp_gt_u32 vcc, 8, v{vS+2}")
            else:
                e(f"v_cmp_gt_u32 vcc, 8, v{vS}")
        missing()
        l2 = self.lab("Lac2") if self.cfg.LOC else l
        e(f"s_cbranch_vccz {l2}")
        self.srd(sW, sDBG, 256)
        lp = self.poll_begin()
        e(f"buffer_load_dword v{vS}, v{vS+1}, s[{sW}:{sW+3}], 0 offen sc1")
        e("s_waitcnt vmcnt(0)")
        missing()
        self.poll_end(lp)
        if self.cfg.LOC:
            self.label(l2)
            if self.cfg.GY:
                e(f"v_cmp_eq_u32 vcc, s{sLOC}, v{vS}")
                e(f"s_and_b32 s{sT0}, s{sH}, 28")
                e(f"s_lshr_b32 s{sT0}, vcc_lo, s{sT0}")
                e(f"s_and_b32 s{sT0}, s{sT0}, 15")
                e(f"s_cmp_eq_u32 s{sT0}, 15")
            else:
                e(f"v_readlane_b32 s{sT0}, v{vS}, s{sH}")
                e(f"s_cmp_eq_u32 s{sT0}, s{sLOC}")
            e(f"s_cselect_b32 s{sT0}, 1, 0")
            e(f"v_mov_b32 v{vS+2}, {self.L['LOC']}")
            e(f"v_mov_b32 v{vS+3}, s{sT0}")
            e(f"ds_write_b32 v{vS+2}, v{vS+3}")
        self.label(l)

    def loc_store(self, *ins):
        e = self.e
        if not self.cfg.LOC:
            for i in ins:
                e(i + " sc1")
            return
        lg, lj = self.lab("Lsg"), self.lab("Lsj")
        e(f"s_cmp_eq_u32 s{sLOC}, 0")
        e(f"s_cbranch_scc1 {lg}")
        for i in ins:
            e(i)
        e(f"s_branch {lj}")
        self.label(lg)
        for i in ins:
            e(i + " sc1")
        self.label(lj)

    def stats_partial(self, x):
        e = self.e
        e(f"v_add_f32 v{vMR}, v{x}, v{x+1}")
        e(f"v_mul_f32 v{vLR}, v{x}, v{x}")
        e(f"v_add_f32 v{vMR}, v{vMR}, v{x+2}")
        e(f"v_fmac_f32 v{vLR}, v{x+1}, v{x+1}")
        e(f"v_add_f32 v{vMR}, v{vMR}, v{x+3}")
        e(f"v_fmac_f32 v{vLR}, v{x+2}, v{x+2}")
        e(f"v_fmac_f32 v{vLR}, v{x+3}, v{x+3}")
        self.bfly_row("v_add_f32", [vMR, vLR])
        self.swap_reduce("v_add_f32", [vMR, vLR], [vT0, vT1], 16)

    def qe(self):
        cfg, L, e = self.cfg, self.L, self.e
        self.label("L_QE")
        e("s_barrier")
        self.stamp(34)
        e(f"v_and_b32 v{vT0}, 15, v{vLANE}")
        e(f"v_min_u32 v{vT1}, 2, v{vT0}")
        e(f"v_lshlrev_b32 v{vT1}, 8, v{vT1}")
        e(f"v_and_b32 v{vO}, 48, v{vLANE}")
        e(f"v_add_u32 v{vT1}, v{vT1}, v{vO}")
        e(f"v_add_u32 v{vT1}, {L['XQ']}, v{vT1}")
        e(f"v_lshlrev_b32 v{vT0}, 8, v{vT0}")
        e(f"v_add_u32 v{vT0}, v{vT0}, v{vO}")
        for s in range(4):
            e(f"ds_read_b128 v[{vD+4*s}:{vD+4*s+3}], v{vT1} offset:{s*64}")
        e(f"s_lshl_b32 s{sT0}, s{sWAVE}, 6")
        e(f"s_add_u32 s{sT0}, s{sT0}, s{sBLK}")
        e(f"s_add_u32 s{sT0}, s{sT0}, s{sL}")
        e("s_waitcnt lgkmcnt(0)")
        d = vO + 4
        for s in range(4):
            c = "0" if s == 0 else f"v[{d}:{d+3}]"
            e(f"v_mfma_f32_16x16x32_bf16 v[{d}:{d+3}], v[{vKF+4*s}:{vKF+4*s+3}], v[{vD+4*s}:{vD+4*s+3}], {c}")
        e(f"s_mov_b64 exec, s[{sN3}:{sN3+1}]")
        self.loc_store(f"buffer_store_dwordx4 v[{d}:{d+3}], v{vT0}, s[{sWS}:{sWS+3}], s{sT0} offen offset:{QP}")
        e("s_mov_b64 exec, -1")
        e(f"s_cmp_lg_u32 s{sWAVE}, 0")
        e("s_cbranch_scc1 L_QE_wait")
        e(f"v_lshrrev_b32 v{vT0}, 5, v{vLANE}")
        e(f"v_lshlrev_b32 v{vT0}, 3, v{vT0}")
        e(f"s_add_u32 s{sT0}, s{sBLK}, s{sL}")
        e("s_mov_b32 exec_lo, 1"); e("s_mov_b32 exec_hi, 1")
        self.loc_store(f"buffer_store_dwordx2 v[{vMR}:{vMR+1}], v{vT0}, s[{sWS}:{sWS+3}], s{sT0} offen offset:{QST}")
        e("s_mov_b64 exec, -1")
        e(f"v_bfe_u32 v{vT0}, v{vLANE}, 4, 1")
        e(f"v_lshrrev_b32 v{vT1}, 5, v{vLANE}")
        e(f"v_lshl_add_u32 v{vT0}, v{vT1}, 1, v{vT0}")
        e(f"v_lshlrev_b32 v{vT0}, 14, v{vT0}")
        e(f"v_and_b32 v{vT1}, 15, v{vLANE}")
        e(f"v_lshl_add_u32 v{vT0}, v{vT1}, 4, v{vT0}")
        e(f"s_lshl_b32 s{sT0}, s{sH}, 17")
        e(f"s_add_u32 s{sT0}, s{sT0}, s{sL}")
        e(f"s_lshl_b32 s{sT1}, s{sB}, 8")
        e(f"s_add_u32 s{sT1}, s{sT1}, s{sT0}")
        e(f"s_add_u32 s{sT2}, s{sT1}, {4*BLK}")
        e(f"v_and_b32 v{vT1}, 3, v{vLANE}")
        e(f"v_lshlrev_b32 v{vT1}, 15, v{vT1}")
        e(f"s_lshl_b32 s{sT3}, s{sB}, 3")
        e(f"s_add_u32 s{sT3}, s{sT3}, s{sT0}")
        e(f"s_add_u32 s{sT4}, s{sT0}, 512")
        e(f"s_add_u32 s{sT5}, s{sT4}, {4*BLK}")
        cs = vD + 12
        lp = self.poll_begin()
        e(f"buffer_load_dwordx4 v[{vD}:{vD+3}], v{vT0}, s[{sWS}:{sWS+3}], s{sT1} offen offset:{QP} sc1")
        e(f"buffer_load_dwordx4 v[{vD+4}:{vD+7}], v{vT0}, s[{sWS}:{sWS+3}], s{sT2} offen offset:{QP} sc1")
        e(f"buffer_load_dwordx2 v[{vD+8}:{vD+9}], v{vT1}, s[{sWS}:{sWS+3}], s{sT3} offen offset:{QST} sc1")
        e(f"buffer_load_dwordx4 v[{cs}:{cs+3}], v{vT0}, s[{sWS}:{sWS+3}], s{sT4} offen offset:{QP} sc1")
        e(f"buffer_load_dwordx4 v[{vKF}:{vKF+3}], v{vT0}, s[{sWS}:{sWS+3}], s{sT5} offen offset:{QP} sc1")
        e("s_waitcnt vmcnt(0)")
        self.poll_check(list(range(vD, vD + 10)) + list(range(cs, cs + 4)) + list(range(vKF, vKF + 4)), vKF + 4)
        self.poll_end(lp)
        self.stamp(36)
        for r in range(4):
            e(f"v_add_f32 v{cs+r}, v{cs+r}, v{vKF+r}")
            e(f"v_add_f32 v{vD+r}, v{vD+r}, v{vD+4+r}")
        self.swap_reduce("v_add_f32", [cs + r for r in range(4)] + [vD + r for r in range(4)],
                         [vKF + r for r in range(4)] + [vD + 4 + r for r in range(4)], 32)
        s1, s2 = vD + 8, vD + 9
        for qp in ("[1,0,3,2]", "[2,3,0,1]"):
            for r in (s1, s2):
                e(f"v_add_f32_dpp v{r}, v{r}, v{r} quad_perm:{qp} row_mask:0xf bank_mask:0xf")
        self.mean_rstd(s1, s2, vD + 10)
        for r in range(4):
            e(f"v_fma_f32 v{vD+r}, -v{s1}, v{cs+r}, v{vD+r}")
        for r in range(4):
            e(f"v_mul_f32 v{vD+r}, v{s2}, v{vD+r}")
        e(f"v_cvt_pk_bf16_f32 v{vD+4}, v{vD}, v{vD+1}")
        e(f"v_cvt_pk_bf16_f32 v{vD+5}, v{vD+2}, v{vD+3}")
        e(f"v_and_b32 v{vT0}, 31, v{vLANE}")
        e(f"v_lshlrev_b32 v{vT0}, 3, v{vT0}")
        e(f"v_add_u32 v{vT0}, {L['QBUF']}, v{vT0}")
        e(f"ds_write_b64 v{vT0}, v[{vD+4}:{vD+5}]")
        self.label("L_QE_wait")
        e(f"v_and_b32 v{vT1}, 48, v{vLANE}")
        e(f"v_add_u32 v{vT1}, {L['QBUF']}, v{vT1}")
        e("s_waitcnt lgkmcnt(0)")
        e("s_barrier")
        for s in range(4):
            e(f"ds_read_b128 v[{vQF+4*s}:{vQF+4*s+3}], v{vT1} offset:{s*64}")
        e("s_waitcnt lgkmcnt(0)")
        self.stamp(37)

    def mean_rstd(self, s1, s2, t):
        e = self.e
        e(f"v_mul_f32 v{s1}, {hex(f2u(1/512))}, v{s1}")
        e(f"v_mul_f32 v{s2}, {hex(f2u(1/512))}, v{s2}")
        e(f"v_fma_f32 v{s2}, -v{s1}, v{s1}, v{s2}")
        e(f"v_max_f32 v{s2}, 0, v{s2}")
        e(f"v_add_f32 v{s2}, {hex(f2u(1e-5))}, v{s2}")
        e(f"v_rsq_f32 v{s2}, v{s2}")

    def tail(self):
        cfg, L, e = self.cfg, self.L, self.e
        self.label("L_TAIL")
        self.stamp(9, True)
        t = vD
        e(f"v_and_b32 v{vT0}, 15, v{vLANE}")
        e(f"v_lshrrev_b32 v{vT1}, 3, v{vT0}")
        e(f"s_lshl_b32 s{sT0}, s{sWAVE}, 1")
        e(f"v_add_u32 v{vT1}, s{sT0}, v{vT1}")
        e(f"v_lshlrev_b32 v{vT1}, 9, v{vT1}")
        e(f"v_and_b32 v{vT0}, 7, v{vT0}")
        e(f"v_lshl_add_u32 v{vT1}, v{vT0}, 2, v{vT1}")
        e(f"v_lshrrev_b32 v{vT0}, 4, v{vLANE}")
        e(f"v_lshl_add_u32 v{vT1}, v{vT0}, 7, v{vT1}")
        e(f"v_add_u32 v{vT1}, {L['RED']}, v{vT1}")
        for r in range(4):
            e(f"v_cndmask_b32 v{t+r}, v{vO+4+r}, v{vO+r}, s[{sLT8}:{sLT8+1}]")
        for r in range(4):
            e(f"ds_write_b32 v{vT1}, v{t+r} offset:{r*32}")
        dv = 2
        e(f"s_and_b32 s{sT0}, s{sWAVE}, 1")
        e(f"s_lshl_b32 s{sT0}, s{sT0}, 8")
        e(f"v_lshlrev_b32 v{dv}, 2, v{vLANE}")
        e(f"v_add_u32 v{dv}, s{sT0}, v{dv}")
        e(f"v_add_u32 v{vT0}, {L['RED']}, v{dv}")
        e(f"v_mov_b32 v{vT1}, {L['ML']}")
        e("s_waitcnt lgkmcnt(0)")
        e("s_barrier")
        for p in range(8):
            e(f"ds_read_b32 v{t+p}, v{vT0} offset:{p*512}")
        e(f"ds_read_b128 v[{vS}:{vS+3}], v{vT1}")
        e(f"ds_read_b128 v[{vO}:{vO+3}], v{vT1} offset:16")
        if cfg.LOC:
            e(f"ds_read_b32 v{vO+6}, v{vT1} offset:{L['LOC'] - L['ML']}")
        e(f"s_add_u32 s{sT0}, s{sBLK}, s{sL}")
        e("s_waitcnt lgkmcnt(0)")
        if cfg.LOC:
            e(f"v_readfirstlane_b32 s{sLOC}, v{vO+6}")
        m = [vS, vS + 2, vO, vO + 2]; l = [vS + 1, vS + 3, vO + 1, vO + 3]
        M = vO + 4
        e(f"v_max3_f32 v{M}, v{m[0]}, v{m[1]}, v{m[2]}")
        e(f"v_max_f32 v{M}, v{M}, v{m[3]}")
        for w in range(4):
            e(f"v_sub_f32 v{m[w]}, v{m[w]}, v{M}")
        for w in range(4):
            e(f"v_mul_f32 v{m[w]}, s{sCS}, v{m[w]}")
        for w in range(4):
            e(f"v_exp_f32 v{m[w]}, v{m[w]}")
        for w in range(4):
            e(f"v_add_f32 v{t+2*w}, v{t+2*w}, v{t+2*w+1}")
        e(f"v_mul_f32 v{t}, v{m[0]}, v{t}")
        e(f"v_mul_f32 v{M+1}, v{m[0]}, v{l[0]}")
        for w in range(1, 4):
            e(f"v_fmac_f32 v{t}, v{m[w]}, v{t+2*w}")
            e(f"v_fmac_f32 v{M+1}, v{m[w]}, v{l[w]}")
        lsk = self.lab("Lop")
        e(f"s_cmp_ge_u32 s{sWAVE}, 2")
        e(f"s_cbranch_scc1 {lsk}")
        self.loc_store(f"buffer_store_dword v{t}, v{dv}, s[{sWS}:{sWS+3}], s{sT0} offen offset:{OP}")
        e(f"s_cmp_lg_u32 s{sWAVE}, 0")
        e(f"s_cbranch_scc1 {lsk}")
        e(f"s_mov_b64 s[{sEX}:{sEX+1}], exec")
        e("s_mov_b64 exec, 1")
        self.loc_store(f"buffer_store_dwordx2 v[{M}:{M+1}], off, s[{sWS}:{sWS+3}], s{sT0} offset:{OP+512}")
        e(f"s_mov_b64 exec, s[{sEX}:{sEX+1}]")
        self.label(lsk)
        self.stamp(10, True)
        e("s_waitcnt vmcnt(0)")
        self.w_frags(vKF, vT0)
        lnf = self.lab("Lnf")
        e(f"s_cmp_lt_u32 s2, {NF}")
        e(f"s_cbranch_scc0 {lnf}")
        e(f"v_mov_b32 v{t}, 0x3f803f80")
        for r in range(1, 4):
            e(f"v_mov_b32 v{t+r}, v{t}")
        e("s_waitcnt lgkmcnt(0)")
        for s in range(4):
            c = "0" if s == 0 else f"v[{vO}:{vO+3}]"
            e(f"v_mfma_f32_16x16x32_bf16 v[{vO}:{vO+3}], v[{vKF+4*s}:{vKF+4*s+3}], v[{t}:{t+3}], {c}")
        e(f"s_lshl_b32 s{sT0}, s{sWAVE}, 6")
        e(f"s_add_u32 s{sT0}, s{sT0}, {L['CS1P']}")
        e(f"v_and_b32 v{vT0}, 48, v{vLANE}")
        e(f"v_add_u32 v{vT0}, s{sT0}, v{vT0}")
        e(f"ds_write_b128 v{vT0}, v[{vO}:{vO+3}]")
        self.label(lnf)
        e("s_waitcnt lgkmcnt(0)")
        if cfg.GY:
            self.stage_a_group()
            self.roles()
            return
        self.c("stage A")
        e(f"s_lshr_b32 s{sT0}, s{sWAVE}, 1")
        e(f"s_lshl_b32 s{sT0}, s{sT0}, 2")
        e(f"s_lshl_b32 s{sT1}, s{sH}, 3")
        e(f"s_add_u32 s{sT0}, s{sT0}, s{sT1}")
        e(f"s_lshl_b32 s{sT0}, s{sT0}, 14")
        e(f"s_add_u32 s{sT0}, s{sT0}, s{sL}")
        e(f"s_add_u32 s{sT1}, s{sT0}, {BLK}")
        e(f"s_add_u32 s{sT2}, s{sT0}, {2*BLK}")
        e(f"s_add_u32 s{sT3}, s{sT0}, {3*BLK}")
        so = [sT0, sT1, sT2, sT3]
        lp = self.poll_begin()
        for c in range(4):
            e(f"buffer_load_dword v{t+c}, v{dv}, s[{sWS}:{sWS+3}], s{so[c]} offen offset:{OP} sc1")
        for c in range(4):
            e(f"buffer_load_dwordx2 v[{t+4+2*c}:{t+5+2*c}], off, s[{sWS}:{sWS+3}], s{so[c]} offset:{OP+512} sc1")
        e("s_waitcnt vmcnt(0)")
        self.poll_check(range(t, t + 12), vT0)
        self.poll_end(lp)
        self.stamp(11, True)
        m = [t + 4 + 2 * c for c in range(4)]; l = [t + 5 + 2 * c for c in range(4)]
        M = vO
        e(f"v_max3_f32 v{M}, v{m[0]}, v{m[1]}, v{m[2]}")
        e(f"v_max_f32 v{M}, v{M}, v{m[3]}")
        for c in range(4):
            e(f"v_sub_f32 v{m[c]}, v{m[c]}, v{M}")
        for c in range(4):
            e(f"v_mul_f32 v{m[c]}, s{sCS}, v{m[c]}")
        for c in range(4):
            e(f"v_exp_f32 v{m[c]}, v{m[c]}")
        e(f"v_lshrrev_b32 v{vT0}, 1, v{dv}")
        e(f"s_lshr_b32 s{sT0}, s{sWAVE}, 1")
        e(f"s_lshl_b32 s{sT0}, s{sT0}, 8")
        e(f"s_add_u32 s{sT0}, s{sT0}, {L['XQ']}")
        e(f"v_add_u32 v{vT0}, s{sT0}, v{vT0}")
        e(f"v_mul_f32 v{M+1}, v{m[0]}, v{l[0]}")
        e(f"v_mul_f32 v{t}, v{m[0]}, v{t}")
        for c in range(1, 4):
            e(f"v_fmac_f32 v{M+1}, v{m[c]}, v{l[c]}")
            e(f"v_fmac_f32 v{t}, v{m[c]}, v{t+c}")
        e(f"v_rcp_f32 v{M+1}, v{M+1}")
        e(f"v_mul_f32 v{t}, v{M+1}, v{t}")
        e(f"v_cvt_pk_bf16_f32 v{t}, v{t}, v{t}")
        e(f"ds_write_b16 v{vT0}, v{t}")
        e(f"v_and_b32 v{vT0}, 15, v{vLANE}")
        e(f"v_min_u32 v{vT1}, 2, v{vT0}")
        e(f"v_lshlrev_b32 v{vT1}, 8, v{vT1}")
        e(f"v_and_b32 v{3}, 48, v{vLANE}")
        e(f"v_add_u32 v{vT1}, v{vT1}, v3")
        e(f"v_add_u32 v{vT1}, {L['XQ']}, v{vT1}")
        e(f"v_lshlrev_b32 v{vT0}, 8, v{vT0}")
        e(f"v_add_u32 v{vT0}, v{vT0}, v3")
        e(f"s_lshl_b32 s{sT0}, s{sWAVE}, 6")
        e(f"s_add_u32 s{sT0}, s{sT0}, s{sBLK}")
        e(f"s_add_u32 s{sT0}, s{sT0}, s{sL}")
        e("s_waitcnt lgkmcnt(0)")
        e("s_barrier")
        for s in range(4):
            e(f"ds_read_b128 v[{t+4*s}:{t+4*s+3}], v{vT1} offset:{s*64}")
        e("s_waitcnt lgkmcnt(0)")
        d = vO + 4
        for s in range(4):
            c = "0" if s == 0 else f"v[{d}:{d+3}]"
            e(f"v_mfma_f32_16x16x32_bf16 v[{d}:{d+3}], v[{vQF+4*s}:{vQF+4*s+3}], v[{t+4*s}:{t+4*s+3}], {c}")
        e(f"s_mov_b64 s[{sEX}:{sEX+1}], exec")
        e(f"s_mov_b64 exec, s[{sN2}:{sN2+1}]")
        e(f"buffer_store_dwordx4 v[{d}:{d+3}], v{vT0}, s[{sWS}:{sWS+3}], s{sT0} offen offset:{YP} sc1")
        e(f"s_mov_b64 exec, s[{sEX}:{sEX+1}]")
        self.stamp(12, True)
        self.roles()

    def stage_a_group(self):
        cfg, L, e = self.cfg, self.L, self.e
        self.c("stage A (group)")
        t = vD
        ml = vO + 4
        tm = vO + 6
        acc = 4
        e(f"s_and_b32 s{sT0}, s{sH}, 28")
        e(f"s_add_u32 s{sT0}, s{sT0}, s{sWAVE}")
        e(f"s_lshl_b32 s{sT0}, s{sT0}, 17")
        e(f"s_add_u32 s{sT0}, s{sT0}, s{sL}")
        e(f"s_add_u32 s{sT1}, s{sT0}, {BLK}")
        e(f"s_add_u32 s{sT2}, s{sT0}, {2*BLK}")
        e(f"s_add_u32 s{sT3}, s{sT0}, {3*BLK}")
        e(f"v_lshrrev_b32 v{vT0}, 5, v{vLANE}")
        e(f"v_lshlrev_b32 v{vT0}, 16, v{vT0}")
        e(f"v_and_b32 v{vT1}, 3, v{vLANE}")
        e(f"v_lshl_add_u32 v3, v{vT1}, 14, v{vT0}")
        e(f"v_and_b32 v{vT1}, 31, v{vLANE}")
        e(f"v_lshl_add_u32 v2, v{vT1}, 4, v{vT0}")
        so = [sT0, sT1, sT2, sT3]
        lp = self.poll_begin()
        for c in range(4):
            e(f"buffer_load_dwordx4 v[{t+4*c}:{t+4*c+3}], v2, s[{sWS}:{sWS+3}], s{so[c]} offen offset:{OP} sc1")
        e(f"buffer_load_dwordx2 v[{ml}:{ml+1}], v3, s[{sWS}:{sWS+3}], s{sT0} offen offset:{OP+512} sc1")
        e("s_waitcnt vmcnt(0)")
        self.poll_check(list(range(t, t + 16)) + [ml, ml + 1], vT0)
        self.poll_end(lp)
        self.stamp(11, True)
        dpp = lambda q: f"quad_perm:{q} row_mask:0xf bank_mask:0xf"
        e(f"v_max_f32_dpp v{tm}, v{ml}, v{ml} {dpp('[1,0,3,2]')}")
        e(f"s_lshl_b32 s{sT0}, s{sWAVE}, 9")
        e(f"s_add_u32 s{sT0}, s{sT0}, {L['XBUF']}")
        e(f"v_max_f32_dpp v{tm}, v{tm}, v{tm} {dpp('[2,3,0,1]')}")
        e(f"v_lshlrev_b32 v2, 3, v{vLANE}")
        e(f"v_add_u32 v2, s{sT0}, v2")
        e(f"v_sub_f32 v{tm}, v{ml}, v{tm}")
        e(f"v_mul_f32 v{tm}, s{sCS}, v{tm}")
        e(f"v_exp_f32 v{tm}, v{tm}")
        e(f"v_and_b32 v{vT0}, 1, v{vLANE}")
        e(f"v_and_b32 v{vT1}, 48, v{vLANE}")
        e(f"v_mul_f32 v{tm+1}, v{tm}, v{ml+1}")
        e(f"v_lshl_add_u32 v3, v{vT0}, 8, v{vT1}")
        e(f"v_add_u32 v3, s{sT0}, v3")
        e(f"v_add_f32_dpp v{tm+1}, v{tm+1}, v{tm+1} {dpp('[1,0,3,2]')}")
        e(f"v_lshlrev_b32 v{vT1}, 1, v{vT1}")
        e(f"v_lshl_add_u32 v8, v{vT0}, 4, v{vT1}")
        e(f"v_add_f32_dpp v{tm+1}, v{tm+1}, v{tm+1} {dpp('[2,3,0,1]')}")
        e(f"v_add_u32 v8, {L['PART']}, v8")
        e(f"v_rcp_f32 v{tm+1}, v{tm+1}")
        e(f"s_lshl_b32 s{sT1}, s{sWAVE}, 7")
        e(f"v_add_u32 v9, s{sT1}, v8")
        e(f"v_mul_f32 v{tm}, v{tm}, v{tm+1}")
        for c in range(4):
            for r in range(4):
                op = "v_mul_f32_dpp" if c == 0 else "v_fmac_f32_dpp"
                e(f"{op} v{acc+r}, v{tm}, v{t+4*c+r} {dpp(f'[{c},{c},{c},{c}]')}")
        e(f"v_cvt_pk_bf16_f32 v{acc}, v{acc}, v{acc+1}")
        e(f"v_cvt_pk_bf16_f32 v{acc+1}, v{acc+2}, v{acc+3}")
        e(f"ds_write_b64 v2, v[{acc}:{acc+1}]")
        for s_ in range(4):
            e(f"ds_read_b128 v[{t+4*s_}:{t+4*s_+3}], v3 offset:{s_*64}")
        e("s_waitcnt lgkmcnt(0)")
        d = vO + 4
        for s_ in range(4):
            c = "0" if s_ == 0 else f"v[{d}:{d+3}]"
            e(f"v_mfma_f32_16x16x32_bf16 v[{d}:{d+3}], v[{vQF+4*s_}:{vQF+4*s_+3}], v[{t+4*s_}:{t+4*s_+3}], {c}")
        e(f"ds_write_b128 v9, v[{d}:{d+3}]")
        e("s_waitcnt lgkmcnt(0)")
        e("s_barrier")
        lw = self.lab("Lga")
        e(f"s_cmp_lg_u32 s{sWAVE}, 0")
        e(f"s_cbranch_scc1 {lw}")
        for w in range(4):
            e(f"ds_read_b128 v[{t+4*w}:{t+4*w+3}], v8 offset:{w*128}")
        e(f"v_and_b32 v{vT0}, 1, v{vLANE}")
        e(f"v_lshrrev_b32 v{vT1}, 4, v{vLANE}")
        e(f"v_lshlrev_b32 v{vT1}, 4, v{vT1}")
        e(f"v_lshl_add_u32 v{vT0}, v{vT0}, 6, v{vT1}")
        e(f"s_add_u32 s{sT0}, s{sBLKW}, s{sL}")
        e("s_waitcnt lgkmcnt(0)")
        for r in range(4):
            e(f"v_add_f32 v{t+r}, v{t+r}, v{t+4+r}")
            e(f"v_add_f32 v{t+8+r}, v{t+8+r}, v{t+12+r}")
        for r in range(4):
            e(f"v_add_f32 v{t+r}, v{t+r}, v{t+8+r}")
        e(f"s_mov_b64 exec, s[{sN2}:{sN2+1}]")
        e(f"buffer_store_dwordx4 v[{t}:{t+3}], v{vT0}, s[{sWS}:{sWS+3}], s{sT0} offen offset:{X1} sc1")
        e("s_mov_b64 exec, -1")
        self.label(lw)
        self.stamp(12, True)

    def roles(self):
        cfg, L, e = self.cfg, self.L, self.e
        e(f"s_cmp_lt_u32 s2, {NF}")
        e("s_cbranch_scc1 L_FFN")
        e(f"s_cmp_ge_u32 s2, {R0}")
        e("s_cbranch_scc1 L_RED")
        e(f"s_cmp_lg_u32 s{sL}, 0")
        e("s_cbranch_scc1 L_end")
        if cfg.PF:
            self.l2_prefetch(cfg.PF, True)
        e("s_branch L_G2")
        self.ffn()
        self.reducer()
        self.g2()

    def l2_prefetch(self, ntiles, partner):
        cfg, L, e = self.cfg, self.L, self.e
        e(f"s_mul_i32 s{sT0}, s{sWAVE}, 1152")
        e(f"s_add_u32 m0, s{sT0}, {L['PBUF']}")
        n = [0]

        def run(srd, cnt, first):
            for i in range(cnt):
                if i == 0:
                    e(f"s_mov_b32 s{sKO}, {first}")
                else:
                    e(f"s_add_u32 s{sKO}, s{sKO}, 1024")
                if n[0] >= cfg.PFD:
                    e(f"s_waitcnt vmcnt({cfg.PFD-1})")
                e(f"buffer_load_dwordx4 v{vVOFF}, s[{srd}:{srd+3}], s{sKO} offen {cfg.PFPOL} lds")
                n[0] += 1
        if cfg.PFV or cfg.PFK:
            jobs = [(sV, cfg.PFV, (128 - cfg.PFV) * 1024), (sK, cfg.PFK, (128 - cfg.PFK) * 1024)]
        else:
            jobs = [(sK, 4 * ntiles, 8 * 4096)]
        for srd, cnt, first in jobs:
            if cnt:
                run(srd, cnt, first)
        if partner:
            l = self.lab("Lpf")
            e("s_cmp_ge_u32 s2, 192")
            e(f"s_cbranch_scc0 {l}")
            for srd, cnt, first in jobs:
                if not cnt:
                    continue
                e(f"s_add_u32 s{sW}, s{srd}, 0x80000")
                e(f"s_addc_u32 s{sW+1}, s{srd+1}, 0")
                e(f"s_mov_b32 s{sW+2}, 131072")
                e(f"s_mov_b32 s{sW+3}, 0x20000")
                run(sW, cnt, first)
            self.label(l)

    def red_reduce(self, x):
        L, e = self.L, self.e
        regs = [x + r for r in range(4)]
        self.bfly_row("v_add_f32", regs, steps=(8,))
        tm = [x + 4 + r for r in range(4)]
        self.swap_reduce("v_add_f32", regs, tm, 16)
        self.swap_reduce("v_add_f32", regs, tm, 32)
        e(f"s_lshl_b32 s{sT0}, s{sWAVE}, 7")
        e(f"s_add_u32 s{sT0}, s{sT0}, {L['PART']}")
        e(f"v_and_b32 v{vT0}, 7, v{vLANE}")
        e(f"v_lshlrev_b32 v{vT0}, 4, v{vT0}")
        e(f"v_add_u32 v{vT1}, s{sT0}, v{vT0}")
        e(f"ds_write_b128 v{vT1}, v[{x}:{x+3}]")
        e("s_waitcnt lgkmcnt(0)")
        e("s_barrier")

    def reducer(self):
        cfg, L, e = self.cfg, self.L, self.e
        self.label("L_RED")
        x = vD
        sR, sRB, sCB = sT4, sT5, 49
        e(f"s_sub_u32 s{sR}, s2, {R0}")
        e(f"s_lshr_b32 s{sRB}, s{sR}, 4")
        e(f"s_and_b32 s{sCB}, s{sR}, 15")
        self.srd(sW, sB2, 1024)
        e(f"v_and_b32 v2, 7, v{vLANE}")
        e(f"v_lshlrev_b32 v3, 3, v2")
        e(f"s_lshl_b32 s{sT0}, s{sCB}, 6")
        e(f"buffer_load_dwordx2 v[4:5], v3, s[{sW}:{sW+3}], s{sT0} offen")
        e(f"v_lshrrev_b32 v6, 3, v{vLANE}")
        if cfg.GY:
            self.reducer_b1_group(x, sRB, sCB)
        else:
            self.reducer_b1(x, sRB, sCB)
        self.reducer_d1(x, sR, sRB, sCB)

    def reducer_final_sum(self, x):
        L, e = self.L, self.e
        e(f"v_add_u32 v{vT1}, {L['PART']}, v{vT0}")
        for w in range(4):
            e(f"ds_read_b128 v[{x+4*w}:{x+4*w+3}], v{vT1} offset:{w*128}")
        e(f"v_add_u32 v{vT0}, {L['XRES']}, v{vT0}")
        e(f"ds_read_b128 v[{vO+4}:{vO+7}], v{vT0}")
        e("s_waitcnt lgkmcnt(0)")
        for r in range(4):
            e(f"v_add_f32 v{x+r}, v{x+r}, v{x+4+r}")
            e(f"v_add_f32 v{x+8+r}, v{x+8+r}, v{x+12+r}")
        for r in range(4):
            e(f"v_add_f32 v{x+r}, v{x+r}, v{x+8+r}")
        for r in range(4):
            e(f"v_add_f32 v{x+r}, v{x+r}, v{vO+4+r}")

    def reducer_b1_group(self, x, sRB, sCB):
        cfg, L, e = self.cfg, self.L, self.e
        lw = self.lab("Lr1")
        e(f"s_cmp_lg_u32 s{sWAVE}, 0")
        e(f"s_cbranch_scc1 {lw}")
        e(f"v_lshlrev_b32 v7, 14, v6")
        e(f"v_lshrrev_b32 v{vT0}, 2, v2")
        e(f"v_lshl_add_u32 v7, v{vT0}, 17, v7")
        e(f"v_and_b32 v{vT0}, 3, v2")
        e(f"v_lshl_add_u32 v7, v{vT0}, 4, v7")
        e(f"s_lshl_b32 s{sT0}, s{sCB}, 18")
        e(f"s_add_u32 s{sT0}, s{sT0}, s{sL}")
        e(f"s_lshl_b32 s{sT1}, s{sRB}, 6")
        e(f"s_add_u32 s{sT0}, s{sT0}, s{sT1}")
        e(f"v_lshlrev_b32 v{vT1}, 4, v2")
        e(f"v_add_u32 v{vT1}, {L['XRES']}, v{vT1}")
        e(f"ds_read_b128 v[{vO+4}:{vO+7}], v{vT1}")
        lp = self.poll_begin()
        e(f"buffer_load_dwordx4 v[{x}:{x+3}], v7, s[{sWS}:{sWS+3}], s{sT0} offen offset:{X1} sc1")
        e("s_waitcnt vmcnt(0)")
        self.poll_check(range(x, x + 4), vT0)
        self.poll_end(lp)
        self.stamp(17, True)
        regs = [x + r for r in range(4)]
        self.bfly_row("v_add_f32", regs, steps=(8,))
        tm = [x + 4 + r for r in range(4)]
        self.swap_reduce("v_add_f32", regs, tm, 16)
        self.swap_reduce("v_add_f32", regs, tm, 32)
        e("s_waitcnt lgkmcnt(0)")
        for r in range(4):
            e(f"v_add_f32 v{x+r}, v{x+r}, v{vO+4+r}")
        e(f"ds_write_b128 v{vT1}, v[{x}:{x+3}]")
        self.label(lw)
        self.stamp(18, True)

    def reducer_b1(self, x, sRB, sCB):
        cfg, L, e = self.cfg, self.L, self.e
        e(f"v_lshlrev_b32 v7, 17, v6")
        e(f"v_lshl_add_u32 v7, v2, 4, v7")
        e(f"s_lshl_b32 s{sT0}, s{sWAVE}, 6")
        e(f"s_lshr_b32 s{sT1}, s{sCB}, 1")
        e(f"s_add_u32 s{sT0}, s{sT0}, s{sT1}")
        e(f"s_lshl_b32 s{sT0}, s{sT0}, 14")
        e(f"s_add_u32 s{sT0}, s{sT0}, s{sL}")
        e(f"s_lshl_b32 s{sT1}, s{sRB}, 8")
        e(f"s_add_u32 s{sT0}, s{sT0}, s{sT1}")
        e(f"s_and_b32 s{sT1}, s{sCB}, 1")
        e(f"s_lshl_b32 s{sT1}, s{sT1}, 7")
        e(f"s_add_u32 s{sT0}, s{sT0}, s{sT1}")
        lp = self.poll_begin()
        e(f"buffer_load_dwordx4 v[{x}:{x+3}], v7, s[{sWS}:{sWS+3}], s{sT0} offen offset:{YP} sc1")
        e("s_waitcnt vmcnt(0)")
        self.poll_check(range(x, x + 4), vT0)
        self.poll_end(lp)
        self.stamp(17, True)
        self.red_reduce(x)
        lw = self.lab("Lr1")
        e(f"s_cmp_lg_u32 s{sWAVE}, 0")
        e(f"s_cbranch_scc1 {lw}")
        self.reducer_final_sum(x)
        e(f"ds_write_b128 v{vT0}, v[{x}:{x+3}]")
        e(f"s_add_u32 s{sT0}, s{sBLKW}, s{sL}")
        e(f"v_lshlrev_b32 v3, 4, v2")
        e(f"s_mov_b64 s[{sEX}:{sEX+1}], exec")
        e("s_mov_b64 exec, 0xff")
        e(f"buffer_store_dwordx4 v[{x}:{x+3}], v3, s[{sWS}:{sWS+3}], s{sT0} offen offset:{X1} sc1")
        e(f"s_mov_b64 exec, s[{sEX}:{sEX+1}]")
        self.label(lw)
        self.stamp(18, True)
        e("s_waitcnt lgkmcnt(0)")
        e("s_barrier")

    def reducer_d1(self, x, sR, sRB, sCB):
        cfg, L, e = self.cfg, self.L, self.e
        e(f"v_lshlrev_b32 v7, 14, v6")
        e(f"v_lshl_add_u32 v7, v2, 4, v7")
        e(f"s_lshl_b32 s{sT0}, s{sWAVE}, 17")
        e(f"s_add_u32 s{sT0}, s{sT0}, s{sL}")
        e(f"s_lshl_b32 s{sT1}, s{sRB}, 11")
        e(f"s_add_u32 s{sT0}, s{sT0}, s{sT1}")
        e(f"s_lshl_b32 s{sT1}, s{sCB}, 7")
        e(f"s_add_u32 s{sT0}, s{sT0}, s{sT1}")
        e(f"s_add_u32 s{sT0}, s{sT0}, {FP}")
        e(f"s_add_u32 s{sT1}, s{sT0}, {32*BLK}")
        e(f"s_add_u32 s{sT2}, s{sT0}, {64*BLK}")
        e(f"s_add_u32 s{sT3}, s{sT0}, {96*BLK}")
        for r in range(4):
            e(f"v_mov_b32 v{x+12+r}, 0")
        lp = self.poll_begin()
        l3 = self.lab("Lr3")
        for k, so in enumerate((sT0, sT1, sT2)):
            e(f"buffer_load_dwordx4 v[{x+4*k}:{x+4*k+3}], v7, s[{sWS}:{sWS+3}], s{so} offen sc1")
        e(f"s_cmp_ge_u32 s{sWAVE}, 2")
        e(f"s_cbranch_scc1 {l3}")
        e(f"buffer_load_dwordx4 v[{x+12}:{x+15}], v7, s[{sWS}:{sWS+3}], s{sT3} offen sc1")
        self.label(l3)
        e("s_waitcnt vmcnt(0)")
        self.poll_check(range(x, x + 16), vT0)
        self.poll_end(lp)
        self.stamp(19, True)
        for r in range(4):
            e(f"v_add_f32 v{x+r}, v{x+r}, v{x+4+r}")
            e(f"v_add_f32 v{x+8+r}, v{x+8+r}, v{x+12+r}")
        for r in range(4):
            e(f"v_add_f32 v{x+r}, v{x+r}, v{x+8+r}")
        self.red_reduce(x)
        lw = self.lab("Lr4")
        e(f"s_cmp_lg_u32 s{sWAVE}, 0")
        e(f"s_cbranch_scc1 {lw}")
        self.reducer_final_sum(x)
        e(f"v_lshlrev_b32 v{x+4}, 16, v4")
        e(f"v_and_b32 v{x+5}, 0xffff0000, v4")
        e(f"v_lshlrev_b32 v{x+6}, 16, v5")
        e(f"v_and_b32 v{x+7}, 0xffff0000, v5")
        for r in range(4):
            e(f"v_add_f32 v{x+r}, v{x+r}, v{x+4+r}")
        lo = self.lab("Lout")
        e(f"s_mov_b64 s[{sEX}:{sEX+1}], exec")
        e(f"s_cmp_lg_u32 s{sL}, 0")
        e(f"s_cbranch_scc1 {lo}")
        e(f"ds_write_b128 v{vT0}, v[{x}:{x+3}]")
        e(f"s_add_u32 s{sT0}, s{sBLKW}, s{sL}")
        e(f"v_lshlrev_b32 v3, 4, v2")
        e("s_mov_b64 exec, 0xff")
        e(f"buffer_store_dwordx4 v[{x}:{x+3}], v3, s[{sWS}:{sWS+3}], s{sT0} offen offset:{X2} sc1")
        e(f"s_mov_b64 exec, s[{sEX}:{sEX+1}]")
        e("s_waitcnt lgkmcnt(0)")
        e("s_branch L_G2")
        self.label(lo)
        self.srd(sW, sOUT, 2048)
        e(f"v_cvt_pk_bf16_f32 v{x+4}, v{x}, v{x+1}")
        e(f"v_cvt_pk_bf16_f32 v{x+5}, v{x+2}, v{x+3}")
        e(f"s_lshl_b32 s{sT0}, s{sR}, 6")
        e(f"v_lshlrev_b32 v3, 3, v2")
        e("s_mov_b64 exec, 0xff")
        e(f"buffer_store_dwordx2 v[{x+4}:{x+5}], v3, s[{sW}:{sW+3}], s{sT0} offen")
        e("s_waitcnt vmcnt(0)")
        e("s_branch L_end")
        self.label(lw)
        e(f"s_cmp_lg_u32 s{sL}, 0")
        e("s_cbranch_scc1 L_end")
        e("s_branch L_G2")

    def ffn(self):
        cfg, L, e = self.cfg, self.L, self.e
        self.label("L_FFN")
        t = vD
        self.srd(sW, sW2, 1792 * 512 * 2)
        e(f"v_lshrrev_b32 v2, 4, v{vLANE}")
        e(f"v_lshlrev_b32 v2, 10, v2")
        e(f"v_and_b32 v3, 15, v{vLANE}")
        e(f"v_lshl_add_u32 v2, v3, 4, v2")
        e(f"s_lshl_b32 s{sT0}, s2, 14")
        e(f"s_lshl_b32 s{sT1}, s{sWAVE}, 8")
        e(f"s_add_u32 s{sT0}, s{sT0}, s{sT1}")
        for i in range(4):
            e(f"s_add_u32 m0, s{sWB}, {i*1024}")
            if i > 0:
                e(f"s_add_u32 s{sT0}, s{sT0}, 4096")
            e(f"buffer_load_dwordx4 v2, s[{sW}:{sW+3}], s{sT0} offen lds")
        self.srd(sW, sB1, 1792 * 2)
        e(f"v_lshrrev_b32 v3, 4, v{vLANE}")
        e(f"v_lshlrev_b32 v3, 3, v3")
        e(f"s_lshl_b32 s{sT0}, s2, 5")
        e(f"buffer_load_dwordx2 v[4:5], v3, s[{sW}:{sW+3}], s{sT0} offen")
        e(f"v_lshrrev_b32 v2, 4, v{vLANE}")
        e(f"v_lshlrev_b32 v2, 2, v2")
        e(f"v_bfe_u32 v3, v{vLANE}, 2, 2")
        e(f"v_add_u32 v2, v2, v3")
        e(f"v_lshlrev_b32 v2, 8, v2")
        e(f"v_and_b32 v3, 3, v{vLANE}")
        e(f"v_lshl_add_u32 v2, v3, 3, v2")
        e(f"v_add_u32 v2, s{sWB}, v2")
        def w2_frags(va):
            for tt in range(8):
                e(f"ds_read_b64_tr_b16 v[{vQF+2*tt}:{vQF+2*tt+1}], v{va} offset:{tt*32}")

        def bias_f32():
            e(f"v_lshlrev_b32 v2, 16, v4")
            e(f"v_and_b32 v3, 0xffff0000, v4")
            e(f"v_lshlrev_b32 v4, 16, v5")
            e(f"v_and_b32 v5, 0xffff0000, v5")
        if not cfg.GY:
            e("s_waitcnt vmcnt(0)")
            w2_frags(2)
            bias_f32()
        else:
            e(f"v_mov_b32 v{vMR+1}, v2")
        e(f"v_lshrrev_b32 v10, 3, v{vLANE}")
        e(f"v_lshlrev_b32 v10, 14, v10")
        e(f"v_and_b32 v11, 7, v{vLANE}")
        e(f"v_lshl_add_u32 v10, v11, 4, v10")
        e(f"s_lshl_b32 s{sT0}, s{sWAVE}, 3")
        e(f"s_add_u32 s{sT0}, s{sT0}, {R0}")
        e(f"s_lshl_b32 s{sT0}, s{sT0}, 14")
        if not cfg.GY:
            e(f"s_add_u32 s{sT0}, s{sT0}, s{sL}")
        e(f"s_lshl_b32 s{sT1}, s{sWAVE}, 9")
        e(f"s_add_u32 s{sT1}, s{sT1}, {L['XBUF']}")
        e(f"v_lshlrev_b32 v11, 3, v{vLANE}")
        e(f"v_add_u32 v11, s{sT1}, v11")
        e(f"v_and_b32 v12, 1, v{vLANE}")
        e(f"v_lshlrev_b32 v13, 10, v12")
        e(f"v_and_b32 v14, 48, v{vLANE}")
        e(f"v_add_u32 v13, v13, v14")
        e(f"s_lshl_b32 s{sT1}, s{sWAVE}, 8")
        e(f"s_add_u32 s{sT1}, s{sT1}, {L['XBUF']}")
        e(f"v_add_u32 v13, s{sT1}, v13")
        e(f"v_lshlrev_b32 v14, 1, v14")
        e(f"v_lshl_add_u32 v14, v12, 4, v14")
        e(f"v_add_u32 v14, {L['PART']}, v14")
        e(f"s_lshl_b32 s{sT1}, s{sWAVE}, 7")
        e(f"v_add_u32 v15, s{sT1}, v14")
        e("s_waitcnt lgkmcnt(0)")
        self.stamp(13, True)
        if cfg.GY:
            res = vO + 4
            lr = self.lab("Lres")
            for r in range(4):
                e(f"v_mov_b32 v{res+r}, 0")
            e("v_mov_b32 v8, 0")
            e("v_mov_b32 v9, 0")
            e(f"s_cmp_lg_u32 s{sL}, 0")
            e(f"s_cbranch_scc1 {lr}")
            self.srd(sW, sX, 2048)
            e(f"v_lshlrev_b32 v{vT0}, 3, v{vLANE}")
            e(f"s_lshl_b32 s{sT1}, s{sWAVE}, 9")
            e(f"buffer_load_dwordx2 v[8:9], v{vT0}, s[{sW}:{sW+3}], s{sT1} offen")
            self.label(lr)
            e(f"v_lshrrev_b32 v6, 2, v{vLANE}")
            e(f"v_lshlrev_b32 v6, 17, v6")
            e(f"v_and_b32 v7, 3, v{vLANE}")
            e(f"v_lshl_add_u32 v6, v7, 4, v6")
            e(f"s_and_b32 s{sT1}, s{sWAVE}, 1")
            e(f"s_lshl_b32 s{sT1}, s{sT1}, 21")
            e(f"s_lshr_b32 s{sT2}, s{sWAVE}, 1")
            e(f"s_lshl_b32 s{sT2}, s{sT2}, 6")
            e(f"s_add_u32 s{sT1}, s{sT1}, s{sT2}")
            e(f"s_add_u32 s{sT1}, s{sT1}, s{sL}")
            dst = [t + 4 * k for k in range(4)] + [vQF + 4 * k for k in range(4)]
            lp = self.poll_begin()
            for k in range(8):
                if k:
                    e(f"s_add_u32 s{sT2}, s{sT1}, {k*BLK}")
                e(f"buffer_load_dwordx4 v[{dst[k]}:{dst[k]+3}], v6, s[{sWS}:{sWS+3}], s{sT2 if k else sT1} offen offset:{X1} sc1")
            l2 = self.lab("Lres")
            e(f"s_cmp_eq_u32 s{sL}, 0")
            e(f"s_cbranch_scc1 {l2}")
            e(f"buffer_load_dwordx4 v[{res}:{res+3}], v10, s[{sWS}:{sWS+3}], s{sT0} offen offset:{X2} sc1")
            self.label(l2)
            e("s_waitcnt vmcnt(0)")
            self.poll_check([d_ + r for d_ in dst for r in range(4)] + [res + r for r in range(4)], vT0)
            self.poll_end(lp)
            self.stamp(14, True)
            for r in range(4):
                e(f"v_add_f32 v{t+r}, v{t+r}, v{t+4+r}")
                e(f"v_add_f32 v{t+8+r}, v{t+8+r}, v{t+12+r}")
                e(f"v_add_f32 v{vQF+r}, v{vQF+r}, v{vQF+4+r}")
                e(f"v_add_f32 v{vQF+8+r}, v{vQF+8+r}, v{vQF+12+r}")
            for r in range(4):
                e(f"v_add_f32 v{t+r}, v{t+r}, v{t+8+r}")
                e(f"v_add_f32 v{vQF+r}, v{vQF+r}, v{vQF+8+r}")
            e(f"v_lshlrev_b32 v6, 16, v8")
            e(f"v_and_b32 v7, 0xffff0000, v8")
            e(f"v_lshlrev_b32 v8, 16, v9")
            e(f"v_and_b32 v9, 0xffff0000, v9")
            for r in range(4):
                e(f"v_add_f32 v{t+r}, v{t+r}, v{vQF+r}")
                e(f"v_add_f32 v{res+r}, v{res+r}, v{6+r}")
            for r in range(4):
                e(f"v_add_f32 v{t+r}, v{t+r}, v{res+r}")
            w2_frags(vMR + 1)
            bias_f32()
        else:
            lp = self.poll_begin()
            e(f"buffer_load_dwordx4 v[{t}:{t+3}], v10, s[{sWS}:{sWS+3}], s{sT0} offen offset:{X1} sc1")
            e("s_waitcnt vmcnt(0)")
            self.poll_check(range(t, t + 4), vT0)
            self.poll_end(lp)
        if not cfg.GY:
            self.stamp(14, True)
        e(f"v_cvt_pk_bf16_f32 v{t+4}, v{t}, v{t+1}")
        e(f"v_cvt_pk_bf16_f32 v{t+5}, v{t+2}, v{t+3}")
        e(f"ds_write_b64 v11, v[{t+4}:{t+5}]")
        e(f"v_lshlrev_b32 v{t}, 16, v{t+4}")
        e(f"v_and_b32 v{t+1}, 0xffff0000, v{t+4}")
        e(f"v_lshlrev_b32 v{t+2}, 16, v{t+5}")
        e(f"v_and_b32 v{t+3}, 0xffff0000, v{t+5}")
        e(f"v_add_f32 v{vMR}, v{t}, v{t+1}")
        e(f"v_mul_f32 v{vLR}, v{t}, v{t}")
        e(f"v_add_f32 v{vMR}, v{vMR}, v{t+2}")
        e(f"v_fmac_f32 v{vLR}, v{t+1}, v{t+1}")
        e(f"v_add_f32 v{vMR}, v{vMR}, v{t+3}")
        e(f"v_fmac_f32 v{vLR}, v{t+2}, v{t+2}")
        e(f"v_fmac_f32 v{vLR}, v{t+3}, v{t+3}")
        e("s_waitcnt lgkmcnt(0)")
        e("s_barrier")
        for s in range(4):
            e(f"ds_read_b128 v[{t+4*s}:{t+4*s+3}], v13 offset:{s*64}")
        e(f"v_and_b32 v10, 48, v{vLANE}")
        e(f"v_add_u32 v10, {L['CS1P']}, v10")
        e(f"ds_read_b128 v[6:9], v10")
        self.bfly_row("v_add_f32", [vMR, vLR])
        self.swap_reduce("v_add_f32", [vMR, vLR], [vT0, vT1], 16)
        self.swap_reduce("v_add_f32", [vMR, vLR], [vT0, vT1], 32)
        e("s_waitcnt lgkmcnt(0)")
        d = vO + 4
        for s in range(4):
            c = "0" if s == 0 else f"v[{d}:{d+3}]"
            e(f"v_mfma_f32_16x16x32_bf16 v[{d}:{d+3}], v[{vKF+4*s}:{vKF+4*s+3}], v[{t+4*s}:{t+4*s+3}], {c}")
        e(f"s_lshl_b32 s{sT1}, s{sWAVE}, 3")
        e(f"s_add_u32 s{sT1}, s{sT1}, {L['ST']}")
        e(f"v_mov_b32 v{vT0}, s{sT1}")
        e(f"ds_write_b64 v{vT0}, v[{vMR}:{vMR+1}]")
        for w in range(1, 4):
            e(f"ds_read_b128 v[{t+4*w}:{t+4*w+3}], v10 offset:{w*64}")
        e(f"ds_write_b128 v15, v[{d}:{d+3}]")
        e("s_waitcnt lgkmcnt(0)")
        for w in range(1, 4):
            for r in range(4):
                e(f"v_add_f32 v{6+r}, v{6+r}, v{t+4*w+r}")
        e("s_barrier")
        for w in range(4):
            e(f"ds_read_b128 v[{t+4*w}:{t+4*w+3}], v14 offset:{w*128}")
        e(f"v_lshlrev_b32 v{vT0}, 4, v12")
        e(f"v_add_u32 v{vT0}, {L['ST']}, v{vT0}")
        e(f"ds_read_b128 v[{d}:{d+3}], v{vT0}")
        e("s_waitcnt lgkmcnt(0)")
        e(f"v_add_f32 v{vMR}, v{d}, v{d+2}")
        e(f"v_add_f32 v{vLR}, v{d+1}, v{d+3}")
        self.mean_rstd(vMR, vLR, None)
        for r in range(4):
            e(f"v_add_f32 v{t+r}, v{t+r}, v{t+4+r}")
            e(f"v_add_f32 v{t+8+r}, v{t+8+r}, v{t+12+r}")
        for r in range(4):
            e(f"v_add_f32 v{t+r}, v{t+r}, v{t+8+r}")
        for r in range(4):
            e(f"v_fma_f32 v{t+r}, -v{vMR}, v{6+r}, v{t+r}")
        for r in range(4):
            e(f"v_fma_f32 v{t+r}, v{vLR}, v{t+r}, v{2+r}")
        k0 = -2.0 * 0.7978845608028654 * 1.4426950408889634
        e(f"s_mov_b32 s{sT1}, {hex(f2u(0.044715))}")
        e(f"s_mov_b32 s{sT2}, {hex(f2u(k0))}")
        for r in range(4):
            e(f"v_mul_f32 v{t+4+r}, v{t+r}, v{t+r}")
        for r in range(4):
            e(f"v_fma_f32 v{t+4+r}, v{t+4+r}, s{sT1}, 1.0")
        for r in range(4):
            e(f"v_mul_f32 v{t+4+r}, v{t+4+r}, v{t+r}")
        for r in range(4):
            e(f"v_mul_f32 v{t+4+r}, s{sT2}, v{t+4+r}")
        for r in range(4):
            e(f"v_exp_f32 v{t+4+r}, v{t+4+r}")
        for r in range(4):
            e(f"v_add_f32 v{t+4+r}, 1.0, v{t+4+r}")
        for r in range(4):
            e(f"v_rcp_f32 v{t+4+r}, v{t+4+r}")
        for r in range(4):
            e(f"v_mul_f32 v{t+r}, v{t+r}, v{t+4+r}")
        e(f"v_cvt_pk_bf16_f32 v{t+8}, v{t}, v{t+1}")
        e(f"v_cvt_pk_bf16_f32 v{t+9}, v{t+2}, v{t+3}")
        e(f"v_lshlrev_b32 v10, 11, v12")
        e(f"v_bfe_u32 v11, v{vLANE}, 1, 3")
        e(f"v_lshl_add_u32 v10, v11, 6, v10")
        e(f"v_and_b32 v11, 48, v{vLANE}")
        e(f"v_add_u32 v10, v10, v11")
        e(f"s_lshl_b32 s{sT0}, s{sWAVE}, 9")
        e(f"s_add_u32 s{sT0}, s{sT0}, s{sBLKW}")
        e(f"s_add_u32 s{sT0}, s{sT0}, s{sL}")
        e(f"s_add_u32 s{sT0}, s{sT0}, {FP}")
        bb = [t + 10, t + 12]
        def mk(tt):
            b = bb[tt & 1]
            e(f"s_lshl_b64 s[{sMK}:{sMK+1}], s[{sN2}:{sN2+1}], {2*tt}")
            e(f"v_cndmask_b32 v{b}, 0, v{t+8}, s[{sMK}:{sMK+1}]")
            e(f"v_cndmask_b32 v{b+1}, 0, v{t+9}, s[{sMK}:{sMK+1}]")
        mk(0)
        for tt in range(8):
            if tt + 1 < 8:
                mk(tt + 1)
            b = bb[tt & 1]
            c = "0" if tt == 0 else f"v[{d}:{d+3}]"
            e(f"v_mfma_f32_16x16x16_bf16 v[{d}:{d+3}], v[{vQF+2*tt}:{vQF+2*tt+1}], v[{b}:{b+1}], {c}")
        e(f"buffer_store_dwordx4 v[{d}:{d+3}], v10, s[{sWS}:{sWS+3}], s{sT0} offen sc1")
        self.stamp(15, True)
        e(f"s_cmp_lg_u32 s{sL}, 0")
        e("s_cbranch_scc1 L_end")
        self.set_wq()
        self.w_dma(vT0, cond=True)
        if cfg.PFF:
            self.l2_prefetch(cfg.PFF, False)
            e(f"s_waitcnt vmcnt({min(cfg.PFD, 4*cfg.PFF)})")
        else:
            e("s_waitcnt vmcnt(0)")
        self.w_frags(vKF, vT0)
        e("s_waitcnt lgkmcnt(0)")
        e("s_branch L_G2")

    def g2(self):
        cfg, L, e = self.cfg, self.L, self.e
        self.label("L_G2")
        self.stamp(21)
        self.consts()
        lw = self.lab("Lg2")
        e(f"s_cmp_lg_u32 s{sWAVE}, 0")
        e(f"s_cbranch_scc1 {lw}")
        t = vD
        e(f"v_lshrrev_b32 v{vT0}, 5, v{vLANE}")
        e(f"v_lshlrev_b32 v{vT0}, 4, v{vT0}")
        e(f"v_bfe_u32 v{vT1}, v{vLANE}, 3, 2")
        e(f"v_add_u32 v{vT0}, v{vT0}, v{vT1}")
        e(f"v_lshlrev_b32 v{vT0}, 14, v{vT0}")
        e(f"v_and_b32 v{vT1}, 7, v{vLANE}")
        e(f"v_lshl_add_u32 v{vT0}, v{vT1}, 4, v{vT0}")
        e(f"s_lshr_b32 s{sT0}, s{sJ}, 1")
        e(f"s_lshl_b32 s{sT0}, s{sT0}, 2")
        e(f"s_add_u32 s{sT0}, s{sT0}, {R0}")
        e(f"s_lshl_b32 s{sT0}, s{sT0}, 14")
        e(f"v_lshrrev_b32 v{t+8}, 5, v{vLANE}")
        e(f"v_lshlrev_b32 v{t+8}, 8, v{t+8}")
        e(f"v_and_b32 v{t+9}, 31, v{vLANE}")
        e(f"v_lshl_add_u32 v{t+8}, v{t+9}, 3, v{t+8}")
        e(f"v_add_u32 v{t+8}, {L['XQ']}, v{t+8}")
        lp = self.poll_begin()
        e(f"buffer_load_dwordx4 v[{t}:{t+3}], v{vT0}, s[{sWS}:{sWS+3}], s{sT0} offen offset:{X2} sc1")
        e("s_waitcnt vmcnt(0)")
        self.poll_check(range(t, t + 4), vT1)
        self.poll_end(lp)
        self.stamp(22)
        e(f"v_cvt_pk_bf16_f32 v{t+4}, v{t}, v{t+1}")
        e(f"v_cvt_pk_bf16_f32 v{t+5}, v{t+2}, v{t+3}")
        e(f"ds_write_b64 v{t+8}, v[{t+4}:{t+5}]")
        e(f"v_lshlrev_b32 v{t}, 16, v{t+4}")
        e(f"v_and_b32 v{t+1}, 0xffff0000, v{t+4}")
        e(f"v_lshlrev_b32 v{t+2}, 16, v{t+5}")
        e(f"v_and_b32 v{t+3}, 0xffff0000, v{t+5}")
        self.stats_partial(t)
        self.label(lw)
        if cfg.LOC and cfg.QPF:
            lq = self.lab("Lqpf")
            e(f"s_cmp_eq_u32 s{sWAVE}, 1")
            e(f"s_cbranch_scc0 {lq}")
            e(f"s_add_u32 s{sT0}, s{sBLK}, {LOFF}")
            e(f"buffer_load_dword v{vMR}, v{vVOFF}, s[{sWS}:{sWS+3}], s{sT0} offen sc1")
            self.label(lq)
        e(f"s_mov_b32 s{sL}, {LOFF}")
        e("s_waitcnt lgkmcnt(0)")
        e("s_branch L_QE")

    def build(self):
        cfg, e = self.cfg, self.e
        self.prologue()

        def snap():
            return (list(self.pending), set(self.ready), self.vm_n, dict(self.vm_tags), self.vm_done, self.lg_n, dict(self.lg_tags), self._vo)

        def rest(s):
            self.pending, self.ready, self.vm_n, self.vm_tags, self.vm_done, self.lg_n, self.lg_tags, self._vo = \
                list(s[0]), set(s[1]), s[2], dict(s[3]), s[4], s[5], dict(s[6]), s[7]

        def both(fn, name, cap_e, cap_o, last_falls):
            if not cfg.CAPO:
                self.cap, self.capend = cap_e, cfg.CAPEND
                fn()
                if not last_falls:
                    e("s_branch L_TAIL")
                return
            s0 = snap()
            e(f"s_cmp_lg_u32 s{sPAR}, 0")
            e(f"s_cbranch_scc1 {name}")
            self.cap, self.capend = cap_e, cfg.CAPEND
            fn()
            e("s_branch L_TAIL")
            rest(s0)
            self.label(name)
            self.cap, self.capend = cap_o, cfg.CAPENDO or cfg.CAPEND
            fn()
            if not last_falls:
                e("s_branch L_TAIL")
        both(self.pass1, "L_P1_odd", cfg.CAP, cfg.CAPO, False)
        self.qe()
        self.vm_n += 5000; self.vm_done = self.vm_n; self.vm_tags = {}
        self.pending = []
        both(self.pass2, "L_P2_odd", cfg.CAP2 or cfg.CAP, cfg.CAPO2 or cfg.CAPO, True)
        self.tail()
        self.label("L_end")
        self.stamp(63, last=True)
        self.label("L_exit")
        e("s_endpgm")

    def text(self):
        cfg = self.cfg
        body, nn = hazard_pass(self.lines)
        hdr = []
        ref = open("interleave_layers__mha_block_cached__dense_activation_gelu__decode.s.ref").read().split("\n")
        for l in ref:
            if l.startswith("; @launch"):
                hdr.append("; @launch grid=(256,1,1) block=(256,1,1) lds=163840")
                break
            if l.startswith(";"):
                hdr.append(l)
        hdr += ['.amdgcn_target "amdgcn-amd-amdhsa--gfx950"', ".text", f".globl {KNAME}", ".p2align 8",
                f".type {KNAME},@function", f"{KNAME}:"]
        ftr = ['.section .rodata,"a"', ".p2align 6", f".amdhsa_kernel {KNAME}",
               "  .amdhsa_next_free_vgpr 512", "  .amdhsa_next_free_sgpr 102", "  .amdhsa_accum_offset 256",
               "  .amdhsa_group_segment_fixed_size 0", "  .amdhsa_kernarg_size 104", "  .amdhsa_user_sgpr_count 2",
               "  .amdhsa_user_sgpr_kernarg_segment_ptr 1", "  .amdhsa_system_sgpr_workgroup_id_x 1",
               ".end_amdhsa_kernel", ""]
        return "\n".join(hdr + body + ftr), nn


def generate(path, **kw):
    cfg = Cfg()
    for k, v in kw.items():
        setattr(cfg, k, v)
    g = Gen(cfg)
    g.build()
    txt, nn = g.text()
    open(path, "w").write(txt)
    return len(txt), nn, len(g.lines)


if __name__ == "__main__":
    out = sys.argv[1] if len(sys.argv) > 1 else "interleave_layers__mha_block_cached__dense_activation_gelu__decode.s"
    kw = {}
    for a in sys.argv[2:]:
        k, v = a.split("=")
        kw[k] = v if (k.endswith("POL") or k.startswith("CK") or k.startswith("PART")) else int(v)
    print(generate(out, **kw))
```

```python
import sys, struct, os
sys.path.insert(0, os.path.dirname(os.path.abspath(__file__)))
from asmlib import Asm, hazard_pass

KNAME = "interleave_layers__mha_block_cached__dense_activation_gelu__decode_kernel"


def f2u(x):
    return struct.unpack("<I", struct.pack("<f", x))[0]


class Cfg:
    NR = 8
    NWORK = 72
    CAP = 16
    INIT_V = 8
    CAP0 = 60
    QF = 0
    QA = 4
    QPF = 0
    LOC = 1
    GY = 1
    W2PF = 0
    TPF = 0
    TPD = 2
    TPM = 0
    TPW0 = 0
    TPO = 0
    CAP2A = 0
    CPF = 0
    EARLYC = 0
    XMAP = 1
    PF = 0
    PFF = 0
    PFD = 8
    PFPOL = ""
    PFV = 0
    PFK = 0
    THR = 0
    T1 = 128
    T2 = 0
    CAPT1 = 6
    CAPT2 = 4
    CK1 = "KB7:12,VB0:10,VB20:30,KA3:8,KA11:15,VA4:14,VA18:26"
    CK2 = "KA11:15,KB2:6,KB8:12"
    PART1 = "KB,VB,KA,VA"
    PART2 = "KA,KB"
    NOARR = 0
    KSPLIT = 0
    CAPEND = 0
    CAPO = 0
    CAP2 = 0
    CAPO2 = 0
    CAPENDO = 0
    KRET = 8
    KRETB = 0
    VRET = 0
    RETPOL = ""
    P2POL = "nt"
    P2VPOL = "nt"
    SPIN = 200000
    KPOL = "nt"
    VPOL = "nt"
    PROF = False
    POLL_SLEEP = 0


RING = 0
def lds_map(cfg):
    m = {}
    m["W"] = cfg.NR * 4096 * 4
    misc = m["W"] + 16384
    m["PBUF"] = misc
    m["RED"] = misc + 4608
    m["ML"] = misc + 8704
    m["XQ"] = misc + 8768
    m["QBUF"] = misc + 9536
    m["CSB"] = misc + 9792
    m["XRES"] = misc + 10304
    m["XBUF"] = misc + 10432
    m["PART"] = misc + 12480
    m["ST"] = misc + 12992
    m["CS1P"] = misc + 13056
    m["LVL"] = misc + 13312
    m["LOC"] = misc + 13328
    m["END"] = misc + 13344
    return m

BLK = 16384
LOFF = 8192
QP, QST, OP, YP, X1, X2, FP = 0, 768, 1024, 2048, 3072, 3200, 4096
PROF_OFF = 256 * BLK
NF = 112
R0 = 224

sK, sV, sWS, sW = 4, 8, 12, 16
sWQ, sWO, sW1, sW2, sB1, sB2, sOUT, sDBG, sX = 20, 22, 24, 26, 28, 30, 32, 34, 36
sWAVE, sH, sJ, sB, sC = 38, 39, 40, 41, 42
sRING, sWB, sL, sLOC, sSPIN = 43, 44, 46, 47, 48
sQO = 45
sEX = 50
sMK = 52
sT0, sT1, sT2, sT3, sT4, sT5 = 54, 55, 56, 57, 64, 65
sM0 = 58
sCS = 60
sBLK = 61
sLT8 = 62
sKO, sVO = 66, 67
sN2 = 68
sN3 = 70
sBLKW = 72
sPAR = 73
sLVL, sRK = 77, 78
sCK = 80
sP0 = 74

vLANE, vVOFF = 0, 1
vKD = 2
vKR = 6
vM = 10
vPW, vPR = 14, 15
vQF = 16
vKF = 32
vB0, vB1, vP0, vP1 = 32, 36, 40, 44
vD = 48
vS = 56
vO = 60
vMR, vLR = 68, 69
vT0, vT1 = 70, 71
vCK = 72

SCALE = 128 ** -0.5 * 1.4426950408889634


class Gen(Asm):
    def __init__(self, cfg):
        super().__init__()
        self.cfg = cfg
        self.L = lds_map(cfg)
        assert self.L["END"] <= 163840
        self.nstamp = 0
        self.pending = []
        self.ready = set()
        self.cap = cfg.CAP
        self.thr_on = False
        self.nck = 0
        self.ck_at = {}
        self.lvl_pending = None

    def stamp(self, sid, shared=False, last=False):
        if not self.cfg.PROF:
            return
        e = self.e
        vST = self.cfg.NWORK - 1
        if sid == 0:
            e(f"v_mov_b32 v{vST}, 0")
            e(f"s_getreg_b32 s{sP0}, hwreg(HW_REG_XCC_ID)")
            e(f"s_or_b32 s{sP0}, s{sP0}, 0x10000")
            e(f"v_writelane_b32 v{vST}, s{sP0}, 62")
            e(f"s_getreg_b32 s{sP0}, hwreg(HW_REG_HW_ID)")
            e(f"v_writelane_b32 v{vST}, s{sP0}, 61")
            e(f"s_memrealtime s[{sP0}:{sP0+1}]")
            e(f"s_mov_b32 s{sP0+2}, 0")
            return
        e("s_waitcnt lgkmcnt(0)")
        e(f"s_mov_b32 m0, s{sP0+2}")
        e("s_nop 0")
        e(f"v_writelane_b32 v{vST}, s{sP0}, m0")
        if shared:
            e(f"s_lshr_b32 s{sP0+2}, s{sL}, 8")
            e(f"s_add_u32 s{sP0+2}, s{sP0+2}, {sid}")
        else:
            e(f"s_mov_b32 s{sP0+2}, {sid}")
        e(f"s_memrealtime s[{sP0}:{sP0+1}]")
        if last:
            e("s_waitcnt lgkmcnt(0)")
            e(f"s_mov_b32 m0, s{sP0+2}")
            e("s_nop 0")
            e(f"v_writelane_b32 v{vST}, s{sP0}, m0")
            e(f"s_lshl_b32 s{sT0}, s2, 2")
            e(f"s_add_u32 s{sT0}, s{sT0}, s{sWAVE}")
            e(f"s_lshl_b32 s{sT0}, s{sT0}, 8")
            e(f"s_add_u32 s{sT0}, s{sT0}, {PROF_OFF}")
            e(f"s_mov_b64 exec, -1")
            e(f"v_lshlrev_b32 v1, 2, v0")
            e(f"buffer_store_dword v{vST}, v1, s[{sWS}:{sWS+3}], s{sT0} offen")
            e("s_waitcnt vmcnt(0)")

    def srd(self, d, ptr, nbytes, add=None):
        if add is None:
            self.e(f"s_mov_b32 s{d}, s{ptr}")
            self.e(f"s_and_b32 s{d+1}, s{ptr+1}, 0xffff")
        else:
            self.e(f"s_add_u32 s{d}, s{ptr}, s{add}")
            self.e(f"s_addc_u32 s{d+1}, s{ptr+1}, 0")
            self.e(f"s_and_b32 s{d+1}, s{d+1}, 0xffff")
        self.e(f"s_mov_b32 s{d+2}, {nbytes}")
        self.e(f"s_mov_b32 s{d+3}, 0x20000")

    def bfly_row(self, op, regs, steps=(8, 4, 2, 1)):
        for st in steps:
            for r in regs:
                self.e(f"{op}_dpp v{r}, v{r}, v{r} row_ror:{st} row_mask:0xf bank_mask:0xf")

    def swap_reduce(self, op, regs, tmps, which):
        for r, t in zip(regs, tmps):
            self.e(f"v_mov_b32 v{t}, v{r}")
        for r, t in zip(regs, tmps):
            self.e(f"v_permlane{which}_swap_b32 v{t}, v{r}")
        for r, t in zip(regs, tmps):
            self.e(f"{op} v{r}, v{t}, v{r}")

    def poll_begin(self):
        l = self.lab("Lpoll")
        self.e(f"s_mov_b32 s{sSPIN}, {self.cfg.SPIN}")
        self.label(l)
        return l

    def poll_check(self, regs, tmp):
        regs = list(regs)
        if len(regs) == 1:
            self.e(f"v_cmp_eq_u32 vcc, -1, v{regs[0]}")
            return
        if len(regs) == 2:
            self.e(f"v_max_u32 v{tmp}, v{regs[0]}, v{regs[1]}")
            rest = []
        else:
            self.e(f"v_max3_u32 v{tmp}, v{regs[0]}, v{regs[1]}, v{regs[2]}")
            rest = regs[3:]
        while len(rest) >= 2:
            self.e(f"v_max3_u32 v{tmp}, v{tmp}, v{rest[0]}, v{rest[1]}")
            rest = rest[2:]
        if rest:
            self.e(f"v_max_u32 v{tmp}, v{tmp}, v{rest[0]}")
        self.e(f"v_cmp_eq_u32 vcc, -1, v{tmp}")

    def poll_end(self, l):
        ok = self.lab("Lok")
        self.e(f"s_cbranch_vccz {ok}")
        if self.cfg.POLL_SLEEP:
            self.e(f"s_sleep {self.cfg.POLL_SLEEP}")
        self.e(f"s_sub_u32 s{sSPIN}, s{sSPIN}, 1")
        self.e(f"s_cmp_lg_u32 s{sSPIN}, 0")
        self.e(f"s_cbranch_scc1 {l}")
        self.label(ok)

    def consts(self, sT0=sT0):
        L = self.L
        e = self.e
        self.c("per-lane stream constants")
        e(f"v_lshlrev_b32 v{vVOFF}, 4, v{vLANE}")
        e(f"v_and_b32 v{vT0}, 15, v{vLANE}")
        e(f"v_lshrrev_b32 v{vT1}, 4, v{vLANE}")
        for t in range(4):
            e(f"v_add_u32 v{vD}, {4*t}, v{vT1}")
            e(f"v_xor_b32 v{vD}, v{vD}, v{vT0}")
            e(f"v_lshlrev_b32 v{vD}, 4, v{vD}")
            e(f"v_lshl_add_u32 v{vKD+t}, v{vT1}, 8, v{vD}")
        for s in range(4):
            e(f"v_add_u32 v{vD}, {4*s}, v{vT1}")
            e(f"v_xor_b32 v{vD}, v{vD}, v{vT0}")
            e(f"v_lshlrev_b32 v{vD}, 4, v{vD}")
            e(f"v_lshl_add_u32 v{vD}, v{vT0}, 8, v{vD}")
            e(f"v_add_u32 v{vKR+s}, s{sRING}, v{vD}")
        e(f"v_and_b32 v{vD}, 7, v{vT0}")
        e(f"v_mov_b32 v{vD+1}, 0xffff")
        e(f"v_mov_b32 v{vD+2}, 0xffff0000")
        for jj in range(4):
            e(f"v_mov_b32 v{vM+jj}, 0")
            e(f"v_cmp_eq_u32 vcc, {2*jj}, v{vD}")
            e(f"v_cndmask_b32 v{vM+jj}, v{vM+jj}, v{vD+1}, vcc")
            e(f"v_cmp_eq_u32 vcc, {2*jj+1}, v{vD}")
            e(f"v_cndmask_b32 v{vM+jj}, v{vM+jj}, v{vD+2}, vcc")
        e(f"s_mul_i32 s{sT0}, s{sWAVE}, 1152")
        e(f"s_add_u32 s{sT0}, s{sT0}, {L['PBUF']}")
        e(f"v_and_b32 v{vD}, 1, v{vT1}")
        e(f"v_mul_u32_u24 v{vD}, 576, v{vD}")
        e(f"v_lshrrev_b32 v{vD+1}, 1, v{vT1}")
        e(f"v_lshl_add_u32 v{vD+1}, v{vT0}, 1, v{vD+1}")
        e(f"v_lshl_add_u32 v{vD}, v{vD+1}, 2, v{vD}")
        e(f"v_add_u32 v{vPW}, s{sT0}, v{vD}")
        e(f"v_lshrrev_b32 v{vD}, 3, v{vT0}")
        e(f"v_lshl_add_u32 v{vD}, v{vD}, 2, v{vT1}")
        e(f"v_mul_u32_u24 v{vD}, 144, v{vD}")
        e(f"v_add_u32 v{vPR}, s{sT0}, v{vD}")

    def vreg_of(self, blk, t, pas):
        nret = (256 - self.cfg.NWORK) // 4
        if blk in ("A", "Q"):
            return f"a[{4*t}:{4*t+3}]"
        if t < nret:
            r = self.cfg.NWORK + 4 * t
            return f"v[{r}:{r+3}]"
        r = 4 * (t - nret)
        return f"a[{r}:{r+3}]"

    def k_desc(self, blk, n, slot):
        return dict(kind="K", blk=blk, n=n, slot=slot, tag=("K", blk, n), need=("slot", slot, blk, n), cnt=4, q=None)

    def split_k(self, ls):
        if not self.cfg.KSPLIT:
            return ls
        out = []
        for d in ls:
            if d["kind"] == "K":
                for q in range(4):
                    x = dict(d); x["q"] = q; x["cnt"] = 1
                    x["tag"] = d["tag"] if q == 3 else ("Kq", d["blk"], d["n"], q)
                    out.append(x)
            else:
                out.append(d)
        return out

    def v_desc(self, blk, t, need=None):
        return dict(kind="V", blk=blk, t=t, tag=("V", blk, t), need=need, cnt=1)

    def issue_desc(self, d, pas):
        cfg = self.cfg
        if d["kind"] == "K":
            tile = d["n"] + (0 if d["blk"] == "A" else 16)
            self.e(f"s_add_u32 m0, s{sRING}, {d['slot']*4096}")
            self.e(f"s_mov_b32 s{sKO}, {tile*4096}")
            pol = cfg.KPOL
            if d["blk"] == "A" and 8 <= d["n"] < 8 + cfg.KRET and pas == 1:
                pol = cfg.RETPOL
            if d["blk"] == "B" and d["n"] < cfg.KRETB and pas == 1:
                pol = cfg.RETPOL
            if pas == 2:
                pol = cfg.P2POL
            for t in (range(4) if d["q"] is None else [d["q"]]):
                self.vm(f"buffer_load_dwordx4 v{vKD+t}, s[{sK}:{sK+3}], s{sKO} offen offset:{t*1024} {pol} lds",
                        tag=d["tag"] if t == 3 else None)
        elif d["kind"] == "V":
            gt = d["t"] + (0 if d["blk"] == "A" else 64)
            base = (gt >> 2) * 4096
            if getattr(self, "_vo", None) != base:
                self.e(f"s_mov_b32 s{sVO}, {base}")
                self._vo = base
            pol = cfg.VPOL
            nret = (256 - cfg.NWORK) // 4
            if d["blk"] == "B" and d["t"] >= nret and d["t"] >= 64 - cfg.VRET and pas == 1:
                pol = cfg.RETPOL
            if pas == 2:
                pol = cfg.P2VPOL
            self.vm(f"buffer_load_dwordx4 {self.vreg_of(d['blk'], d['t'], pas)}, v{vVOFF}, s[{sV}:{sV+3}], s{sVO} offen offset:{(gt&3)*1024} {pol}",
                    tag=d["tag"])
        elif d["kind"] == "Q":
            t = d["t"]
            if t > 0:
                self.e(f"s_add_u32 s{sQO}, s{sQO}, 32768")
            self.vm(f"buffer_load_dwordx4 {self.vreg_of('Q', t, pas)}, v{vQF}, s[{sW}:{sW+3}], s{sQO} offen", tag=d["tag"])
        elif d["kind"] == "F":
            d["fn"]()

    def pump(self, pas, limit=None):
        n = 0
        while self.pending:
            d = self.pending[0]
            if d["need"] is not None and d["need"] not in self.ready:
                break
            if self.vm_outstanding() + d["cnt"] > self.cap:
                break
            if limit is not None and n + d["cnt"] > limit:
                break
            self.pending.pop(0)
            self.throttle(d)
            self.issue_desc(d, pas)
            n += d["cnt"]

    def force_issued(self, tag, pas):
        while tag not in self.vm_tags or self.vm_tags[tag] < 0:
            d = self.pending[0]
            assert d["need"] is None or d["need"] in self.ready, ("not ready", d, tag)
            if self.vm_outstanding() + d["cnt"] > self.cap:
                target = self.vm_n + d["cnt"] - self.cap
                self.e(f"s_waitcnt vmcnt({self.vm_n - target})")
                self.vm_done = max(self.vm_done, target)
            self.pending.pop(0)
            self.throttle(d)
            self.issue_desc(d, pas)

    def throttle(self, d):
        cfg = self.cfg
        if not cfg.THR or not self.thr_on or d["kind"] not in ("K", "V"):
            return
        n1 = max(cfg.CAPT1 - d["cnt"], 0)
        if self.vm_outstanding() <= n1 and (not cfg.T2 or self.vm_outstanding() <= max(cfg.CAPT2 - d["cnt"], 0)):
            return
        l = self.lab("Lthr")
        self.e(f"s_cmp_eq_u32 s{sLVL}, 0")
        self.e(f"s_cbranch_scc1 {l}")
        self.e(f"s_waitcnt vmcnt({n1})")
        if cfg.T2:
            n2 = max(cfg.CAPT2 - d["cnt"], 0)
            self.e(f"s_cmp_eq_u32 s{sLVL}, 1")
            self.e(f"s_cbranch_scc1 {l}")
            self.e(f"s_waitcnt vmcnt({n2})")
        self.label(l)

    def ck_plan(self, spec, phase):
        hooks = {}
        if self.cfg.THR == 2:
            self.thr_on = phase in (self.cfg.PART1 if spec is self.cfg.CK1 else self.cfg.PART2).split(",")
        if self.cfg.THR != 1:
            return hooks
        for item in spec.split(","):
            if not item.startswith(phase):
                continue
            a, b = item[2:].split(":")
            cid = self.nck; self.nck += 1
            reg = vT0 if phase[0] == "K" else vD
            hooks.setdefault(int(a), []).append(lambda cid=cid, reg=reg: self.ck_issue(cid, reg))
            hooks.setdefault(int(b), []).insert(0, lambda cid=cid, reg=reg: self.ck_use(cid, reg))
        return {k: (lambda fs=v: [f() for f in fs]) for k, v in hooks.items()}

    def ck_issue(self, cid, reg):
        e = self.e
        assert cid < 32
        l = self.lab("Lck")
        e(f"s_cmp_lg_u32 s{sWAVE}, 0")
        e(f"s_cbranch_scc1 {l}")
        e("s_mov_b64 exec, 1")
        e(f"v_mov_b32 v{vCK}, -1")
        self.vm(f"buffer_load_dword v{vCK}, off, s[{sCK}:{sCK+3}], 0 offset:{128 + 4*cid} sc1", cond=True)
        e(f"v_mov_b32 v{reg+1}, 1")
        self.vm(f"buffer_atomic_add v{reg+1}, off, s[{sCK}:{sCK+3}], 0 offset:{128 + 4*cid} sc1", cond=True)
        e("s_mov_b64 exec, -1")
        self.label(l)
        self.thr_on = True

    def ck_use(self, cid, reg):
        cfg, e = self.cfg, self.e
        l = self.lab("Lcu")
        e(f"s_cmp_lg_u32 s{sWAVE}, 0")
        e(f"s_cbranch_scc1 {l}")
        e(f"v_readfirstlane_b32 s{sRK}, v{vCK}")
        e(f"s_cmp_eq_u32 s{sRK}, -1")
        e(f"s_cbranch_scc1 {l}")
        e(f"s_cmp_lt_u32 s{sRK}, {cfg.T1}")
        e(f"s_cselect_b32 s{sLVL}, 1, 0")
        if cfg.T2:
            e(f"s_cmp_lt_u32 s{sRK}, {cfg.T2}")
            e(f"s_cselect_b32 s{sLVL}, 2, s{sLVL}")
        e(f"v_mov_b32 v{reg}, {self.L['LVL']}")
        e(f"v_mov_b32 v{reg+1}, s{sLVL}")
        e(f"ds_write_b32 v{reg}, v{reg+1}")
        self.label(l)

    def lvl_read(self, reg):
        if self.cfg.THR != 1 or not self.thr_on:
            return
        self.e(f"v_mov_b32 v{reg}, {self.L['LVL']}")
        self.ds(f"ds_read_b32 v{reg}, v{reg}")
        self.lvl_pending = reg

    def lvl_take(self):
        if self.lvl_pending is not None:
            self.e(f"v_readfirstlane_b32 s{sLVL}, v{self.lvl_pending}")
            self.lvl_pending = None

    def k_phase(self, tiles, pas, hooks=None):
        e = self.e

        def reads(i):
            blk, n, slot, resident, frees = tiles[i]
            if not resident:
                self.force_issued(("K", blk, n), pas)
                self.vm_wait(("K", blk, n))
            for s in range(4):
                self.ds(f"ds_read_b128 v[{vKF+4*s}:{vKF+4*s+3}], v{vKR+s} offset:{slot*4096}")

        def select(i):
            blk, n, slot, resident, frees = tiles[i]
            d = vD + 4 * (i & 1)
            e(f"s_lshl_b64 s[{sMK}:{sMK+1}], s[{sM0}:{sM0+1}], {n}")
            for r in range(4):
                e(f"v_cndmask_b32 v{vS+r}, v{vS+r}, v{d+r}, s[{sMK}:{sMK+1}]")

        reads(0)
        for i in range(len(tiles)):
            blk, n, slot, resident, frees = tiles[i]
            self.lg_wait_all()
            self.lvl_take()
            for tok in frees:
                self.ready.add(tok)
            d = vD + 4 * (i & 1)
            for s in range(4):
                c = "0" if s == 0 else f"v[{d}:{d+3}]"
                e(f"v_mfma_f32_16x16x32_bf16 v[{d}:{d+3}], v[{vKF+4*s}:{vKF+4*s+3}], v[{vQF+4*s}:{vQF+4*s+3}], {c}")
            if hooks and i in hooks:
                hooks[i]()
            self.pump(pas)
            if i + 1 < len(tiles):
                if (i & 1) == 0:
                    self.lvl_read(vT1)
                reads(i + 1)
            if i > 0:
                select(i - 1)
        select(len(tiles) - 1)

    def softmax(self, first):
        e = self.e
        a, b = vT0, vT1
        e(f"v_max3_f32 v{a}, v{vS}, v{vS+1}, v{vS+2}")
        e(f"v_max_f32 v{a}, v{a}, v{vS+3}")
        self.bfly_row("v_max_f32", [a])
        self.swap_reduce("v_max_f32", [a], [b], 16)
        self.swap_reduce("v_max_f32", [a], [b], 32)
        if first:
            e(f"v_mov_b32 v{vMR}, v{a}")
        else:
            e(f"v_max_f32 v{a}, v{a}, v{vMR}")
            e(f"v_sub_f32 v{b}, v{vMR}, v{a}")
            e(f"v_mul_f32 v{b}, s{sCS}, v{b}")
            e(f"v_exp_f32 v{b}, v{b}")
            e(f"v_mov_b32 v{vMR}, v{a}")
            for r in range(8):
                e(f"v_mul_f32 v{vO+r}, v{b}, v{vO+r}")
            e(f"v_mul_f32 v{vLR}, v{b}, v{vLR}")
        e(f"v_mul_f32 v{a}, s{sCS}, v{vMR}")
        for r in range(4):
            e(f"v_fma_f32 v{vS+r}, v{vS+r}, s{sCS}, -v{a}")
        for r in range(4):
            e(f"v_exp_f32 v{vS+r}, v{vS+r}")
        for r in range(4):
            e(f"v_cvt_pk_bf16_f32 v{vD+r}, v{vS+r}, v{vS+r}")
        for r in range(4):
            self.ds(f"ds_write_b32 v{vPW}, v{vD+r} offset:{r*144}")
        e(f"v_add_f32 v{vS}, v{vS}, v{vS+1}")
        e(f"v_add_f32 v{vS+2}, v{vS+2}, v{vS+3}")
        e(f"v_add_f32 v{vS}, v{vS}, v{vS+2}")
        if first:
            e(f"v_mov_b32 v{vLR}, v{vS}")
        else:
            e(f"v_add_f32 v{vLR}, v{vLR}, v{vS}")
        self.lg_wait_all()

    def v_phase(self, blk, pas, first, order, resident, frees, hooks):
        e = self.e
        groups = [order[i:i + 4] for i in range(0, len(order), 4)]
        for g in groups:
            assert g == list(range(g[0], g[0] + 4)) and g[0] % 4 == 0

        def pread(gi):
            p = vP0 if (gi & 1) == 0 else vP1
            self.ds(f"ds_read_b128 v[{p}:{p+3}], v{vPR} offset:{groups[gi][0]*4}", tag=("P", gi))

        def bbuild(pos, half):
            gi, k = pos // 4, pos % 4
            p = (vP0 if (gi & 1) == 0 else vP1) + k
            b = vB0 if (pos & 1) == 0 else vB1
            for jj in (2 * half, 2 * half + 1):
                e(f"v_and_b32 v{b+jj}, v{p}, v{vM+jj}")

        pread(0)
        self.lg_wait(("P", 0))
        if len(groups) > 1:
            pread(1)
        bbuild(0, 0); bbuild(0, 1)
        for pos, u in enumerate(order):
            if pos in hooks:
                hooks[pos]()
            b = vB0 if (pos & 1) == 0 else vB1
            nxt = pos + 1 < len(order)
            if nxt and (pos + 1) % 4 == 0:
                self.lg_wait(("P", (pos + 1) // 4))
                self.lvl_take()
            for half in range(2):
                t = 2 * u + half
                if not resident(t):
                    self.force_issued(("V", blk, t), pas)
                    self.vm_wait(("V", blk, t))
                if nxt:
                    bbuild(pos + 1, half)
                o = vO + 4 * half
                c = "0" if (first and pos == 0) else f"v[{o}:{o+3}]"
                e(f"v_mfma_f32_16x16x32_bf16 v[{o}:{o+3}], {self.vreg_of(blk, t, pas)}, v[{b}:{b+3}], {c}")
            if nxt and (pos + 1) % 4 == 0 and (pos + 1) // 4 + 1 < len(groups):
                if blk != "Q":
                    self.lvl_read(vD + 2)
                pread((pos + 1) // 4 + 1)
            for tok in frees.get(u, []):
                self.ready.add(tok)
            self.pump(pas)

    def w_dma(self, vtmp, cond=False, tag=None):
        e = self.e
        e(f"v_lshrrev_b32 v{vtmp}, 1, v{vLANE}")
        e(f"v_mul_lo_u32 v{vtmp}, v{vtmp}, s{sT1}")
        e(f"v_and_b32 v{vtmp+1}, 1, v{vLANE}")
        e(f"v_lshl_add_u32 v{vtmp}, v{vtmp+1}, 4, v{vtmp}")
        e(f"s_lshl_b32 s{sT3}, s{sT1}, 5")
        for i in range(4):
            e(f"s_add_u32 m0, s{sWB}, {i*1024}")
            if i > 0:
                e(f"s_add_u32 s{sT2}, s{sT2}, s{sT3}")
            self.vm(f"buffer_load_dwordx4 v{vtmp}, s[{sW}:{sW+3}], s{sT2} offen lds", tag=tag if i == 3 else None, cond=cond)

    def w_frags(self, dst, vtmp):
        e = self.e
        e(f"v_lshrrev_b32 v{vtmp}, 4, v{vLANE}")
        e(f"v_lshlrev_b32 v{vtmp}, 3, v{vtmp}")
        e(f"v_bfe_u32 v{vtmp+1}, v{vLANE}, 2, 2")
        e(f"v_add_u32 v{vtmp}, v{vtmp}, v{vtmp+1}")
        e(f"v_lshlrev_b32 v{vtmp}, 5, v{vtmp}")
        e(f"v_and_b32 v{vtmp+1}, 3, v{vLANE}")
        e(f"v_lshl_add_u32 v{vtmp}, v{vtmp+1}, 3, v{vtmp}")
        e(f"v_add_u32 v{vtmp}, s{sWB}, v{vtmp}")
        for s in range(4):
            self.ds(f"ds_read_b64_tr_b16 v[{dst+4*s}:{dst+4*s+1}], v{vtmp} offset:{s*1024}")
            self.ds(f"ds_read_b64_tr_b16 v[{dst+4*s+2}:{dst+4*s+3}], v{vtmp} offset:{s*1024+128}")

    def set_wo(self):
        e = self.e
        self.srd(sW, sWO, 4096 * 512 * 2)
        e(f"s_mov_b32 s{sT1}, 1024")
        if self.cfg.GY:
            e(f"s_and_b32 s{sT2}, s2, 7")
            e(f"s_lshl_b32 s{sT2}, s{sT2}, 19")
            e(f"s_lshl_b32 s{sT3}, s{sWAVE}, 17")
            e(f"s_add_u32 s{sT2}, s{sT2}, s{sT3}")
            e(f"s_lshr_b32 s{sT3}, s2, 3")
            e(f"s_lshl_b32 s{sT3}, s{sT3}, 5")
            e(f"s_add_u32 s{sT2}, s{sT2}, s{sT3}")
            return
        e(f"s_lshl_b32 s{sT2}, s{sH}, 17")
        e(f"s_lshl_b32 s{sT3}, s{sJ}, 7")
        e(f"s_add_u32 s{sT2}, s{sT2}, s{sT3}")
        e(f"s_lshl_b32 s{sT3}, s{sWAVE}, 5")
        e(f"s_add_u32 s{sT2}, s{sT2}, s{sT3}")

    def set_wq(self):
        e = self.e
        self.srd(sW, sWQ, 512 * 4096 * 2)
        e(f"s_mov_b32 s{sT1}, 8192")
        e(f"s_lshr_b32 s{sT2}, s{sJ}, 1")
        e(f"s_lshl_b32 s{sT2}, s{sT2}, 20")
        e(f"s_lshl_b32 s{sT3}, s{sH}, 8")
        e(f"s_add_u32 s{sT2}, s{sT2}, s{sT3}")
        e(f"s_and_b32 s{sT3}, s{sJ}, 1")
        e(f"s_lshl_b32 s{sT3}, s{sT3}, 7")
        e(f"s_add_u32 s{sT2}, s{sT2}, s{sT3}")
        e(f"s_lshl_b32 s{sT3}, s{sWAVE}, 5")
        e(f"s_add_u32 s{sT2}, s{sT2}, s{sT3}")

    def set_w1(self):
        e = self.e
        self.srd(sW, sW1, 512 * 1792 * 2)
        e(f"s_mov_b32 s{sT1}, 3584")
        e(f"s_mul_i32 s{sT2}, s{sWAVE}, {128*3584}")
        e(f"s_lshl_b32 s{sT3}, s2, 5")
        e(f"s_add_u32 s{sT2}, s{sT2}, s{sT3}")

    def stage1_dma(self):
        self.set_wo()
        self.w_dma(vT0, tag="wo")

    def stage2_dma(self):
        lf, lj = self.lab("Ls2"), self.lab("Ls2j")
        self.e(f"s_cmp_lt_u32 s2, {NF}")
        self.e(f"s_cbranch_scc1 {lf}")
        self.set_wq()
        self.e(f"s_branch {lj}")
        self.label(lf)
        self.set_w1()
        self.label(lj)
        self.w_dma(vT0, tag="w2nd")

    def last_block_hooks(self, pas):
        def h0():
            if pas == 1 and not self.cfg.NOARR:
                self.arrival_load()
            L = self.L
            self.vm_wait("wo")
            self.w_frags(vQF, vT0)
            self.bfly_row("v_add_f32", [vLR])
            self.swap_reduce("v_add_f32", [vLR], [vT0], 16)
            self.swap_reduce("v_add_f32", [vLR], [vT0], 32)
            self.e(f"s_lshl_b32 s{sT0}, s{sWAVE}, 3")
            self.e(f"s_add_u32 s{sT0}, s{sT0}, {L['ML']}")
            self.e(f"v_mov_b32 v{vT0}, s{sT0}")
            self.ds(f"ds_write_b64 v{vT0}, v[{vMR}:{vMR+1}]")
            self.lg_wait_all()
            self.stage2_dma()
        return h0

    def w2_prefetch(self):
        e = self.e
        self.srd(sW, sW2, 1792 * 512 * 2)
        e(f"v_lshlrev_b32 v9, 6, v{vLANE}")
        e(f"s_lshl_b32 s{sT0}, s2, 14")
        e(f"s_lshl_b32 s{sT1}, s{sWAVE}, 12")
        e(f"s_add_u32 s{sT0}, s{sT0}, s{sT1}")
        self.vm(f"buffer_load_dword v9, v9, s[{sW}:{sW+3}], s{sT0} offen")

    def pass1(self):
        cfg = self.cfg
        NR = cfg.NR
        assert NR == 8
        pas = 1
        self._vo = None
        kB = [("B", n, n % NR, False, [("slot", n % NR, "B", n + 8)] if n < 8 else [("slot", n % NR, "A", n)]) for n in range(16)]
        self.k_phase(kB, pas, self.ck_plan(cfg.CK1, "KB"))
        self.stamp(6)
        self.softmax(first=True)
        self.v_phase("B", pas, True, list(range(32)), lambda t: False,
                     {31: [("tmpfree",)]}, self.ck_plan(cfg.CK1, "VB"))
        self.stamp(7)
        kA = [("A", n, n % NR, False, [("slot", n % NR, "A", n - 8)]) for n in range(8, 16)] + \
             [("A", n, n, False, []) for n in range(8)]
        self.k_phase(kA, pas, self.ck_plan(cfg.CK1, "KA"))
        self.stamp(8)
        self.softmax(first=False)
        if self.capend: self.cap = self.capend
        hk = self.ck_plan(cfg.CK1, "VA")
        h0, h1 = self.last_block_hooks(1), hk.get(0)
        hk[0] = (lambda: (h0(), h1())) if h1 else h0
        if cfg.W2PF:
            hk[cfg.W2PF] = self.w2_prefetch
        self.v_phase("A", pas, False, list(range(32)), lambda t: False, {}, hk)
        assert not self.pending, self.pending
        if not cfg.NOARR:
            self.arrival_check()

    def pass1_list(self):
        cfg = self.cfg
        nret = (256 - cfg.NWORK) // 4
        wq = [dict(kind="Q", t=t, tag=("V", "Q", t), need=None, cnt=1) for t in range(32)]
        k0 = [self.k_desc("B", n, n) for n in range(8)]
        for d in k0:
            d["need"] = None
        ls, wq = wq[:cfg.QF], wq[cfg.QF:]
        while wq:
            if k0:
                ls.append(k0.pop(0))
            ls += wq[:cfg.QA]
            wq = wq[cfg.QA:]
        ls += k0
        vb = lambda t: self.v_desc("B", t, need=("qdone",) if t >= nret else None)
        ls += [vb(t) for t in range(cfg.INIT_V)]
        ls += [self.k_desc("B", n, n % 8) for n in range(8, 16)]
        ls += [vb(t) for t in range(cfg.INIT_V, 64)]
        ls += [self.k_desc("A", n, n % 8) for n in range(8, 16)]
        ls += [self.k_desc("A", n, n % 8) for n in range(0, 8)]
        ls += [dict(kind="F", fn=self.stage1_dma, need=None, cnt=4, tag="wo")]
        ntmp = 64 - nret
        ls += [self.v_desc("A", t, need=("tmpfree",) if t < ntmp else None) for t in range(64)]
        return self.split_k(ls)

    def pass2(self):
        cfg = self.cfg
        pas = 2
        nret = (256 - cfg.NWORK) // 4
        self._vo = None
        for k in list(self.vm_tags):
            if isinstance(k, tuple) and k[0] in ("K", "V"):
                del self.vm_tags[k]
        self.vm_tags.pop("wo", None); self.vm_tags.pop("w2nd", None)
        self.ready = set()
        ls = []
        ls += [self.k_desc("A", n, n % 8) for n in range(8, 16)]
        ls += [self.k_desc("B", n, n % 8) for n in range(0, 16)]
        ls += [dict(kind="F", fn=self.stage1_dma, need=None, cnt=4, tag="wo")]
        ls += [self.v_desc("B", t, need=("afree",)) for t in range(nret, 64)]
        self.pending = self.split_k(ls)
        kA = [("A", n, n, True, [("slot", n, "A", n + 8)]) for n in range(8)] + \
             [("A", n, n % 8, False, [("slot", n % 8, "B", n - 8)]) for n in range(8, 16)]
        self.thr_on = False
        if cfg.THR == 1:
            self.e(f"s_mov_b32 s{sLVL}, 0")
        cap_rest = self.cap
        if cfg.CAP2A:
            self.cap = cfg.CAP2A
        self.k_phase(kA, pas, self.ck_plan(cfg.CK2, "KA"))
        self.stamp(38)
        self.softmax(first=True)
        self.v_phase("A", pas, True, list(range(32)), lambda t: True, {31: [("afree",)]}, self.ck_plan(cfg.CK2, "VA"))
        self.stamp(39)
        self.cap = cap_rest
        kB = [("B", n, n % 8, False, [("slot", n % 8, "B", n + 8)] if n < 8 else []) for n in range(16)]
        if self.capend: self.cap = self.capend
        self.k_phase(kB, pas, self.ck_plan(cfg.CK2, "KB"))
        self.stamp(40)
        self.softmax(first=False)
        hk = self.ck_plan(cfg.CK2, "VB")
        assert 0 not in hk
        hk[0] = self.last_block_hooks(2)
        if cfg.W2PF:
            hk[min(cfg.W2PF, 4)] = self.w2_prefetch
        self.v_phase("B", pas, False, list(range(32)), lambda t: t < nret, {}, hk)
        assert not self.pending, self.pending

    def prologue(self):
        cfg, L, e = self.cfg, self.L, self.e
        e("s_cmp_ge_u32 s2, 256")
        e("s_cbranch_scc1 L_exit")
        self.stamp(0)
        e("s_load_dwordx4 s[4:7], s[0:1], 8")
        e(f"s_load_dwordx2 s[{sX}:{sX+1}], s[0:1], 0")
        e(f"s_load_dwordx4 s[{sWQ}:{sWQ+3}], s[0:1], 24")
        e(f"s_load_dwordx2 s[{sT4}:{sT4+1}], s[0:1], 96")
        e(f"s_load_dwordx2 s[{sW1}:{sW1+1}], s[0:1], 48")
        e(f"s_load_dwordx2 s[{sB1}:{sB1+1}], s[0:1], 56")
        e(f"s_load_dwordx2 s[{sW2}:{sW2+1}], s[0:1], 64")
        e(f"s_load_dwordx2 s[{sB2}:{sB2+1}], s[0:1], 72")
        e(f"s_load_dwordx4 s[{sOUT}:{sOUT+3}], s[0:1], 80")
        if cfg.CPF:
            lc = self.lab("Lcpf")
            e(f"s_cmp_ge_u32 s2, {cfg.CPF}")
            e(f"s_cbranch_scc1 {lc}")
            e(f"s_getpc_b64 s[{sT0}:{sT0+1}]")
            self.label("L_pc")
            e(f"v_lshlrev_b32 v{vD}, 7, v0")
            e(f"v_min_u32 v{vD}, L_exit-L_pc, v{vD}")
            e(f"v_mov_b32 v{vD+1}, s{sT0+1}")
            e(f"v_add_co_u32 v{vD}, vcc, s{sT0}, v{vD}")
            e(f"v_addc_co_u32 v{vD+1}, vcc, 0, v{vD+1}, vcc")
            self.vm(f"global_load_dword v255, v[{vD}:{vD+1}], off", cond=True)
            self.label(lc)
        e(f"v_lshrrev_b32 v{vT0}, 6, v0")
        e(f"v_and_b32 v{vLANE}, 63, v0")
        e(f"v_readfirstlane_b32 s{sWAVE}, v{vT0}")
        if cfg.XMAP:
            e(f"s_and_b32 s{sH}, s2, 7")
            e(f"s_lshl_b32 s{sH}, s{sH}, 2")
            e(f"s_bfe_u32 s{sJ}, s2, 0x20003")
            e(f"s_add_u32 s{sH}, s{sH}, s{sJ}")
            e(f"s_lshr_b32 s{sJ}, s2, 5")
        else:
            e(f"s_lshr_b32 s{sH}, s2, 3")
            e(f"s_and_b32 s{sJ}, s2, 7")
        e(f"s_lshr_b32 s{sB}, s{sJ}, 2")
        e(f"s_and_b32 s{sC}, s{sJ}, 3")
        e(f"s_lshl_b32 s{sBLK}, s{sH}, 3")
        e(f"s_add_u32 s{sBLK}, s{sBLK}, s{sJ}")
        e(f"s_lshl_b32 s{sBLK}, s{sBLK}, 14")
        e(f"s_lshl_b32 s{sBLKW}, s2, 14")
        e(f"s_mov_b32 s{sL}, 0")
        if cfg.CAPO:
            e(f"s_getreg_b32 s{sPAR}, hwreg(HW_REG_XCC_ID, 0, 1)")
        e(f"s_mul_i32 s{sRING}, s{sWAVE}, {cfg.NR*4096}")
        e(f"s_lshl_b32 s{sWB}, s{sWAVE}, 12")
        e(f"s_add_u32 s{sWB}, s{sWB}, {L['W']}")
        e(f"s_mov_b32 s{sM0}, 0x00010001"); e(f"s_mov_b32 s{sM0+1}, 0x00010001")
        e(f"s_mov_b32 s{sLT8}, 0x00ff00ff"); e(f"s_mov_b32 s{sLT8+1}, 0x00ff00ff")
        e(f"s_mov_b32 s{sN2}, 0x00030003"); e(f"s_mov_b32 s{sN2+1}, 0x00030003")
        e(f"s_mov_b32 s{sN3}, 0x00070007"); e(f"s_mov_b32 s{sN3+1}, 0x00070007")
        e(f"s_mov_b32 s{sCS}, {hex(f2u(SCALE))}")
        e(f"s_lshl_b32 s{sT0}, s{sB}, 5")
        e(f"s_add_u32 s{sT0}, s{sT0}, s{sH}")
        e(f"s_lshl_b32 s{sT0}, s{sT0}, 21")
        e(f"s_lshl_b32 s{sT1}, s{sC}, 19")
        e(f"s_add_u32 s{sT0}, s{sT0}, s{sT1}")
        e(f"s_lshl_b32 s{sT1}, s{sWAVE}, 17")
        e(f"s_add_u32 s{sT0}, s{sT0}, s{sT1}")
        e(f"v_lshlrev_b32 v{vVOFF}, 4, v{vLANE}")
        e(f"v_lshrrev_b32 v{vT1}, 4, v{vLANE}")
        e(f"v_lshlrev_b32 v{vT1}, 13, v{vT1}")
        e(f"v_and_b32 v{vT0}, 15, v{vLANE}")
        e(f"v_lshl_add_u32 v{vQF}, v{vT0}, 4, v{vT1}")
        e(f"s_lshl_b32 s{sQO}, s{sWAVE}, 20")
        e(f"s_lshl_b32 s{sT3}, s{sH}, 8")
        e(f"s_add_u32 s{sQO}, s{sQO}, s{sT3}")
        if cfg.EARLYC:
            self.consts(sT2)
        e("s_waitcnt lgkmcnt(0)")
        e(f"s_add_u32 s{sV}, s6, s{sT0}")
        e(f"s_addc_u32 s{sV+1}, s7, 0")
        e(f"s_and_b32 s{sV+1}, s{sV+1}, 0xffff")
        e(f"s_mov_b32 s{sV+2}, 131072")
        e(f"s_mov_b32 s{sV+3}, 0x20000")
        self.srd(sK, 4, 131072, add=sT0)
        self.srd(sWS, sT4, 256 * BLK + (1 << 20))
        if cfg.THR == 1:
            self.srd(sCK, sDBG, 256)
            e(f"s_mov_b32 s{sLVL}, 0")
        if cfg.THR == 2:
            e(f"s_getreg_b32 s{sLVL}, hwreg(HW_REG_XCC_ID, 0, 1)")
            e(f"s_xor_b32 s{sLVL}, s{sLVL}, 1")
        self.stamp(28)
        self.c("clear own hand-off slots")
        for r in range(4):
            e(f"v_mov_b32 v{vD+r}, -1")
        e(f"s_cmp_eq_u32 s{sWAVE}, 3")
        e(f"s_cselect_b32 s{sT1}, s{sBLKW}, s{sBLK}")
        e(f"s_lshl_b32 s{sT0}, s{sWAVE}, 10")
        e(f"s_add_u32 s{sT1}, s{sT0}, s{sT1}")
        self.vm(f"buffer_store_dwordx4 v[{vD}:{vD+3}], v{vVOFF}, s[{sWS}:{sWS+3}], s{sT1} offen sc1")
        e(f"s_add_u32 s{sT1}, s{sT1}, {LOFF}")
        self.vm(f"buffer_store_dwordx4 v[{vD}:{vD+3}], v{vVOFF}, s[{sWS}:{sWS+3}], s{sT1} offen sc1")
        lnf = self.lab("Lnf")
        e(f"s_cmp_lt_u32 s2, {NF}")
        e(f"s_cbranch_scc0 {lnf}")
        e(f"s_add_u32 s{sT0}, s{sT0}, s{sBLKW}")
        e(f"s_add_u32 s{sT0}, s{sT0}, {FP}")
        e(f"s_add_u32 s{sT1}, s{sT0}, {LOFF}")
        self.vm(f"buffer_store_dwordx4 v[{vD}:{vD+3}], v{vVOFF}, s[{sWS}:{sWS+3}], s{sT0} offen sc1", cond=True)
        self.vm(f"buffer_store_dwordx4 v[{vD}:{vD+3}], v{vVOFF}, s[{sWS}:{sWS+3}], s{sT1} offen sc1", cond=True)
        self.label(lnf)
        self.srd(sW, sX, 2048)
        lnr = self.lab("Lnr")
        e(f"s_cmp_ge_u32 s2, {R0}")
        e(f"s_cbranch_scc0 {lnr}")
        e(f"s_sub_u32 s{sT0}, s2, {R0}")
        e(f"s_lshl_b32 s{sT0}, s{sT0}, 6")
        e(f"v_and_b32 v{vT0}, 7, v{vLANE}")
        e(f"v_lshlrev_b32 v{vT0}, 3, v{vT0}")
        self.vm(f"buffer_load_dwordx2 v[{vO}:{vO+1}], v{vT0}, s[{sW}:{sW+3}], s{sT0} offen", cond=True)
        self.label(lnr)
        e(f"s_lshl_b32 s{sT0}, s{sB}, 10")
        self.vm(f"buffer_load_dwordx4 v[{vS}:{vS+3}], v{vVOFF}, s[{sW}:{sW+3}], s{sT0} offen", tag="xrow")
        self.srd(sW, sWQ, 512 * 4096 * 2)
        self.pending = self.pass1_list()
        self.cap = cfg.CAP0
        self._vo = None
        self.stamp(29)
        self.pump(1, limit=cfg.QF)
        self.stamp(30)
        if not cfg.EARLYC:
            self.consts()
        self.pump(1)
        self.stamp(1)
        e(f"v_and_b32 v{vD}, 31, v{vLANE}")
        e(f"v_lshlrev_b32 v{vD}, 3, v{vD}")
        e(f"v_add_u32 v{vD}, {L['XQ']+512}, v{vD}")
        e(f"v_mov_b32 v{vD+2}, 0x3f803f80"); e(f"v_mov_b32 v{vD+3}, 0x3f803f80")
        self.ds(f"ds_write_b64 v{vD}, v[{vD+2}:{vD+3}]")
        self.vm_wait("xrow")
        self.stamp(3)
        x = vD
        for r in range(4):
            e(f"v_lshlrev_b32 v{x+2*r}, 16, v{vS+r}")
            e(f"v_and_b32 v{x+2*r+1}, 0xffff0000, v{vS+r}")
        e(f"v_add_f32 v{vMR}, v{x}, v{x+1}")
        e(f"v_mul_f32 v{vLR}, v{x}, v{x}")
        e(f"v_fmac_f32 v{vLR}, v{x+1}, v{x+1}")
        for r in range(2, 8):
            e(f"v_add_f32 v{vMR}, v{vMR}, v{x+r}")
            e(f"v_fmac_f32 v{vLR}, v{x+r}, v{x+r}")
        lnr2 = self.lab("Lnr2")
        e(f"s_cmp_ge_u32 s2, {R0}")
        e(f"s_cbranch_scc0 {lnr2}")
        e(f"v_lshlrev_b32 v{vO+4}, 16, v{vO}")
        e(f"v_and_b32 v{vO+5}, 0xffff0000, v{vO}")
        e(f"v_lshlrev_b32 v{vO+6}, 16, v{vO+1}")
        e(f"v_and_b32 v{vO+7}, 0xffff0000, v{vO+1}")
        e(f"v_and_b32 v{vT0}, 7, v{vLANE}")
        e(f"v_lshlrev_b32 v{vT0}, 4, v{vT0}")
        e(f"v_add_u32 v{vT0}, {L['XRES']}, v{vT0}")
        e(f"ds_write_b128 v{vT0}, v[{vO+4}:{vO+7}]")
        self.label(lnr2)
        self.bfly_row("v_add_f32", [vMR, vLR])
        self.swap_reduce("v_add_f32", [vMR, vLR], [vT0, vT1], 16)
        self.swap_reduce("v_add_f32", [vMR, vLR], [vT0, vT1], 32)
        self.mean_rstd(vMR, vLR, None)
        for r in range(8):
            e(f"v_sub_f32 v{x+r}, v{x+r}, v{vMR}")
        for r in range(8):
            e(f"v_mul_f32 v{x+r}, v{vLR}, v{x+r}")
        for r in range(8):
            e(f"v_cvt_pk_bf16_f32 v{x+r}, v{x+r}, v{x+r}")
        e(f"s_mul_i32 s{sT0}, s{sWAVE}, 1152")
        e(f"s_add_u32 s{sT0}, s{sT0}, {L['PBUF']}")
        e(f"v_and_b32 v{vT0}, 15, v{vLANE}")
        e(f"v_lshlrev_b32 v{vT0}, 2, v{vT0}")
        e(f"v_add_u32 v{vT0}, s{sT0}, v{vT0}")
        e(f"s_lshl_b32 s{sT0}, s{sWAVE}, 4")
        e(f"s_mov_b64 s[{sMK}:{sMK+1}], 0xffff")
        e(f"s_lshl_b64 s[{sMK}:{sMK+1}], s[{sMK}:{sMK+1}], s{sT0}")
        e(f"s_mov_b64 exec, s[{sMK}:{sMK+1}]")
        for r in range(8):
            self.ds(f"ds_write_b32 v{vT0}, v{x+r} offset:{r*144}")
        e("s_mov_b64 exec, -1")
        self.lg_wait_all()
        self.stamp(4)
        qh = {1: lambda: self.stamp(24), 4: lambda: self.stamp(25), 8: lambda: self.stamp(26), 12: lambda: self.stamp(27)} if cfg.PROF else {}
        self.v_phase("Q", 1, True, list(range(16)), lambda t: False, {15: [("qdone",)]}, qh)
        self.cap = cfg.CAP
        self.stamp(2)
        t = vS
        e(f"v_and_b32 v{vT0}, 15, v{vLANE}")
        e(f"v_lshrrev_b32 v{vT1}, 3, v{vT0}")
        e(f"s_lshl_b32 s{sT0}, s{sWAVE}, 1")
        e(f"v_add_u32 v{vT1}, s{sT0}, v{vT1}")
        e(f"v_lshlrev_b32 v{vT1}, 9, v{vT1}")
        e(f"v_and_b32 v{vT0}, 7, v{vT0}")
        e(f"v_lshl_add_u32 v{vT1}, v{vT0}, 2, v{vT1}")
        e(f"v_lshrrev_b32 v{vT0}, 4, v{vLANE}")
        e(f"v_lshl_add_u32 v{vT1}, v{vT0}, 7, v{vT1}")
        e(f"v_add_u32 v{vT1}, {L['RED']}, v{vT1}")
        for r in range(4):
            e(f"v_cndmask_b32 v{t+r}, v{vO+4+r}, v{vO+r}, s[{sLT8}:{sLT8+1}]")
        for r in range(4):
            e(f"ds_write_b32 v{vT1}, v{t+r} offset:{r*32}")
        e(f"s_and_b32 s{sT0}, s{sWAVE}, 1")
        e(f"s_lshl_b32 s{sT0}, s{sT0}, 8")
        e(f"v_lshlrev_b32 v{vT0}, 2, v{vLANE}")
        e(f"v_add_u32 v{vT0}, s{sT0}, v{vT0}")
        e(f"v_lshrrev_b32 v{vT1}, 1, v{vT0}")
        e(f"v_add_u32 v{vT1}, {L['QBUF']}, v{vT1}")
        e(f"v_add_u32 v{vT0}, {L['RED']}, v{vT0}")
        e("s_waitcnt lgkmcnt(0)")
        e("s_barrier")
        t = vD
        for p in range(8):
            e(f"ds_read_b32 v{t+p}, v{vT0} offset:{p*512}")
        la = self.lab("Larr")
        e(f"s_cmp_lg_u32 s{sWAVE}, 0")
        e(f"s_cbranch_scc1 {la}")
        if cfg.NOARR:
            e(f"s_branch {la}")
        if cfg.THR == 1:
            e(f"v_mov_b32 v{vS}, {L['LVL']}")
            e(f"v_mov_b32 v{vS+1}, 0")
            e(f"ds_write_b32 v{vS}, v{vS+1}")
        if True:
            self.srd(sW, sDBG, 256)
            e(f"s_lshl_b32 s{sT1}, s{sH}, 2")
            e(f"v_mov_b32 v{vS}, s{sT1}")
            if cfg.LOC:
                e(f"s_getreg_b32 s{sT2}, hwreg(HW_REG_XCC_ID, 0, 4)")
                e(f"s_mul_i32 s{sT3}, s{sT2}, s{sT2}")
                e(f"s_lshl_b32 s{sT3}, s{sT3}, 16")
                e(f"s_lshl_b32 s{sT2}, s{sT2}, 8")
                e(f"s_add_u32 s{sT2}, s{sT2}, s{sT3}")
                e(f"s_add_u32 s{sT2}, s{sT2}, 1")
                e(f"v_mov_b32 v{vS+1}, s{sT2}")
                e(f"s_lshl_b32 s{sLOC}, s{sT2}, 3")
            else:
                e(f"v_mov_b32 v{vS+1}, 1")
            e("s_mov_b64 exec, 1")
            self.vm(f"buffer_atomic_add v{vS+1}, v{vS}, s[{sW}:{sW+3}], 0 offen sc1", cond=True)
            e("s_mov_b64 exec, -1")
        self.label(la)
        e("s_waitcnt lgkmcnt(0)")
        for p in range(0, 8, 2):
            e(f"v_add_f32 v{t+p}, v{t+p}, v{t+p+1}")
        e(f"v_add_f32 v{t}, v{t}, v{t+2}")
        e(f"v_add_f32 v{t+4}, v{t+4}, v{t+6}")
        e(f"v_add_f32 v{t}, v{t}, v{t+4}")
        e(f"v_cvt_pk_bf16_f32 v{t}, v{t}, v{t}")
        e(f"ds_write_b16 v{vT1}, v{t}")
        e(f"v_and_b32 v{vT0}, 48, v{vLANE}")
        e(f"v_add_u32 v{vT0}, {L['QBUF']}, v{vT0}")
        e("s_waitcnt lgkmcnt(0)")
        e("s_barrier")
        for s in range(4):
            e(f"ds_read_b128 v[{vQF+4*s}:{vQF+4*s+3}], v{vT0} offset:{s*64}")
        e("s_waitcnt lgkmcnt(0)")
        self.stamp(5)

    def arrival_load(self):
        e = self.e
        l = self.lab("Lal")
        e(f"s_cmp_lg_u32 s{sWAVE}, 0")
        e(f"s_cbranch_scc1 {l}")
        self.srd(sW, sDBG, 256)
        if True:
            e(f"v_and_b32 v{vS+1}, 31, v{vLANE}")
            e(f"v_lshlrev_b32 v{vS+1}, 2, v{vS+1}")
        self.vm(f"buffer_load_dword v{vS}, v{vS+1}, s[{sW}:{sW+3}], 0 offen sc1", cond=True)
        self.label(l)

    def arrival_check(self):
        e = self.e
        l = self.lab("Lac")
        e(f"s_cmp_lg_u32 s{sWAVE}, 0")
        e(f"s_cbranch_scc1 {l}")
        e("s_waitcnt vmcnt(0)")

        def missing():
            if False:
                e(f"v_subrev_u32 v{vS+2}, 0x01010101, v{vS}")
                e(f"v_not_b32 v{vS+3}, v{vS}")
                e(f"v_and_b32 v{vS+2}, v{vS+2}, v{vS+3}")
                e(f"v_and_b32 v{vS+2}, 0x80808080, v{vS+2}")
                e(f"v_cmp_ne_u32 vcc, 0, v{vS+2}")
            elif self.cfg.LOC:
                e(f"v_and_b32 v{vS+2}, 0xff, v{vS}")
                e(f"v_cmp_gt_u32 vcc, 8, v{vS+2}")
            else:
                e(f"v_cmp_gt_u32 vcc, 8, v{vS}")
        missing()
        l2 = self.lab("Lac2") if self.cfg.LOC else l
        e(f"s_cbranch_vccz {l2}")
        self.srd(sW, sDBG, 256)
        lp = self.poll_begin()
        e(f"buffer_load_dword v{vS}, v{vS+1}, s[{sW}:{sW+3}], 0 offen sc1")
        e("s_waitcnt vmcnt(0)")
        missing()
        self.poll_end(lp)
        if self.cfg.LOC:
            self.label(l2)
            if self.cfg.GY:
                e(f"v_cmp_eq_u32 vcc, s{sLOC}, v{vS}")
                e(f"s_and_b32 s{sT0}, s{sH}, 28")
                e(f"s_lshr_b32 s{sT0}, vcc_lo, s{sT0}")
                e(f"s_and_b32 s{sT0}, s{sT0}, 15")
                e(f"s_cmp_eq_u32 s{sT0}, 15")
            else:
                e(f"v_readlane_b32 s{sT0}, v{vS}, s{sH}")
                e(f"s_cmp_eq_u32 s{sT0}, s{sLOC}")
            e(f"s_cselect_b32 s{sT0}, 1, 0")
            e(f"v_mov_b32 v{vS+2}, {self.L['LOC']}")
            e(f"v_mov_b32 v{vS+3}, s{sT0}")
            e(f"ds_write_b32 v{vS+2}, v{vS+3}")
        self.label(l)

    def loc_store(self, *ins):
        e = self.e
        if not self.cfg.LOC:
            for i in ins:
                e(i + " sc1")
            return
        lg, lj = self.lab("Lsg"), self.lab("Lsj")
        e(f"s_cmp_eq_u32 s{sLOC}, 0")
        e(f"s_cbranch_scc1 {lg}")
        for i in ins:
            e(i)
        e(f"s_branch {lj}")
        self.label(lg)
        for i in ins:
            e(i + " sc1")
        self.label(lj)

    def stats_partial(self, x):
        e = self.e
        e(f"v_add_f32 v{vMR}, v{x}, v{x+1}")
        e(f"v_mul_f32 v{vLR}, v{x}, v{x}")
        e(f"v_add_f32 v{vMR}, v{vMR}, v{x+2}")
        e(f"v_fmac_f32 v{vLR}, v{x+1}, v{x+1}")
        e(f"v_add_f32 v{vMR}, v{vMR}, v{x+3}")
        e(f"v_fmac_f32 v{vLR}, v{x+2}, v{x+2}")
        e(f"v_fmac_f32 v{vLR}, v{x+3}, v{x+3}")
        self.bfly_row("v_add_f32", [vMR, vLR])
        self.swap_reduce("v_add_f32", [vMR, vLR], [vT0, vT1], 16)

    def qe(self):
        cfg, L, e = self.cfg, self.L, self.e
        self.label("L_QE")
        e("s_barrier")
        self.stamp(34)
        e(f"v_and_b32 v{vT0}, 15, v{vLANE}")
        e(f"v_min_u32 v{vT1}, 2, v{vT0}")
        e(f"v_lshlrev_b32 v{vT1}, 8, v{vT1}")
        e(f"v_and_b32 v{vO}, 48, v{vLANE}")
        e(f"v_add_u32 v{vT1}, v{vT1}, v{vO}")
        e(f"v_add_u32 v{vT1}, {L['XQ']}, v{vT1}")
        e(f"v_lshlrev_b32 v{vT0}, 8, v{vT0}")
        e(f"v_add_u32 v{vT0}, v{vT0}, v{vO}")
        for s in range(4):
            e(f"ds_read_b128 v[{vD+4*s}:{vD+4*s+3}], v{vT1} offset:{s*64}")
        e(f"s_lshl_b32 s{sT0}, s{sWAVE}, 6")
        e(f"s_add_u32 s{sT0}, s{sT0}, s{sBLK}")
        e(f"s_add_u32 s{sT0}, s{sT0}, s{sL}")
        e("s_waitcnt lgkmcnt(0)")
        d = vO + 4
        for s in range(4):
            c = "0" if s == 0 else f"v[{d}:{d+3}]"
            e(f"v_mfma_f32_16x16x32_bf16 v[{d}:{d+3}], v[{vKF+4*s}:{vKF+4*s+3}], v[{vD+4*s}:{vD+4*s+3}], {c}")
        e(f"s_mov_b64 exec, s[{sN3}:{sN3+1}]")
        self.loc_store(f"buffer_store_dwordx4 v[{d}:{d+3}], v{vT0}, s[{sWS}:{sWS+3}], s{sT0} offen offset:{QP}")
        e("s_mov_b64 exec, -1")
        e(f"s_cmp_lg_u32 s{sWAVE}, 0")
        e("s_cbranch_scc1 L_QE_wait")
        e(f"v_lshrrev_b32 v{vT0}, 5, v{vLANE}")
        e(f"v_lshlrev_b32 v{vT0}, 3, v{vT0}")
        e(f"s_add_u32 s{sT0}, s{sBLK}, s{sL}")
        e("s_mov_b32 exec_lo, 1"); e("s_mov_b32 exec_hi, 1")
        self.loc_store(f"buffer_store_dwordx2 v[{vMR}:{vMR+1}], v{vT0}, s[{sWS}:{sWS+3}], s{sT0} offen offset:{QST}")
        e("s_mov_b64 exec, -1")
        e(f"v_bfe_u32 v{vT0}, v{vLANE}, 4, 1")
        e(f"v_lshrrev_b32 v{vT1}, 5, v{vLANE}")
        e(f"v_lshl_add_u32 v{vT0}, v{vT1}, 1, v{vT0}")
        e(f"v_lshlrev_b32 v{vT0}, 14, v{vT0}")
        e(f"v_and_b32 v{vT1}, 15, v{vLANE}")
        e(f"v_lshl_add_u32 v{vT0}, v{vT1}, 4, v{vT0}")
        e(f"s_lshl_b32 s{sT0}, s{sH}, 17")
        e(f"s_add_u32 s{sT0}, s{sT0}, s{sL}")
        e(f"s_lshl_b32 s{sT1}, s{sB}, 8")
        e(f"s_add_u32 s{sT1}, s{sT1}, s{sT0}")
        e(f"s_add_u32 s{sT2}, s{sT1}, {4*BLK}")
        e(f"v_and_b32 v{vT1}, 3, v{vLANE}")
        e(f"v_lshlrev_b32 v{vT1}, 15, v{vT1}")
        e(f"s_lshl_b32 s{sT3}, s{sB}, 3")
        e(f"s_add_u32 s{sT3}, s{sT3}, s{sT0}")
        e(f"s_add_u32 s{sT4}, s{sT0}, 512")
        e(f"s_add_u32 s{sT5}, s{sT4}, {4*BLK}")
        cs = vD + 12
        lp = self.poll_begin()
        e(f"buffer_load_dwordx4 v[{vD}:{vD+3}], v{vT0}, s[{sWS}:{sWS+3}], s{sT1} offen offset:{QP} sc1")
        e(f"buffer_load_dwordx4 v[{vD+4}:{vD+7}], v{vT0}, s[{sWS}:{sWS+3}], s{sT2} offen offset:{QP} sc1")
        e(f"buffer_load_dwordx2 v[{vD+8}:{vD+9}], v{vT1}, s[{sWS}:{sWS+3}], s{sT3} offen offset:{QST} sc1")
        e(f"buffer_load_dwordx4 v[{cs}:{cs+3}], v{vT0}, s[{sWS}:{sWS+3}], s{sT4} offen offset:{QP} sc1")
        e(f"buffer_load_dwordx4 v[{vKF}:{vKF+3}], v{vT0}, s[{sWS}:{sWS+3}], s{sT5} offen offset:{QP} sc1")
        e("s_waitcnt vmcnt(0)")
        self.poll_check(list(range(vD, vD + 10)) + list(range(cs, cs + 4)) + list(range(vKF, vKF + 4)), vKF + 4)
        self.poll_end(lp)
        self.stamp(36)
        for r in range(4):
            e(f"v_add_f32 v{cs+r}, v{cs+r}, v{vKF+r}")
            e(f"v_add_f32 v{vD+r}, v{vD+r}, v{vD+4+r}")
        self.swap_reduce("v_add_f32", [cs + r for r in range(4)] + [vD + r for r in range(4)],
                         [vKF + r for r in range(4)] + [vD + 4 + r for r in range(4)], 32)
        s1, s2 = vD + 8, vD + 9
        for qp in ("[1,0,3,2]", "[2,3,0,1]"):
            for r in (s1, s2):
                e(f"v_add_f32_dpp v{r}, v{r}, v{r} quad_perm:{qp} row_mask:0xf bank_mask:0xf")
        self.mean_rstd(s1, s2, vD + 10)
        for r in range(4):
            e(f"v_fma_f32 v{vD+r}, -v{s1}, v{cs+r}, v{vD+r}")
        for r in range(4):
            e(f"v_mul_f32 v{vD+r}, v{s2}, v{vD+r}")
        e(f"v_cvt_pk_bf16_f32 v{vD+4}, v{vD}, v{vD+1}")
        e(f"v_cvt_pk_bf16_f32 v{vD+5}, v{vD+2}, v{vD+3}")
        e(f"v_and_b32 v{vT0}, 31, v{vLANE}")
        e(f"v_lshlrev_b32 v{vT0}, 3, v{vT0}")
        e(f"v_add_u32 v{vT0}, {L['QBUF']}, v{vT0}")
        e(f"ds_write_b64 v{vT0}, v[{vD+4}:{vD+5}]")
        self.label("L_QE_wait")
        e(f"v_and_b32 v{vT1}, 48, v{vLANE}")
        e(f"v_add_u32 v{vT1}, {L['QBUF']}, v{vT1}")
        e("s_waitcnt lgkmcnt(0)")
        e("s_barrier")
        for s in range(4):
            e(f"ds_read_b128 v[{vQF+4*s}:{vQF+4*s+3}], v{vT1} offset:{s*64}")
        e("s_waitcnt lgkmcnt(0)")
        self.stamp(37)

    def mean_rstd(self, s1, s2, t):
        e = self.e
        e(f"v_mul_f32 v{s1}, {hex(f2u(1/512))}, v{s1}")
        e(f"v_mul_f32 v{s2}, {hex(f2u(1/512))}, v{s2}")
        e(f"v_fma_f32 v{s2}, -v{s1}, v{s1}, v{s2}")
        e(f"v_max_f32 v{s2}, 0, v{s2}")
        e(f"v_add_f32 v{s2}, {hex(f2u(1e-5))}, v{s2}")
        e(f"v_rsq_f32 v{s2}, v{s2}")

    def tail(self):
        cfg, L, e = self.cfg, self.L, self.e
        self.label("L_TAIL")
        self.stamp(9, True)
        t = vD
        e(f"v_and_b32 v{vT0}, 15, v{vLANE}")
        e(f"v_lshrrev_b32 v{vT1}, 3, v{vT0}")
        e(f"s_lshl_b32 s{sT0}, s{sWAVE}, 1")
        e(f"v_add_u32 v{vT1}, s{sT0}, v{vT1}")
        e(f"v_lshlrev_b32 v{vT1}, 9, v{vT1}")
        e(f"v_and_b32 v{vT0}, 7, v{vT0}")
        e(f"v_lshl_add_u32 v{vT1}, v{vT0}, 2, v{vT1}")
        e(f"v_lshrrev_b32 v{vT0}, 4, v{vLANE}")
        e(f"v_lshl_add_u32 v{vT1}, v{vT0}, 7, v{vT1}")
        e(f"v_add_u32 v{vT1}, {L['RED']}, v{vT1}")
        for r in range(4):
            e(f"v_cndmask_b32 v{t+r}, v{vO+4+r}, v{vO+r}, s[{sLT8}:{sLT8+1}]")
        for r in range(4):
            e(f"ds_write_b32 v{vT1}, v{t+r} offset:{r*32}")
        dv = 2
        e(f"s_and_b32 s{sT0}, s{sWAVE}, 1")
        e(f"s_lshl_b32 s{sT0}, s{sT0}, 8")
        e(f"v_lshlrev_b32 v{dv}, 2, v{vLANE}")
        e(f"v_add_u32 v{dv}, s{sT0}, v{dv}")
        e(f"v_add_u32 v{vT0}, {L['RED']}, v{dv}")
        e(f"v_mov_b32 v{vT1}, {L['ML']}")
        e("s_waitcnt lgkmcnt(0)")
        e("s_barrier")
        for p in range(8):
            e(f"ds_read_b32 v{t+p}, v{vT0} offset:{p*512}")
        e(f"ds_read_b128 v[{vS}:{vS+3}], v{vT1}")
        e(f"ds_read_b128 v[{vO}:{vO+3}], v{vT1} offset:16")
        if cfg.LOC:
            e(f"ds_read_b32 v{vO+6}, v{vT1} offset:{L['LOC'] - L['ML']}")
        e(f"s_add_u32 s{sT0}, s{sBLK}, s{sL}")
        e("s_waitcnt lgkmcnt(0)")
        if cfg.LOC:
            e(f"v_readfirstlane_b32 s{sLOC}, v{vO+6}")
        m = [vS, vS + 2, vO, vO + 2]; l = [vS + 1, vS + 3, vO + 1, vO + 3]
        M = vO + 4
        e(f"v_max3_f32 v{M}, v{m[0]}, v{m[1]}, v{m[2]}")
        e(f"v_max_f32 v{M}, v{M}, v{m[3]}")
        for w in range(4):
            e(f"v_sub_f32 v{m[w]}, v{m[w]}, v{M}")
        for w in range(4):
            e(f"v_mul_f32 v{m[w]}, s{sCS}, v{m[w]}")
        for w in range(4):
            e(f"v_exp_f32 v{m[w]}, v{m[w]}")
        for w in range(4):
            e(f"v_add_f32 v{t+2*w}, v{t+2*w}, v{t+2*w+1}")
        e(f"v_mul_f32 v{t}, v{m[0]}, v{t}")
        e(f"v_mul_f32 v{M+1}, v{m[0]}, v{l[0]}")
        for w in range(1, 4):
            e(f"v_fmac_f32 v{t}, v{m[w]}, v{t+2*w}")
            e(f"v_fmac_f32 v{M+1}, v{m[w]}, v{l[w]}")
        lsk = self.lab("Lop")
        e(f"s_cmp_ge_u32 s{sWAVE}, 2")
        e(f"s_cbranch_scc1 {lsk}")
        self.loc_store(f"buffer_store_dword v{t}, v{dv}, s[{sWS}:{sWS+3}], s{sT0} offen offset:{OP}")
        e(f"s_cmp_lg_u32 s{sWAVE}, 0")
        e(f"s_cbranch_scc1 {lsk}")
        e(f"s_mov_b64 s[{sEX}:{sEX+1}], exec")
        e("s_mov_b64 exec, 1")
        self.loc_store(f"buffer_store_dwordx2 v[{M}:{M+1}], off, s[{sWS}:{sWS+3}], s{sT0} offset:{OP+512}")
        e(f"s_mov_b64 exec, s[{sEX}:{sEX+1}]")
        self.label(lsk)
        self.stamp(10, True)
        e("s_waitcnt vmcnt(0)")
        self.w_frags(vKF, vT0)
        lnf = self.lab("Lnf")
        e(f"s_cmp_lt_u32 s2, {NF}")
        e(f"s_cbranch_scc0 {lnf}")
        e(f"v_mov_b32 v{t}, 0x3f803f80")
        for r in range(1, 4):
            e(f"v_mov_b32 v{t+r}, v{t}")
        e("s_waitcnt lgkmcnt(0)")
        for s in range(4):
            c = "0" if s == 0 else f"v[{vO}:{vO+3}]"
            e(f"v_mfma_f32_16x16x32_bf16 v[{vO}:{vO+3}], v[{vKF+4*s}:{vKF+4*s+3}], v[{t}:{t+3}], {c}")
        e(f"s_lshl_b32 s{sT0}, s{sWAVE}, 6")
        e(f"s_add_u32 s{sT0}, s{sT0}, {L['CS1P']}")
        e(f"v_and_b32 v{vT0}, 48, v{vLANE}")
        e(f"v_add_u32 v{vT0}, s{sT0}, v{vT0}")
        e(f"ds_write_b128 v{vT0}, v[{vO}:{vO+3}]")
        self.label(lnf)
        e("s_waitcnt lgkmcnt(0)")
        if cfg.GY:
            self.stage_a_group()
            self.roles()
            return
        self.c("stage A")
        e(f"s_lshr_b32 s{sT0}, s{sWAVE}, 1")
        e(f"s_lshl_b32 s{sT0}, s{sT0}, 2")
        e(f"s_lshl_b32 s{sT1}, s{sH}, 3")
        e(f"s_add_u32 s{sT0}, s{sT0}, s{sT1}")
        e(f"s_lshl_b32 s{sT0}, s{sT0}, 14")
        e(f"s_add_u32 s{sT0}, s{sT0}, s{sL}")
        e(f"s_add_u32 s{sT1}, s{sT0}, {BLK}")
        e(f"s_add_u32 s{sT2}, s{sT0}, {2*BLK}")
        e(f"s_add_u32 s{sT3}, s{sT0}, {3*BLK}")
        so = [sT0, sT1, sT2, sT3]
        lp = self.poll_begin()
        for c in range(4):
            e(f"buffer_load_dword v{t+c}, v{dv}, s[{sWS}:{sWS+3}], s{so[c]} offen offset:{OP} sc1")
        for c in range(4):
            e(f"buffer_load_dwordx2 v[{t+4+2*c}:{t+5+2*c}], off, s[{sWS}:{sWS+3}], s{so[c]} offset:{OP+512} sc1")
        e("s_waitcnt vmcnt(0)")
        self.poll_check(range(t, t + 12), vT0)
        self.poll_end(lp)
        self.stamp(11, True)
        m = [t + 4 + 2 * c for c in range(4)]; l = [t + 5 + 2 * c for c in range(4)]
        M = vO
        e(f"v_max3_f32 v{M}, v{m[0]}, v{m[1]}, v{m[2]}")
        e(f"v_max_f32 v{M}, v{M}, v{m[3]}")
        for c in range(4):
            e(f"v_sub_f32 v{m[c]}, v{m[c]}, v{M}")
        for c in range(4):
            e(f"v_mul_f32 v{m[c]}, s{sCS}, v{m[c]}")
        for c in range(4):
            e(f"v_exp_f32 v{m[c]}, v{m[c]}")
        e(f"v_lshrrev_b32 v{vT0}, 1, v{dv}")
        e(f"s_lshr_b32 s{sT0}, s{sWAVE}, 1")
        e(f"s_lshl_b32 s{sT0}, s{sT0}, 8")
        e(f"s_add_u32 s{sT0}, s{sT0}, {L['XQ']}")
        e(f"v_add_u32 v{vT0}, s{sT0}, v{vT0}")
        e(f"v_mul_f32 v{M+1}, v{m[0]}, v{l[0]}")
        e(f"v_mul_f32 v{t}, v{m[0]}, v{t}")
        for c in range(1, 4):
            e(f"v_fmac_f32 v{M+1}, v{m[c]}, v{l[c]}")
            e(f"v_fmac_f32 v{t}, v{m[c]}, v{t+c}")
        e(f"v_rcp_f32 v{M+1}, v{M+1}")
        e(f"v_mul_f32 v{t}, v{M+1}, v{t}")
        e(f"v_cvt_pk_bf16_f32 v{t}, v{t}, v{t}")
        e(f"ds_write_b16 v{vT0}, v{t}")
        e(f"v_and_b32 v{vT0}, 15, v{vLANE}")
        e(f"v_min_u32 v{vT1}, 2, v{vT0}")
        e(f"v_lshlrev_b32 v{vT1}, 8, v{vT1}")
        e(f"v_and_b32 v{3}, 48, v{vLANE}")
        e(f"v_add_u32 v{vT1}, v{vT1}, v3")
        e(f"v_add_u32 v{vT1}, {L['XQ']}, v{vT1}")
        e(f"v_lshlrev_b32 v{vT0}, 8, v{vT0}")
        e(f"v_add_u32 v{vT0}, v{vT0}, v3")
        e(f"s_lshl_b32 s{sT0}, s{sWAVE}, 6")
        e(f"s_add_u32 s{sT0}, s{sT0}, s{sBLK}")
        e(f"s_add_u32 s{sT0}, s{sT0}, s{sL}")
        e("s_waitcnt lgkmcnt(0)")
        e("s_barrier")
        for s in range(4):
            e(f"ds_read_b128 v[{t+4*s}:{t+4*s+3}], v{vT1} offset:{s*64}")
        e("s_waitcnt lgkmcnt(0)")
        d = vO + 4
        for s in range(4):
            c = "0" if s == 0 else f"v[{d}:{d+3}]"
            e(f"v_mfma_f32_16x16x32_bf16 v[{d}:{d+3}], v[{vQF+4*s}:{vQF+4*s+3}], v[{t+4*s}:{t+4*s+3}], {c}")
        e(f"s_mov_b64 s[{sEX}:{sEX+1}], exec")
        e(f"s_mov_b64 exec, s[{sN2}:{sN2+1}]")
        e(f"buffer_store_dwordx4 v[{d}:{d+3}], v{vT0}, s[{sWS}:{sWS+3}], s{sT0} offen offset:{YP} sc1")
        e(f"s_mov_b64 exec, s[{sEX}:{sEX+1}]")
        self.stamp(12, True)
        self.roles()

    def stage_a_group(self):
        cfg, L, e = self.cfg, self.L, self.e
        self.c("stage A (group)")
        t = vD
        ml = vO + 4
        tm = vO + 6
        acc = 4
        e(f"s_and_b32 s{sT0}, s{sH}, 28")
        e(f"s_add_u32 s{sT0}, s{sT0}, s{sWAVE}")
        e(f"s_lshl_b32 s{sT0}, s{sT0}, 17")
        e(f"s_add_u32 s{sT0}, s{sT0}, s{sL}")
        e(f"s_add_u32 s{sT1}, s{sT0}, {BLK}")
        e(f"s_add_u32 s{sT2}, s{sT0}, {2*BLK}")
        e(f"s_add_u32 s{sT3}, s{sT0}, {3*BLK}")
        e(f"v_lshrrev_b32 v{vT0}, 5, v{vLANE}")
        e(f"v_lshlrev_b32 v{vT0}, 16, v{vT0}")
        e(f"v_and_b32 v{vT1}, 3, v{vLANE}")
        e(f"v_lshl_add_u32 v3, v{vT1}, 14, v{vT0}")
        e(f"v_and_b32 v{vT1}, 31, v{vLANE}")
        e(f"v_lshl_add_u32 v2, v{vT1}, 4, v{vT0}")
        so = [sT0, sT1, sT2, sT3]
        lp = self.poll_begin()
        for c in range(4):
            e(f"buffer_load_dwordx4 v[{t+4*c}:{t+4*c+3}], v2, s[{sWS}:{sWS+3}], s{so[c]} offen offset:{OP} sc1")
        e(f"buffer_load_dwordx2 v[{ml}:{ml+1}], v3, s[{sWS}:{sWS+3}], s{sT0} offen offset:{OP+512} sc1")
        e("s_waitcnt vmcnt(0)")
        self.poll_check(list(range(t, t + 16)) + [ml, ml + 1], vT0)
        self.poll_end(lp)
        self.stamp(11, True)
        dpp = lambda q: f"quad_perm:{q} row_mask:0xf bank_mask:0xf"
        e(f"v_max_f32_dpp v{tm}, v{ml}, v{ml} {dpp('[1,0,3,2]')}")
        e(f"s_lshl_b32 s{sT0}, s{sWAVE}, 9")
        e(f"s_add_u32 s{sT0}, s{sT0}, {L['XBUF']}")
        e(f"v_max_f32_dpp v{tm}, v{tm}, v{tm} {dpp('[2,3,0,1]')}")
        e(f"v_lshlrev_b32 v2, 3, v{vLANE}")
        e(f"v_add_u32 v2, s{sT0}, v2")
        e(f"v_sub_f32 v{tm}, v{ml}, v{tm}")
        e(f"v_mul_f32 v{tm}, s{sCS}, v{tm}")
        e(f"v_exp_f32 v{tm}, v{tm}")
        e(f"v_and_b32 v{vT0}, 1, v{vLANE}")
        e(f"v_and_b32 v{vT1}, 48, v{vLANE}")
        e(f"v_mul_f32 v{tm+1}, v{tm}, v{ml+1}")
        e(f"v_lshl_add_u32 v3, v{vT0}, 8, v{vT1}")
        e(f"v_add_u32 v3, s{sT0}, v3")
        e(f"v_add_f32_dpp v{tm+1}, v{tm+1}, v{tm+1} {dpp('[1,0,3,2]')}")
        e(f"v_lshlrev_b32 v{vT1}, 1, v{vT1}")
        e(f"v_lshl_add_u32 v8, v{vT0}, 4, v{vT1}")
        e(f"v_add_f32_dpp v{tm+1}, v{tm+1}, v{tm+1} {dpp('[2,3,0,1]')}")
        e(f"v_add_u32 v8, {L['PART']}, v8")
        e(f"v_rcp_f32 v{tm+1}, v{tm+1}")
        e(f"s_lshl_b32 s{sT1}, s{sWAVE}, 7")
        e(f"v_add_u32 v9, s{sT1}, v8")
        e(f"v_mul_f32 v{tm}, v{tm}, v{tm+1}")
        for c in range(4):
            for r in range(4):
                op = "v_mul_f32_dpp" if c == 0 else "v_fmac_f32_dpp"
                e(f"{op} v{acc+r}, v{tm}, v{t+4*c+r} {dpp(f'[{c},{c},{c},{c}]')}")
        e(f"v_cvt_pk_bf16_f32 v{acc}, v{acc}, v{acc+1}")
        e(f"v_cvt_pk_bf16_f32 v{acc+1}, v{acc+2}, v{acc+3}")
        e(f"ds_write_b64 v2, v[{acc}:{acc+1}]")
        for s_ in range(4):
            e(f"ds_read_b128 v[{t+4*s_}:{t+4*s_+3}], v3 offset:{s_*64}")
        e("s_waitcnt lgkmcnt(0)")
        d = vO + 4
        for s_ in range(4):
            c = "0" if s_ == 0 else f"v[{d}:{d+3}]"
            e(f"v_mfma_f32_16x16x32_bf16 v[{d}:{d+3}], v[{vQF+4*s_}:{vQF+4*s_+3}], v[{t+4*s_}:{t+4*s_+3}], {c}")
        e(f"ds_write_b128 v9, v[{d}:{d+3}]")
        e("s_waitcnt lgkmcnt(0)")
        e("s_barrier")
        lw = self.lab("Lga")
        e(f"s_cmp_lg_u32 s{sWAVE}, 0")
        e(f"s_cbranch_scc1 {lw}")
        for w in range(4):
            e(f"ds_read_b128 v[{t+4*w}:{t+4*w+3}], v8 offset:{w*128}")
        e(f"v_and_b32 v{vT0}, 1, v{vLANE}")
        e(f"v_lshrrev_b32 v{vT1}, 4, v{vLANE}")
        e(f"v_lshlrev_b32 v{vT1}, 4, v{vT1}")
        e(f"v_lshl_add_u32 v{vT0}, v{vT0}, 6, v{vT1}")
        e(f"s_add_u32 s{sT0}, s{sBLKW}, s{sL}")
        e("s_waitcnt lgkmcnt(0)")
        for r in range(4):
            e(f"v_add_f32 v{t+r}, v{t+r}, v{t+4+r}")
            e(f"v_add_f32 v{t+8+r}, v{t+8+r}, v{t+12+r}")
        for r in range(4):
            e(f"v_add_f32 v{t+r}, v{t+r}, v{t+8+r}")
        e(f"s_mov_b64 exec, s[{sN2}:{sN2+1}]")
        e(f"buffer_store_dwordx4 v[{t}:{t+3}], v{vT0}, s[{sWS}:{sWS+3}], s{sT0} offen offset:{X1} sc1")
        e("s_mov_b64 exec, -1")
        self.label(lw)
        self.stamp(12, True)

    def roles(self):
        cfg, L, e = self.cfg, self.L, self.e
        e(f"s_cmp_lt_u32 s2, {NF}")
        e("s_cbranch_scc1 L_FFN")
        e(f"s_cmp_ge_u32 s2, {R0}")
        e("s_cbranch_scc1 L_RED")
        e(f"s_cmp_lg_u32 s{sL}, 0")
        e("s_cbranch_scc1 L_end")
        if cfg.PF:
            self.l2_prefetch(cfg.PF, True)
        if cfg.TPF:
            self.tail_prefetch()
        e("s_branch L_G2")
        self.ffn()
        self.reducer()
        self.g2()

    def tail_prefetch(self):
        cfg, L, e = self.cfg, self.L, self.e
        nw = 4 if cfg.TPW0 else 3
        lsk, lp = self.lab("Ltp"), self.lab("Ltpl")
        if not cfg.TPW0:
            e(f"s_cmp_eq_u32 s{sWAVE}, 0")
            e(f"s_cbranch_scc1 {lsk}")
        e(f"s_load_dwordx2 s[{sW}:{sW+1}], s[0:1], 8")
        e(f"s_lshr_b32 s{sT0}, s2, 3")
        e(f"s_sub_u32 s{sT0}, s{sT0}, {NF // 8}")
        e(f"s_mul_i32 s{sT0}, s{sT0}, {nw}")
        e(f"s_add_u32 s{sT0}, s{sT0}, s{sWAVE}")
        if not cfg.TPW0:
            e(f"s_sub_u32 s{sT0}, s{sT0}, 1")
        e(f"s_and_b32 s{sT1}, s2, 7")
        e(f"s_lshl_b32 s{sT1}, s{sT1}, 23")
        e(f"s_add_u32 s{sT1}, s{sT1}, {(8 + cfg.TPO) * 4096}")
        e(f"s_mul_i32 s{sT2}, s{sWAVE}, 1152")
        e(f"s_add_u32 m0, s{sT2}, {L['PBUF']}")
        if cfg.TPM == 0:
            e(f"v_lshlrev_b32 v{vT0}, 6, v{vLANE}")
        e("s_waitcnt lgkmcnt(0)")
        e(f"s_and_b32 s{sW+1}, s{sW+1}, 0xffff")
        e(f"s_mov_b32 s{sW+2}, {1 << 27}")
        e(f"s_mov_b32 s{sW+3}, 0x20000")
        self.label(lp)
        e(f"s_and_b32 s{sT2}, s{sT0}, 63")
        e(f"s_lshl_b32 s{sT2}, s{sT2}, 17")
        e(f"s_bfe_u32 s{sT3}, s{sT0}, 0x10006")
        e(f"s_lshl_b32 s{sT3}, s{sT3}, 26")
        e(f"s_add_u32 s{sT2}, s{sT2}, s{sT3}")
        e(f"s_lshr_b32 s{sT3}, s{sT0}, 7")
        e(f"s_lshl_b32 s{sT3}, s{sT3}, 12")
        e(f"s_add_u32 s{sT2}, s{sT2}, s{sT3}")
        e(f"s_add_u32 s{sT2}, s{sT2}, s{sT1}")
        if cfg.TPM == 0:
            e(f"s_waitcnt vmcnt({cfg.TPD - 1})")
            e(f"buffer_load_dword v{vT0}, s[{sW}:{sW+3}], s{sT2} offen {cfg.PFPOL} lds")
        else:
            for p in range(4):
                if p:
                    e(f"s_add_u32 s{sT2}, s{sT2}, 1024")
                e(f"s_waitcnt vmcnt({cfg.TPD - 1})")
                e(f"buffer_load_dwordx4 v{vVOFF}, s[{sW}:{sW+3}], s{sT2} offen {cfg.PFPOL} lds")
        e(f"s_add_u32 s{sT0}, s{sT0}, {14 * nw}")
        e(f"s_cmp_lt_u32 s{sT0}, {128 * cfg.TPF}")
        e(f"s_cbranch_scc1 {lp}")
        self.stamp(20)
        self.label(lsk)

    def l2_prefetch(self, ntiles, partner):
        cfg, L, e = self.cfg, self.L, self.e
        e(f"s_mul_i32 s{sT0}, s{sWAVE}, 1152")
        e(f"s_add_u32 m0, s{sT0}, {L['PBUF']}")
        n = [0]

        def run(srd, cnt, first):
            for i in range(cnt):
                if i == 0:
                    e(f"s_mov_b32 s{sKO}, {first}")
                else:
                    e(f"s_add_u32 s{sKO}, s{sKO}, 1024")
                if n[0] >= cfg.PFD:
                    e(f"s_waitcnt vmcnt({cfg.PFD-1})")
                e(f"buffer_load_dwordx4 v{vVOFF}, s[{srd}:{srd+3}], s{sKO} offen {cfg.PFPOL} lds")
                n[0] += 1
        if cfg.PFV or cfg.PFK:
            jobs = [(sV, cfg.PFV, (128 - cfg.PFV) * 1024), (sK, cfg.PFK, (128 - cfg.PFK) * 1024)]
        else:
            jobs = [(sK, 4 * ntiles, 8 * 4096)]
        for srd, cnt, first in jobs:
            if cnt:
                run(srd, cnt, first)
        if partner:
            l = self.lab("Lpf")
            e("s_cmp_ge_u32 s2, 192")
            e(f"s_cbranch_scc0 {l}")
            for srd, cnt, first in jobs:
                if not cnt:
                    continue
                e(f"s_add_u32 s{sW}, s{srd}, 0x80000")
                e(f"s_addc_u32 s{sW+1}, s{srd+1}, 0")
                e(f"s_mov_b32 s{sW+2}, 131072")
                e(f"s_mov_b32 s{sW+3}, 0x20000")
                run(sW, cnt, first)
            self.label(l)

    def red_reduce(self, x):
        L, e = self.L, self.e
        regs = [x + r for r in range(4)]
        self.bfly_row("v_add_f32", regs, steps=(8,))
        tm = [x + 4 + r for r in range(4)]
        self.swap_reduce("v_add_f32", regs, tm, 16)
        self.swap_reduce("v_add_f32", regs, tm, 32)
        e(f"s_lshl_b32 s{sT0}, s{sWAVE}, 7")
        e(f"s_add_u32 s{sT0}, s{sT0}, {L['PART']}")
        e(f"v_and_b32 v{vT0}, 7, v{vLANE}")
        e(f"v_lshlrev_b32 v{vT0}, 4, v{vT0}")
        e(f"v_add_u32 v{vT1}, s{sT0}, v{vT0}")
        e(f"ds_write_b128 v{vT1}, v[{x}:{x+3}]")
        e("s_waitcnt lgkmcnt(0)")
        e("s_barrier")

    def reducer(self):
        cfg, L, e = self.cfg, self.L, self.e
        self.label("L_RED")
        x = vD
        sR, sRB, sCB = sT4, sT5, 49
        e(f"s_sub_u32 s{sR}, s2, {R0}")
        e(f"s_lshr_b32 s{sRB}, s{sR}, 4")
        e(f"s_and_b32 s{sCB}, s{sR}, 15")
        self.srd(sW, sB2, 1024)
        e(f"v_and_b32 v2, 7, v{vLANE}")
        e(f"v_lshlrev_b32 v3, 3, v2")
        e(f"s_lshl_b32 s{sT0}, s{sCB}, 6")
        e(f"buffer_load_dwordx2 v[4:5], v3, s[{sW}:{sW+3}], s{sT0} offen")
        e(f"v_lshrrev_b32 v6, 3, v{vLANE}")
        if cfg.GY:
            self.reducer_b1_group(x, sRB, sCB)
        else:
            self.reducer_b1(x, sRB, sCB)
        self.reducer_d1(x, sR, sRB, sCB)

    def reducer_final_sum(self, x):
        L, e = self.L, self.e
        e(f"v_add_u32 v{vT1}, {L['PART']}, v{vT0}")
        for w in range(4):
            e(f"ds_read_b128 v[{x+4*w}:{x+4*w+3}], v{vT1} offset:{w*128}")
        e(f"v_add_u32 v{vT0}, {L['XRES']}, v{vT0}")
        e(f"ds_read_b128 v[{vO+4}:{vO+7}], v{vT0}")
        e("s_waitcnt lgkmcnt(0)")
        for r in range(4):
            e(f"v_add_f32 v{x+r}, v{x+r}, v{x+4+r}")
            e(f"v_add_f32 v{x+8+r}, v{x+8+r}, v{x+12+r}")
        for r in range(4):
            e(f"v_add_f32 v{x+r}, v{x+r}, v{x+8+r}")
        for r in range(4):
            e(f"v_add_f32 v{x+r}, v{x+r}, v{vO+4+r}")

    def reducer_b1_group(self, x, sRB, sCB):
        cfg, L, e = self.cfg, self.L, self.e
        lw = self.lab("Lr1")
        e(f"s_cmp_lg_u32 s{sWAVE}, 0")
        e(f"s_cbranch_scc1 {lw}")
        e(f"v_lshlrev_b32 v7, 14, v6")
        e(f"v_lshrrev_b32 v{vT0}, 2, v2")
        e(f"v_lshl_add_u32 v7, v{vT0}, 17, v7")
        e(f"v_and_b32 v{vT0}, 3, v2")
        e(f"v_lshl_add_u32 v7, v{vT0}, 4, v7")
        e(f"s_lshl_b32 s{sT0}, s{sCB}, 18")
        e(f"s_add_u32 s{sT0}, s{sT0}, s{sL}")
        e(f"s_lshl_b32 s{sT1}, s{sRB}, 6")
        e(f"s_add_u32 s{sT0}, s{sT0}, s{sT1}")
        e(f"v_lshlrev_b32 v{vT1}, 4, v2")
        e(f"v_add_u32 v{vT1}, {L['XRES']}, v{vT1}")
        e(f"ds_read_b128 v[{vO+4}:{vO+7}], v{vT1}")
        lp = self.poll_begin()
        e(f"buffer_load_dwordx4 v[{x}:{x+3}], v7, s[{sWS}:{sWS+3}], s{sT0} offen offset:{X1} sc1")
        e("s_waitcnt vmcnt(0)")
        self.poll_check(range(x, x + 4), vT0)
        self.poll_end(lp)
        self.stamp(17, True)
        regs = [x + r for r in range(4)]
        self.bfly_row("v_add_f32", regs, steps=(8,))
        tm = [x + 4 + r for r in range(4)]
        self.swap_reduce("v_add_f32", regs, tm, 16)
        self.swap_reduce("v_add_f32", regs, tm, 32)
        e("s_waitcnt lgkmcnt(0)")
        for r in range(4):
            e(f"v_add_f32 v{x+r}, v{x+r}, v{vO+4+r}")
        e(f"ds_write_b128 v{vT1}, v[{x}:{x+3}]")
        self.label(lw)
        self.stamp(18, True)

    def reducer_b1(self, x, sRB, sCB):
        cfg, L, e = self.cfg, self.L, self.e
        e(f"v_lshlrev_b32 v7, 17, v6")
        e(f"v_lshl_add_u32 v7, v2, 4, v7")
        e(f"s_lshl_b32 s{sT0}, s{sWAVE}, 6")
        e(f"s_lshr_b32 s{sT1}, s{sCB}, 1")
        e(f"s_add_u32 s{sT0}, s{sT0}, s{sT1}")
        e(f"s_lshl_b32 s{sT0}, s{sT0}, 14")
        e(f"s_add_u32 s{sT0}, s{sT0}, s{sL}")
        e(f"s_lshl_b32 s{sT1}, s{sRB}, 8")
        e(f"s_add_u32 s{sT0}, s{sT0}, s{sT1}")
        e(f"s_and_b32 s{sT1}, s{sCB}, 1")
        e(f"s_lshl_b32 s{sT1}, s{sT1}, 7")
        e(f"s_add_u32 s{sT0}, s{sT0}, s{sT1}")
        lp = self.poll_begin()
        e(f"buffer_load_dwordx4 v[{x}:{x+3}], v7, s[{sWS}:{sWS+3}], s{sT0} offen offset:{YP} sc1")
        e("s_waitcnt vmcnt(0)")
        self.poll_check(range(x, x + 4), vT0)
        self.poll_end(lp)
        self.stamp(17, True)
        self.red_reduce(x)
        lw = self.lab("Lr1")
        e(f"s_cmp_lg_u32 s{sWAVE}, 0")
        e(f"s_cbranch_scc1 {lw}")
        self.reducer_final_sum(x)
        e(f"ds_write_b128 v{vT0}, v[{x}:{x+3}]")
        e(f"s_add_u32 s{sT0}, s{sBLKW}, s{sL}")
        e(f"v_lshlrev_b32 v3, 4, v2")
        e(f"s_mov_b64 s[{sEX}:{sEX+1}], exec")
        e("s_mov_b64 exec, 0xff")
        e(f"buffer_store_dwordx4 v[{x}:{x+3}], v3, s[{sWS}:{sWS+3}], s{sT0} offen offset:{X1} sc1")
        e(f"s_mov_b64 exec, s[{sEX}:{sEX+1}]")
        self.label(lw)
        self.stamp(18, True)
        e("s_waitcnt lgkmcnt(0)")
        e("s_barrier")

    def reducer_d1(self, x, sR, sRB, sCB):
        cfg, L, e = self.cfg, self.L, self.e
        e(f"v_lshlrev_b32 v7, 14, v6")
        e(f"v_lshl_add_u32 v7, v2, 4, v7")
        e(f"s_lshl_b32 s{sT0}, s{sWAVE}, 17")
        e(f"s_add_u32 s{sT0}, s{sT0}, s{sL}")
        e(f"s_lshl_b32 s{sT1}, s{sRB}, 11")
        e(f"s_add_u32 s{sT0}, s{sT0}, s{sT1}")
        e(f"s_lshl_b32 s{sT1}, s{sCB}, 7")
        e(f"s_add_u32 s{sT0}, s{sT0}, s{sT1}")
        e(f"s_add_u32 s{sT0}, s{sT0}, {FP}")
        e(f"s_add_u32 s{sT1}, s{sT0}, {32*BLK}")
        e(f"s_add_u32 s{sT2}, s{sT0}, {64*BLK}")
        e(f"s_add_u32 s{sT3}, s{sT0}, {96*BLK}")
        for r in range(4):
            e(f"v_mov_b32 v{x+12+r}, 0")
        lp = self.poll_begin()
        l3 = self.lab("Lr3")
        for k, so in enumerate((sT0, sT1, sT2)):
            e(f"buffer_load_dwordx4 v[{x+4*k}:{x+4*k+3}], v7, s[{sWS}:{sWS+3}], s{so} offen sc1")
        e(f"s_cmp_ge_u32 s{sWAVE}, 2")
        e(f"s_cbranch_scc1 {l3}")
        e(f"buffer_load_dwordx4 v[{x+12}:{x+15}], v7, s[{sWS}:{sWS+3}], s{sT3} offen sc1")
        self.label(l3)
        e("s_waitcnt vmcnt(0)")
        self.poll_check(range(x, x + 16), vT0)
        self.poll_end(lp)
        self.stamp(19, True)
        for r in range(4):
            e(f"v_add_f32 v{x+r}, v{x+r}, v{x+4+r}")
            e(f"v_add_f32 v{x+8+r}, v{x+8+r}, v{x+12+r}")
        for r in range(4):
            e(f"v_add_f32 v{x+r}, v{x+r}, v{x+8+r}")
        self.red_reduce(x)
        lw = self.lab("Lr4")
        e(f"s_cmp_lg_u32 s{sWAVE}, 0")
        e(f"s_cbranch_scc1 {lw}")
        self.reducer_final_sum(x)
        e(f"v_lshlrev_b32 v{x+4}, 16, v4")
        e(f"v_and_b32 v{x+5}, 0xffff0000, v4")
        e(f"v_lshlrev_b32 v{x+6}, 16, v5")
        e(f"v_and_b32 v{x+7}, 0xffff0000, v5")
        for r in range(4):
            e(f"v_add_f32 v{x+r}, v{x+r}, v{x+4+r}")
        lo = self.lab("Lout")
        e(f"s_mov_b64 s[{sEX}:{sEX+1}], exec")
        e(f"s_cmp_lg_u32 s{sL}, 0")
        e(f"s_cbranch_scc1 {lo}")
        e(f"ds_write_b128 v{vT0}, v[{x}:{x+3}]")
        e(f"s_add_u32 s{sT0}, s{sBLKW}, s{sL}")
        e(f"v_lshlrev_b32 v3, 4, v2")
        e("s_mov_b64 exec, 0xff")
        e(f"buffer_store_dwordx4 v[{x}:{x+3}], v3, s[{sWS}:{sWS+3}], s{sT0} offen offset:{X2} sc1")
        e(f"s_mov_b64 exec, s[{sEX}:{sEX+1}]")
        e("s_waitcnt lgkmcnt(0)")
        e("s_branch L_G2")
        self.label(lo)
        self.srd(sW, sOUT, 2048)
        e(f"v_cvt_pk_bf16_f32 v{x+4}, v{x}, v{x+1}")
        e(f"v_cvt_pk_bf16_f32 v{x+5}, v{x+2}, v{x+3}")
        e(f"s_lshl_b32 s{sT0}, s{sR}, 6")
        e(f"v_lshlrev_b32 v3, 3, v2")
        e("s_mov_b64 exec, 0xff")
        e(f"buffer_store_dwordx2 v[{x+4}:{x+5}], v3, s[{sW}:{sW+3}], s{sT0} offen")
        e("s_waitcnt vmcnt(0)")
        e("s_branch L_end")
        self.label(lw)
        e(f"s_cmp_lg_u32 s{sL}, 0")
        e("s_cbranch_scc1 L_end")
        e("s_branch L_G2")

    def ffn(self):
        cfg, L, e = self.cfg, self.L, self.e
        self.label("L_FFN")
        t = vD
        self.srd(sW, sW2, 1792 * 512 * 2)
        e(f"v_lshrrev_b32 v2, 4, v{vLANE}")
        e(f"v_lshlrev_b32 v2, 10, v2")
        e(f"v_and_b32 v3, 15, v{vLANE}")
        e(f"v_lshl_add_u32 v2, v3, 4, v2")
        e(f"s_lshl_b32 s{sT0}, s2, 14")
        e(f"s_lshl_b32 s{sT1}, s{sWAVE}, 8")
        e(f"s_add_u32 s{sT0}, s{sT0}, s{sT1}")
        for i in range(4):
            e(f"s_add_u32 m0, s{sWB}, {i*1024}")
            if i > 0:
                e(f"s_add_u32 s{sT0}, s{sT0}, 4096")
            e(f"buffer_load_dwordx4 v2, s[{sW}:{sW+3}], s{sT0} offen lds")
        self.srd(sW, sB1, 1792 * 2)
        e(f"v_lshrrev_b32 v3, 4, v{vLANE}")
        e(f"v_lshlrev_b32 v3, 3, v3")
        e(f"s_lshl_b32 s{sT0}, s2, 5")
        e(f"buffer_load_dwordx2 v[4:5], v3, s[{sW}:{sW+3}], s{sT0} offen")
        e(f"v_lshrrev_b32 v2, 4, v{vLANE}")
        e(f"v_lshlrev_b32 v2, 2, v2")
        e(f"v_bfe_u32 v3, v{vLANE}, 2, 2")
        e(f"v_add_u32 v2, v2, v3")
        e(f"v_lshlrev_b32 v2, 8, v2")
        e(f"v_and_b32 v3, 3, v{vLANE}")
        e(f"v_lshl_add_u32 v2, v3, 3, v2")
        e(f"v_add_u32 v2, s{sWB}, v2")
        def w2_frags(va):
            for tt in range(8):
                e(f"ds_read_b64_tr_b16 v[{vQF+2*tt}:{vQF+2*tt+1}], v{va} offset:{tt*32}")

        def bias_f32():
            e(f"v_lshlrev_b32 v2, 16, v4")
            e(f"v_and_b32 v3, 0xffff0000, v4")
            e(f"v_lshlrev_b32 v4, 16, v5")
            e(f"v_and_b32 v5, 0xffff0000, v5")
        if not cfg.GY:
            e("s_waitcnt vmcnt(0)")
            w2_frags(2)
            bias_f32()
        else:
            e(f"v_mov_b32 v{vMR+1}, v2")
        e(f"v_lshrrev_b32 v10, 3, v{vLANE}")
        e(f"v_lshlrev_b32 v10, 14, v10")
        e(f"v_and_b32 v11, 7, v{vLANE}")
        e(f"v_lshl_add_u32 v10, v11, 4, v10")
        e(f"s_lshl_b32 s{sT0}, s{sWAVE}, 3")
        e(f"s_add_u32 s{sT0}, s{sT0}, {R0}")
        e(f"s_lshl_b32 s{sT0}, s{sT0}, 14")
        if not cfg.GY:
            e(f"s_add_u32 s{sT0}, s{sT0}, s{sL}")
        e(f"s_lshl_b32 s{sT1}, s{sWAVE}, 9")
        e(f"s_add_u32 s{sT1}, s{sT1}, {L['XBUF']}")
        e(f"v_lshlrev_b32 v11, 3, v{vLANE}")
        e(f"v_add_u32 v11, s{sT1}, v11")
        e(f"v_and_b32 v12, 1, v{vLANE}")
        e(f"v_lshlrev_b32 v13, 10, v12")
        e(f"v_and_b32 v14, 48, v{vLANE}")
        e(f"v_add_u32 v13, v13, v14")
        e(f"s_lshl_b32 s{sT1}, s{sWAVE}, 8")
        e(f"s_add_u32 s{sT1}, s{sT1}, {L['XBUF']}")
        e(f"v_add_u32 v13, s{sT1}, v13")
        e(f"v_lshlrev_b32 v14, 1, v14")
        e(f"v_lshl_add_u32 v14, v12, 4, v14")
        e(f"v_add_u32 v14, {L['PART']}, v14")
        e(f"s_lshl_b32 s{sT1}, s{sWAVE}, 7")
        e(f"v_add_u32 v15, s{sT1}, v14")
        e("s_waitcnt lgkmcnt(0)")
        self.stamp(13, True)
        if cfg.GY:
            res = vO + 4
            lr = self.lab("Lres")
            for r in range(4):
                e(f"v_mov_b32 v{res+r}, 0")
            e("v_mov_b32 v8, 0")
            e("v_mov_b32 v9, 0")
            e(f"s_cmp_lg_u32 s{sL}, 0")
            e(f"s_cbranch_scc1 {lr}")
            self.srd(sW, sX, 2048)
            e(f"v_lshlrev_b32 v{vT0}, 3, v{vLANE}")
            e(f"s_lshl_b32 s{sT1}, s{sWAVE}, 9")
            e(f"buffer_load_dwordx2 v[8:9], v{vT0}, s[{sW}:{sW+3}], s{sT1} offen")
            self.label(lr)
            e(f"v_lshrrev_b32 v6, 2, v{vLANE}")
            e(f"v_lshlrev_b32 v6, 17, v6")
            e(f"v_and_b32 v7, 3, v{vLANE}")
            e(f"v_lshl_add_u32 v6, v7, 4, v6")
            e(f"s_and_b32 s{sT1}, s{sWAVE}, 1")
            e(f"s_lshl_b32 s{sT1}, s{sT1}, 21")
            e(f"s_lshr_b32 s{sT2}, s{sWAVE}, 1")
            e(f"s_lshl_b32 s{sT2}, s{sT2}, 6")
            e(f"s_add_u32 s{sT1}, s{sT1}, s{sT2}")
            e(f"s_add_u32 s{sT1}, s{sT1}, s{sL}")
            dst = [t + 4 * k for k in range(4)] + [vQF + 4 * k for k in range(4)]
            lp = self.poll_begin()
            for k in range(8):
                if k:
                    e(f"s_add_u32 s{sT2}, s{sT1}, {k*BLK}")
                e(f"buffer_load_dwordx4 v[{dst[k]}:{dst[k]+3}], v6, s[{sWS}:{sWS+3}], s{sT2 if k else sT1} offen offset:{X1} sc1")
            l2 = self.lab("Lres")
            e(f"s_cmp_eq_u32 s{sL}, 0")
            e(f"s_cbranch_scc1 {l2}")
            e(f"buffer_load_dwordx4 v[{res}:{res+3}], v10, s[{sWS}:{sWS+3}], s{sT0} offen offset:{X2} sc1")
            self.label(l2)
            e("s_waitcnt vmcnt(0)")
            self.poll_check([d_ + r for d_ in dst for r in range(4)] + [res + r for r in range(4)], vT0)
            self.poll_end(lp)
            self.stamp(14, True)
            for r in range(4):
                e(f"v_add_f32 v{t+r}, v{t+r}, v{t+4+r}")
                e(f"v_add_f32 v{t+8+r}, v{t+8+r}, v{t+12+r}")
                e(f"v_add_f32 v{vQF+r}, v{vQF+r}, v{vQF+4+r}")
                e(f"v_add_f32 v{vQF+8+r}, v{vQF+8+r}, v{vQF+12+r}")
            for r in range(4):
                e(f"v_add_f32 v{t+r}, v{t+r}, v{t+8+r}")
                e(f"v_add_f32 v{vQF+r}, v{vQF+r}, v{vQF+8+r}")
            e(f"v_lshlrev_b32 v6, 16, v8")
            e(f"v_and_b32 v7, 0xffff0000, v8")
            e(f"v_lshlrev_b32 v8, 16, v9")
            e(f"v_and_b32 v9, 0xffff0000, v9")
            for r in range(4):
                e(f"v_add_f32 v{t+r}, v{t+r}, v{vQF+r}")
                e(f"v_add_f32 v{res+r}, v{res+r}, v{6+r}")
            for r in range(4):
                e(f"v_add_f32 v{t+r}, v{t+r}, v{res+r}")
            w2_frags(vMR + 1)
            bias_f32()
        else:
            lp = self.poll_begin()
            e(f"buffer_load_dwordx4 v[{t}:{t+3}], v10, s[{sWS}:{sWS+3}], s{sT0} offen offset:{X1} sc1")
            e("s_waitcnt vmcnt(0)")
            self.poll_check(range(t, t + 4), vT0)
            self.poll_end(lp)
        if not cfg.GY:
            self.stamp(14, True)
        e(f"v_cvt_pk_bf16_f32 v{t+4}, v{t}, v{t+1}")
        e(f"v_cvt_pk_bf16_f32 v{t+5}, v{t+2}, v{t+3}")
        e(f"ds_write_b64 v11, v[{t+4}:{t+5}]")
        e(f"v_lshlrev_b32 v{t}, 16, v{t+4}")
        e(f"v_and_b32 v{t+1}, 0xffff0000, v{t+4}")
        e(f"v_lshlrev_b32 v{t+2}, 16, v{t+5}")
        e(f"v_and_b32 v{t+3}, 0xffff0000, v{t+5}")
        e(f"v_add_f32 v{vMR}, v{t}, v{t+1}")
        e(f"v_mul_f32 v{vLR}, v{t}, v{t}")
        e(f"v_add_f32 v{vMR}, v{vMR}, v{t+2}")
        e(f"v_fmac_f32 v{vLR}, v{t+1}, v{t+1}")
        e(f"v_add_f32 v{vMR}, v{vMR}, v{t+3}")
        e(f"v_fmac_f32 v{vLR}, v{t+2}, v{t+2}")
        e(f"v_fmac_f32 v{vLR}, v{t+3}, v{t+3}")
        e("s_waitcnt lgkmcnt(0)")
        e("s_barrier")
        for s in range(4):
            e(f"ds_read_b128 v[{t+4*s}:{t+4*s+3}], v13 offset:{s*64}")
        e(f"v_and_b32 v10, 48, v{vLANE}")
        e(f"v_add_u32 v10, {L['CS1P']}, v10")
        e(f"ds_read_b128 v[6:9], v10")
        self.bfly_row("v_add_f32", [vMR, vLR])
        self.swap_reduce("v_add_f32", [vMR, vLR], [vT0, vT1], 16)
        self.swap_reduce("v_add_f32", [vMR, vLR], [vT0, vT1], 32)
        e("s_waitcnt lgkmcnt(0)")
        d = vO + 4
        for s in range(4):
            c = "0" if s == 0 else f"v[{d}:{d+3}]"
            e(f"v_mfma_f32_16x16x32_bf16 v[{d}:{d+3}], v[{vKF+4*s}:{vKF+4*s+3}], v[{t+4*s}:{t+4*s+3}], {c}")
        e(f"s_lshl_b32 s{sT1}, s{sWAVE}, 3")
        e(f"s_add_u32 s{sT1}, s{sT1}, {L['ST']}")
        e(f"v_mov_b32 v{vT0}, s{sT1}")
        e(f"ds_write_b64 v{vT0}, v[{vMR}:{vMR+1}]")
        for w in range(1, 4):
            e(f"ds_read_b128 v[{t+4*w}:{t+4*w+3}], v10 offset:{w*64}")
        e(f"ds_write_b128 v15, v[{d}:{d+3}]")
        e("s_waitcnt lgkmcnt(0)")
        for w in range(1, 4):
            for r in range(4):
                e(f"v_add_f32 v{6+r}, v{6+r}, v{t+4*w+r}")
        e("s_barrier")
        for w in range(4):
            e(f"ds_read_b128 v[{t+4*w}:{t+4*w+3}], v14 offset:{w*128}")
        e(f"v_lshlrev_b32 v{vT0}, 4, v12")
        e(f"v_add_u32 v{vT0}, {L['ST']}, v{vT0}")
        e(f"ds_read_b128 v[{d}:{d+3}], v{vT0}")
        e("s_waitcnt lgkmcnt(0)")
        e(f"v_add_f32 v{vMR}, v{d}, v{d+2}")
        e(f"v_add_f32 v{vLR}, v{d+1}, v{d+3}")
        self.mean_rstd(vMR, vLR, None)
        for r in range(4):
            e(f"v_add_f32 v{t+r}, v{t+r}, v{t+4+r}")
            e(f"v_add_f32 v{t+8+r}, v{t+8+r}, v{t+12+r}")
        for r in range(4):
            e(f"v_add_f32 v{t+r}, v{t+r}, v{t+8+r}")
        for r in range(4):
            e(f"v_fma_f32 v{t+r}, -v{vMR}, v{6+r}, v{t+r}")
        for r in range(4):
            e(f"v_fma_f32 v{t+r}, v{vLR}, v{t+r}, v{2+r}")
        k0 = -2.0 * 0.7978845608028654 * 1.4426950408889634
        e(f"s_mov_b32 s{sT1}, {hex(f2u(0.044715))}")
        e(f"s_mov_b32 s{sT2}, {hex(f2u(k0))}")
        for r in range(4):
            e(f"v_mul_f32 v{t+4+r}, v{t+r}, v{t+r}")
        for r in range(4):
            e(f"v_fma_f32 v{t+4+r}, v{t+4+r}, s{sT1}, 1.0")
        for r in range(4):
            e(f"v_mul_f32 v{t+4+r}, v{t+4+r}, v{t+r}")
        for r in range(4):
            e(f"v_mul_f32 v{t+4+r}, s{sT2}, v{t+4+r}")
        for r in range(4):
            e(f"v_exp_f32 v{t+4+r}, v{t+4+r}")
        for r in range(4):
            e(f"v_add_f32 v{t+4+r}, 1.0, v{t+4+r}")
        for r in range(4):
            e(f"v_rcp_f32 v{t+4+r}, v{t+4+r}")
        for r in range(4):
            e(f"v_mul_f32 v{t+r}, v{t+r}, v{t+4+r}")
        e(f"v_cvt_pk_bf16_f32 v{t+8}, v{t}, v{t+1}")
        e(f"v_cvt_pk_bf16_f32 v{t+9}, v{t+2}, v{t+3}")
        e(f"v_lshlrev_b32 v10, 11, v12")
        e(f"v_bfe_u32 v11, v{vLANE}, 1, 3")
        e(f"v_lshl_add_u32 v10, v11, 6, v10")
        e(f"v_and_b32 v11, 48, v{vLANE}")
        e(f"v_add_u32 v10, v10, v11")
        e(f"s_lshl_b32 s{sT0}, s{sWAVE}, 9")
        e(f"s_add_u32 s{sT0}, s{sT0}, s{sBLKW}")
        e(f"s_add_u32 s{sT0}, s{sT0}, s{sL}")
        e(f"s_add_u32 s{sT0}, s{sT0}, {FP}")
        bb = [t + 10, t + 12]
        def mk(tt):
            b = bb[tt & 1]
            e(f"s_lshl_b64 s[{sMK}:{sMK+1}], s[{sN2}:{sN2+1}], {2*tt}")
            e(f"v_cndmask_b32 v{b}, 0, v{t+8}, s[{sMK}:{sMK+1}]")
            e(f"v_cndmask_b32 v{b+1}, 0, v{t+9}, s[{sMK}:{sMK+1}]")
        mk(0)
        for tt in range(8):
            if tt + 1 < 8:
                mk(tt + 1)
            b = bb[tt & 1]
            c = "0" if tt == 0 else f"v[{d}:{d+3}]"
            e(f"v_mfma_f32_16x16x16_bf16 v[{d}:{d+3}], v[{vQF+2*tt}:{vQF+2*tt+1}], v[{b}:{b+1}], {c}")
        e(f"buffer_store_dwordx4 v[{d}:{d+3}], v10, s[{sWS}:{sWS+3}], s{sT0} offen sc1")
        self.stamp(15, True)
        e(f"s_cmp_lg_u32 s{sL}, 0")
        e("s_cbranch_scc1 L_end")
        self.set_wq()
        self.w_dma(vT0, cond=True)
        if cfg.PFF:
            self.l2_prefetch(cfg.PFF, False)
            e(f"s_waitcnt vmcnt({min(cfg.PFD, 4*cfg.PFF)})")
        else:
            e("s_waitcnt vmcnt(0)")
        self.w_frags(vKF, vT0)
        e("s_waitcnt lgkmcnt(0)")
        e("s_branch L_G2")

    def g2(self):
        cfg, L, e = self.cfg, self.L, self.e
        self.label("L_G2")
        self.stamp(21)
        self.consts()
        lw = self.lab("Lg2")
        e(f"s_cmp_lg_u32 s{sWAVE}, 0")
        e(f"s_cbranch_scc1 {lw}")
        t = vD
        e(f"v_lshrrev_b32 v{vT0}, 5, v{vLANE}")
        e(f"v_lshlrev_b32 v{vT0}, 4, v{vT0}")
        e(f"v_bfe_u32 v{vT1}, v{vLANE}, 3, 2")
        e(f"v_add_u32 v{vT0}, v{vT0}, v{vT1}")
        e(f"v_lshlrev_b32 v{vT0}, 14, v{vT0}")
        e(f"v_and_b32 v{vT1}, 7, v{vLANE}")
        e(f"v_lshl_add_u32 v{vT0}, v{vT1}, 4, v{vT0}")
        e(f"s_lshr_b32 s{sT0}, s{sJ}, 1")
        e(f"s_lshl_b32 s{sT0}, s{sT0}, 2")
        e(f"s_add_u32 s{sT0}, s{sT0}, {R0}")
        e(f"s_lshl_b32 s{sT0}, s{sT0}, 14")
        e(f"v_lshrrev_b32 v{t+8}, 5, v{vLANE}")
        e(f"v_lshlrev_b32 v{t+8}, 8, v{t+8}")
        e(f"v_and_b32 v{t+9}, 31, v{vLANE}")
        e(f"v_lshl_add_u32 v{t+8}, v{t+9}, 3, v{t+8}")
        e(f"v_add_u32 v{t+8}, {L['XQ']}, v{t+8}")
        lp = self.poll_begin()
        e(f"buffer_load_dwordx4 v[{t}:{t+3}], v{vT0}, s[{sWS}:{sWS+3}], s{sT0} offen offset:{X2} sc1")
        e("s_waitcnt vmcnt(0)")
        self.poll_check(range(t, t + 4), vT1)
        self.poll_end(lp)
        self.stamp(22)
        e(f"v_cvt_pk_bf16_f32 v{t+4}, v{t}, v{t+1}")
        e(f"v_cvt_pk_bf16_f32 v{t+5}, v{t+2}, v{t+3}")
        e(f"ds_write_b64 v{t+8}, v[{t+4}:{t+5}]")
        e(f"v_lshlrev_b32 v{t}, 16, v{t+4}")
        e(f"v_and_b32 v{t+1}, 0xffff0000, v{t+4}")
        e(f"v_lshlrev_b32 v{t+2}, 16, v{t+5}")
        e(f"v_and_b32 v{t+3}, 0xffff0000, v{t+5}")
        self.stats_partial(t)
        self.label(lw)
        if cfg.LOC and cfg.QPF:
            lq = self.lab("Lqpf")
            e(f"s_cmp_eq_u32 s{sWAVE}, 1")
            e(f"s_cbranch_scc0 {lq}")
            e(f"s_add_u32 s{sT0}, s{sBLK}, {LOFF}")
            e(f"buffer_load_dword v{vMR}, v{vVOFF}, s[{sWS}:{sWS+3}], s{sT0} offen sc1")
            self.label(lq)
        e(f"s_mov_b32 s{sL}, {LOFF}")
        e("s_waitcnt lgkmcnt(0)")
        e("s_branch L_QE")

    def build(self):
        cfg, e = self.cfg, self.e
        self.prologue()

        def snap():
            return (list(self.pending), set(self.ready), self.vm_n, dict(self.vm_tags), self.vm_done, self.lg_n, dict(self.lg_tags), self._vo)

        def rest(s):
            self.pending, self.ready, self.vm_n, self.vm_tags, self.vm_done, self.lg_n, self.lg_tags, self._vo = \
                list(s[0]), set(s[1]), s[2], dict(s[3]), s[4], s[5], dict(s[6]), s[7]

        def both(fn, name, cap_e, cap_o, last_falls):
            if not cfg.CAPO:
                self.cap, self.capend = cap_e, cfg.CAPEND
                fn()
                if not last_falls:
                    e("s_branch L_TAIL")
                return
            s0 = snap()
            e(f"s_cmp_lg_u32 s{sPAR}, 0")
            e(f"s_cbranch_scc1 {name}")
            self.cap, self.capend = cap_e, cfg.CAPEND
            fn()
            e("s_branch L_TAIL")
            rest(s0)
            self.label(name)
            self.cap, self.capend = cap_o, cfg.CAPENDO or cfg.CAPEND
            fn()
            if not last_falls:
                e("s_branch L_TAIL")
        both(self.pass1, "L_P1_odd", cfg.CAP, cfg.CAPO, False)
        self.qe()
        self.vm_n += 5000; self.vm_done = self.vm_n; self.vm_tags = {}
        self.pending = []
        both(self.pass2, "L_P2_odd", cfg.CAP2 or cfg.CAP, cfg.CAPO2 or cfg.CAPO, True)
        self.tail()
        self.label("L_end")
        self.stamp(63, last=True)
        self.label("L_exit")
        e("s_endpgm")

    def text(self):
        cfg = self.cfg
        body, nn = hazard_pass(self.lines)
        hdr = []
        ref = open("interleave_layers__mha_block_cached__dense_activation_gelu__decode.s.ref").read().split("\n")
        for l in ref:
            if l.startswith("; @launch"):
                hdr.append("; @launch grid=(256,1,1) block=(256,1,1) lds=163840")
                break
            if l.startswith(";"):
                hdr.append(l)
        hdr += ['.amdgcn_target "amdgcn-amd-amdhsa--gfx950"', ".text", f".globl {KNAME}", ".p2align 8",
                f".type {KNAME},@function", f"{KNAME}:"]
        ftr = ['.section .rodata,"a"', ".p2align 6", f".amdhsa_kernel {KNAME}",
               "  .amdhsa_next_free_vgpr 512", "  .amdhsa_next_free_sgpr 102", "  .amdhsa_accum_offset 256",
               "  .amdhsa_group_segment_fixed_size 0", "  .amdhsa_kernarg_size 104", "  .amdhsa_user_sgpr_count 2",
               "  .amdhsa_user_sgpr_kernarg_segment_ptr 1", "  .amdhsa_system_sgpr_workgroup_id_x 1",
               ".end_amdhsa_kernel", ""]
        return "\n".join(hdr + body + ftr), nn


def generate(path, **kw):
    cfg = Cfg()
    for k, v in kw.items():
        setattr(cfg, k, v)
    g = Gen(cfg)
    g.build()
    txt, nn = g.text()
    open(path, "w").write(txt)
    return len(txt), nn, len(g.lines)


if __name__ == "__main__":
    out = sys.argv[1] if len(sys.argv) > 1 else "interleave_layers__mha_block_cached__dense_activation_gelu__decode.s"
    kw = {}
    for a in sys.argv[2:]:
        k, v = a.split("=")
        kw[k] = v if (k.endswith("POL") or k.startswith("CK") or k.startswith("PART")) else int(v)
    print(generate(out, **kw))
```
